```python
import torch

def _softmax(x, axis=-1):
    return torch.softmax(x, dim=axis)
def _gelu(x):
    return torch.nn.functional.gelu(x, approximate="tanh")
def _silu(x):
    return torch.nn.functional.silu(x)
def _sigmoid(x):
    return torch.sigmoid(x)
def _layernorm(x, axis=-1, eps=1e-5):
    m = x.mean(dim=axis, keepdim=True)
    v = x.var(dim=axis, keepdim=True, unbiased=False)
    return (x - m) / torch.sqrt(v + eps)
def _scatter_add(tgt, idx, src, axis=0):
    return tgt.clone().index_add_(axis, idx, src)
def _segment_sum(src, seg, n):
    out = torch.zeros((n,) + src.shape[1:], dtype=src.dtype)
    return out.index_add_(0, seg, src)
def _pad(x, pw):
    flat = tuple(v for pair in reversed(pw) for v in pair)
    return torch.nn.functional.pad(x, flat)

kernel_name = 'parallel_sum__ssm_conv_s4d__moe_arch_mod__prompt'

def setup_inputs():

    _w = (lambda a: (lambda t: t.to(torch.bfloat16) if t.is_floating_point() else t)(torch.as_tensor(a)))
    def _A_setup():
        Bsz, L, D, N = 1, 2048, 1024, 128
        return {
            "u": _w((lambda *s: torch.randn(*s, dtype=torch.bfloat16) * 0.05)(Bsz, L, D)),
            "log_A_real": _w((lambda *s: torch.randn(*s, dtype=torch.bfloat16) * 3.2)(D, N) * 0.5),
            "A_imag": _w((lambda *s: torch.randn(*s, dtype=torch.bfloat16) * 0.2)(D, N) * 3.14),
            "C_real": _w((lambda *s: torch.randn(*s, dtype=torch.bfloat16) * 3.2)(D, N) / N ** 0.5),
            "C_imag": _w((lambda *s: torch.randn(*s, dtype=torch.bfloat16) * 3.2)(D, N) / N ** 0.5),
            "log_dt": _w((lambda *s: torch.randn(*s, dtype=torch.bfloat16) * 0.2)(D) * 0.5 - 4.0),
            "D_skip": _w((lambda *s: torch.randn(*s, dtype=torch.bfloat16) * 0.4)(D)),
        }
    _A_in = _A_setup()

    def _B_setup():
        B, S, D, F, C = 1, 2048, 1024, 3584, 1
        return {
            "x": _w((lambda *s: torch.randn(*s, dtype=torch.bfloat16) * 0.05)(B, S, D)),
            "w_r": _w((lambda *s: torch.randn(*s, dtype=torch.bfloat16) * 0.05)(D)),
            "w_gate": _w((lambda *s: torch.randn(*s, dtype=torch.bfloat16) * 0.05)(D, F)),
            "w_up": _w((lambda *s: torch.randn(*s, dtype=torch.bfloat16) * 0.05)(D, F)),
            "w_down": _w((lambda *s: torch.randn(*s, dtype=torch.bfloat16) * 0.05)(F, D)),
        }
    _B_in = _B_setup()

    return {
        "A_u": _A_in["u"],
        "A_log_A_real": _A_in["log_A_real"],
        "A_A_imag": _A_in["A_imag"],
        "A_C_real": _A_in["C_real"],
        "A_C_imag": _A_in["C_imag"],
        "A_log_dt": _A_in["log_dt"],
        "A_D_skip": _A_in["D_skip"],
        "B_x": _B_in["x"],
        "B_w_r": _B_in["w_r"],
        "B_w_gate": _B_in["w_gate"],
        "B_w_up": _B_in["w_up"],
        "B_w_down": _B_in["w_down"],
    }

def reference(A_u, A_log_A_real, A_A_imag, A_C_real, A_C_imag, A_log_dt, A_D_skip, B_x, B_w_r, B_w_gate, B_w_up, B_w_down):
    def _A_ref(u, log_A_real, A_imag, C_real, C_imag, log_dt, D_skip):
        L = u.shape[1]
        dt = torch.exp(log_dt)
        A = -torch.exp(log_A_real) + 1j * A_imag
        C = (C_real + 1j * C_imag) * dt[:, None]
        pos = (lambda x, dt: x.to(dt))(torch.arange(L), log_dt.dtype)
        P = torch.exp((A * dt[:, None])[:, :, None] * pos[None, None, :])
        K = 2.0 * torch.einsum("dn,dnl->dl", C, P).real
        L2 = 2 * L
        u_t = (lambda x, *d: x.permute(*d))(u, 0, 2, 1)
        Kf = (lambda x, *a, **k: torch.fft.rfft(x.float(), *a, **k))(K, L2)
        Uf = (lambda x, *a, **k: torch.fft.rfft(x.float(), *a, **k))(u_t, L2)
        y = (lambda x, *a, **k: torch.fft.irfft(x, *a, **k).to(torch.bfloat16))(Uf * Kf[None, :, :], L2)[:, :, :L]
        y = (lambda x, *d: x.permute(*d))(y, 0, 2, 1)
        return y + u * D_skip[None, None, :]

    def _B_ref(x, w_r, w_gate, w_up, w_down):
        B, S, D = x.shape
        C = 1
        r = x @ w_r
        idx = torch.argsort(-r, axis=-1)[:, :C]
        idx_e = (lambda x, n, axis: torch.repeat_interleave(x, n, dim=axis))(idx.reshape(B, C, 1), D, axis=2)
        x_sel = (lambda x, i, axis: torch.take_along_dim(x, i, dim=axis))(x, idx_e, axis=1)
        g = _silu(x_sel @ w_gate)
        u = x_sel @ w_up
        y = (g * u) @ w_down
        r_sel = _sigmoid((lambda x, i, axis: torch.take_along_dim(x, i, dim=axis))(r, idx, axis=1))
        y = y * r_sel.reshape(B, C, 1)
        b_off = (torch.arange(B) * S).reshape(B, 1)
        flat_idx = (idx + b_off).reshape(B * C)
        zero = (x * 0.0).reshape(B * S, D)
        upd = _scatter_add(zero, flat_idx, y.reshape(B * C, D), axis=0)
        return x + upd.reshape(B, S, D)

    x = A_u
    xn = _layernorm(x, axis=-1)
    return x + _A_ref(xn, A_log_A_real, A_A_imag, A_C_real, A_C_imag, A_log_dt, A_D_skip) + _B_ref(xn, B_w_r, B_w_gate, B_w_up, B_w_down)
```

```python
import re

REG_RE = re.compile(r'(?<![\w.])([vsa])(?:\[(\d+):(\d+)\]|(\d+))(?![\w])')

TRANS = ('v_exp_f32', 'v_log_f32', 'v_rcp_f32', 'v_rsq_f32', 'v_sqrt_f32', 'v_sin_f32', 'v_cos_f32')


def regs_of(text):
    out = []
    for m in REG_RE.finditer(text):
        k = m.group(1)
        if m.group(4) is not None:
            out.append((k, int(m.group(4))))
        else:
            for i in range(int(m.group(2)), int(m.group(3)) + 1):
                out.append((k, i))
    if re.search(r'(?<![\w])vcc(?![\w])', text):
        out.append(('s', 'vcc'))
    if re.search(r'(?<![\w])exec(?![\w])', text):
        out.append(('s', 'exec'))
    return out


def split_ops(s):
    ops, depth, cur = [], 0, ''
    for ch in s:
        if ch in '[(':
            depth += 1
        elif ch in '])':
            depth -= 1
        if ch == ',' and depth == 0:
            ops.append(cur.strip())
            cur = ''
        else:
            cur += ch
    if cur.strip():
        ops.append(cur.strip())
    return ops


class Asm:
    def __init__(self):
        self.lines = []
        self.hist = []
        self.nops_inserted = 0

    def raw(self, s):
        self.lines.append(s)

    def comment(self, s):
        self.lines.append('    ; ' + s)

    def label(self, name):
        self.lines.append(name + ':')

    def flush(self, n=20):
        need = 0
        dist = 0
        for h in reversed(self.hist):
            if h['cls'] == 'mfma8':
                need = max(need, 12 - dist)
            elif h['cls'] == 'mfma4':
                need = max(need, 8 - dist)
            elif h['cls'] in ('valu', 'trans', 'dot', 'vstore_wide'):
                need = max(need, 5 - dist)
            dist += h['ws']
            if dist > 20:
                break
        self._nop(need)
        self.hist = []

    def _nop(self, n):
        while n > 0:
            k = min(n, 16)
            self.lines.append('    s_nop %d' % (k - 1))
            self.hist.append(dict(ws=k, cls='nop', writes=set(), reads=set(), srcc=set(), op='s_nop'))
            self.nops_inserted += k
            n -= k

    def nop(self, n):
        self._nop(n)

    def i(self, text):
        text = text.strip()
        m = re.match(r'(\S+)\s*(.*)', text)
        op, rest = m.group(1), m.group(2)
        ops = split_ops(rest)
        cls = 'other'
        writes, reads, srcc = set(), set(), set()
        is_dpp = bool(re.search(r'(quad_perm|row_shr|row_shl|row_ror|row_bcast|row_mirror|row_half_mirror|wave_shl|wave_shr|wave_ror|wave_rol)', rest))
        if op.startswith('v_mfma'):
            cls = 'mfma8' if '32x32x16' in op else 'mfma4'
            writes = set(regs_of(ops[0]))
            reads = set(regs_of(ops[1])) | set(regs_of(ops[2]))
            srcc = set(regs_of(ops[3]))
        elif op.startswith('v_permlane') and 'swap' in op:
            cls = 'valu'
            writes = set(regs_of(ops[0])) | set(regs_of(ops[1]))
            reads = set(writes)
        elif op.startswith('v_cmp'):
            cls = 'valu'
            writes = set(regs_of(ops[0]))
            reads = set(regs_of(','.join(ops[1:])))
        elif op.startswith('v_readlane') or op.startswith('v_readfirstlane'):
            cls = 'valu'
            writes = set(regs_of(ops[0]))
            reads = set(regs_of(','.join(ops[1:])))
        elif op.startswith('v_add_co') or op.startswith('v_addc_co') or op.startswith('v_sub_co'):
            cls = 'valu'
            writes = set(regs_of(ops[0])) | set(regs_of(ops[1]))
            reads = set(regs_of(','.join(ops[2:])))
        elif op.startswith('v_'):
            cls = 'trans' if op.split('_e')[0] in TRANS or op in TRANS else ('dot' if op.startswith('v_dot') else 'valu')
            writes = set(regs_of(ops[0]))
            reads = set(regs_of(','.join(ops[1:])))
            if op.startswith('v_fmac') or op.startswith('v_dot2c') or op.startswith('v_pk_fmac') or is_dpp or 'sdwa' in op:
                reads |= writes
            if op.startswith('v_dot2_'):
                srcc = set(regs_of(ops[3]))
                reads = set(regs_of(ops[1])) | set(regs_of(ops[2]))
        elif op.startswith('buffer_') or op.startswith('global_'):
            cls = 'vmem'
            if 'store' in op or 'atomic' in op:
                reads = set(regs_of(rest))
                if 'x4' in op or 'x3' in op:
                    cls = 'vstore_wide'
                    srcc = set(regs_of(ops[0] if op.startswith('buffer_') else ops[1]))
            elif ' lds' in rest:
                reads = set(regs_of(rest))
            else:
                writes = set(regs_of(ops[0]))
                reads = set(regs_of(','.join(ops[1:])))
        elif op.startswith('ds_'):
            cls = 'lds'
            if op.startswith('ds_read') or op.startswith('ds_bpermute') or 'rtn' in op:
                writes = set(regs_of(ops[0]))
                reads = set(regs_of(','.join(ops[1:])))
            else:
                reads = set(regs_of(rest))
        elif op.startswith('s_'):
            cls = 'salu'
            if op in ('s_waitcnt', 's_barrier', 's_endpgm', 's_nop', 's_sleep', 's_setprio') or op.startswith('s_cbranch') or op.startswith('s_branch'):
                pass
            elif op.startswith('s_cmp'):
                reads = set(regs_of(rest))
            else:
                writes = set(regs_of(ops[0]))
                reads = set(regs_of(','.join(ops[1:])))
        need = 0
        dist = 0
        allreads = reads | srcc
        is_valu = cls in ('valu', 'trans', 'dot')
        is_mfma = cls in ('mfma4', 'mfma8')
        is_perml = op.startswith('v_permlane')
        is_rl = op.startswith('v_readlane') or op.startswith('v_readfirstlane')
        for h in reversed(self.hist):
            hw = h['writes']
            hc = h['cls']
            req = 0
            vw = {r for r in hw if r[0] in 'va'}
            sw = {r for r in hw if r[0] == 's'}
            if hc in ('valu', 'trans', 'dot'):
                if vw & allreads:
                    if is_dpp or is_perml:
                        req = max(req, 2)
                    if is_rl:
                        req = max(req, 1)
                    if is_mfma:
                        req = max(req, 2)
                    if hc == 'trans' and cls != 'trans' and (is_valu or is_mfma or True):
                        req = max(req, 1)
                    if hc == 'dot':
                        if cls == 'dot' and h['op'] == op:
                            if vw & reads:
                                req = max(req, 3)
                        else:
                            req = max(req, 3)
                    if 'sdwa' in h['op'] and 'dst_sel' in h['text']:
                        req = max(req, 1)
                if hc == 'dot' and (vw & writes) and not (cls == 'dot' and h['op'] == op):
                    req = max(req, 3)
                if sw & allreads:
                    if is_valu or is_mfma:
                        req = max(req, 4 if is_rl else 2)
                    if cls in ('vmem', 'vstore_wide'):
                        req = max(req, 5)
                if ('s', 'exec') in sw:
                    if is_dpp:
                        req = max(req, 5)
                    if is_mfma or is_rl or is_perml:
                        req = max(req, 4)
            if hc in ('mfma4', 'mfma8'):
                big = 12 if hc == 'mfma8' else 8
                if is_mfma:
                    if vw & reads:
                        req = max(req, big)
                    if vw & srcc:
                        if not (vw == srcc and hc == cls):
                            req = max(req, big - 2)
                    elif vw & writes:
                        req = max(req, big)
                else:
                    if vw & (allreads | writes):
                        req = max(req, big)
                    if is_valu and (h['srcc'] & writes):
                        req = max(req, 7 if hc == 'mfma8' else 3)
            if hc == 'vstore_wide':
                if h['srcc'] & writes:
                    req = max(req, 2 if is_valu else 1)
            need = max(need, req - dist)
            dist += h['ws']
            if dist > 20:
                break
        if need > 0:
            self._nop(need)
        self.lines.append('    ' + text)
        self.hist.append(dict(ws=1, cls=cls, writes=writes, reads=reads, srcc=srcc, op=op, text=text))
        if len(self.hist) > 64:
            self.hist = self.hist[-40:]

    def text(self):
        return '\n'.join(self.lines) + '\n'
```

```python
import sys, struct, os
sys.path.insert(0, os.path.dirname(__file__))
from asmlib import Asm

NAME = 'parallel_sum__ssm_conv_s4d__moe_arch_mod__prompt'

WS_XB = 0x000000
WS_STATS = 0x400000
WS_KEYS = 0x404000
WS_SEL = 0x405000
WS_YR = 0x406000
WS_XNR = 0x406800
WS_XR = 0x407000
WS_KT = 0x410000
KT_STRIDE = 1664
KT_TC = 1104
KT_INV = 1632
WS_PART = 0x600000
WS_SIZE = 0x10000000
NSL = 224


def fbits(x):
    return '0x%08x' % struct.unpack('<I', struct.pack('<f', x))[0]


L2E_HI = struct.unpack('<f', struct.pack('<f', 1.4426950408889634))[0]
L2E_LO = 1.4426950408889634 - L2E_HI
I2PI_HI = struct.unpack('<f', struct.pack('<f', 0.15915494309189535))[0]
I2PI_LO = 0.15915494309189535 - I2PI_HI


def srd(a, d, lo, size):
    a.i('s_mov_b32 s%d, s%d' % (d, lo))
    a.i('s_and_b32 s%d, s%d, 0xffff' % (d + 1, lo + 1))
    a.i('s_mov_b32 s%d, 0x%x' % (d + 2, size))
    a.i('s_mov_b32 s%d, 0x20000' % (d + 3))


def load_ptrs(a):
    a.i('s_load_dwordx16 s[16:31], s[0:1], 0')
    a.i('s_load_dwordx8 s[32:39], s[0:1], 64')
    a.i('s_load_dwordx4 s[40:43], s[0:1], 96')
    a.i('s_load_dwordx2 s[44:45], s[0:1], 112')
P_X, P_LA, P_AI, P_CR, P_CI, P_DT, P_DK = 16, 18, 20, 22, 24, 26, 28
P_WR, P_WG, P_WU, P_WD, P_OUT, P_DBG, P_WS = 32, 34, 36, 38, 40, 42, 44


def row_allreduce(a, v, op='v_add_f32'):
    for r in (8, 4, 2, 1):
        a.i('%s v%d, v%d, v%d row_ror:%d' % (op, v, v, v, r))


def reduce2(a, va, vb, vt, op='v_add_f32'):
    a.i('v_permlane32_swap_b32 v%d, v%d' % (va, vb))
    a.i('%s v%d, v%d, v%d' % (op, va, va, vb))
    a.i('v_mov_b32 v%d, v%d' % (vt, va))
    a.i('v_permlane16_swap_b32 v%d, v%d' % (va, vt))
    a.i('%s v%d, v%d, v%d' % (op, va, va, vt))
    row_allreduce(a, va, op)


def reduce1(a, va, vt, op='v_add_f32'):
    a.i('v_mov_b32 v%d, v%d' % (vt, va))
    reduce2(a, va, vt, vt, op) if False else None
    a.i('v_permlane32_swap_b32 v%d, v%d' % (va, vt))
    a.i('%s v%d, v%d, v%d' % (op, va, va, vt))
    a.i('v_mov_b32 v%d, v%d' % (vt, va))
    a.i('v_permlane16_swap_b32 v%d, v%d' % (va, vt))
    a.i('%s v%d, v%d, v%d' % (op, va, va, vt))
    row_allreduce(a, va, op)


def exp_acc(a, vs, t0, t1, s_hi, s_lo):
    for v, x, y in zip(vs, t0, t1):
        a.i('v_mul_f32 v%d, s%d, v%d' % (x, s_hi, v))
    for v, x, y in zip(vs, t0, t1):
        a.i('v_rndne_f32 v%d, v%d' % (x, x))
    for v, x, y in zip(vs, t0, t1):
        a.i('v_fma_f32 v%d, v%d, s%d, -v%d' % (y, v, s_hi, x))
    for v, x, y in zip(vs, t0, t1):
        a.i('v_fma_f32 v%d, v%d, s%d, v%d' % (y, v, s_lo, y))
    for v, x, y in zip(vs, t0, t1):
        a.i('v_exp_f32 v%d, v%d' % (y, y))
    for v, x, y in zip(vs, t0, t1):
        a.i('v_cvt_i32_f32 v%d, v%d' % (x, x))
    for v, x, y in zip(vs, t0, t1):
        a.i('v_ldexp_f32 v%d, v%d, v%d' % (v, y, x))


K1_LN_LDS = 18432
K1_KG_ROW = 528
K1_KG_LDS = 53 * K1_KG_ROW
K1_LDS = K1_LN_LDS + 4 * K1_KG_LDS


def gen_k1(a):
    S_X, S_WR, S_WS, S_LA, S_AI, S_CR, S_CI, S_DT = 48, 52, 56, 60, 64, 68, 72, 76
    a.label('k1_kernel')
    a.i('s_cmp_ge_u32 s2, 256')
    a.i('s_cbranch_scc1 k1_end')
    load_ptrs(a)
    a.i('v_lshrrev_b32 v2, 6, v0')
    a.i('v_and_b32 v1, 63, v0')
    a.i('v_readfirstlane_b32 s3, v2')
    a.i('s_waitcnt lgkmcnt(0)')
    srd(a, S_X, P_X, 0x400000)
    srd(a, S_WR, P_WR, 2048)
    srd(a, S_WS, P_WS, WS_SIZE)
    srd(a, S_LA, P_LA, 0x40000)
    srd(a, S_AI, P_AI, 0x40000)
    srd(a, S_CR, P_CR, 0x40000)
    srd(a, S_CI, P_CI, 0x40000)
    srd(a, S_DT, P_DT, 2048)
    a.i('s_cmp_ge_u32 s3, 4')
    a.flush()
    a.i('s_cbranch_scc1 k1_kgen')

    A, B, W = 8, 16, 24
    a.i('v_lshlrev_b32 v2, 4, v1')
    a.i('s_lshl_b32 s4, s2, 3')
    a.i('s_lshl_b32 s5, s3, 1')
    a.i('s_add_u32 s4, s4, s5')
    a.i('s_lshl_b32 s5, s4, 11')
    a.i('s_add_u32 s6, s5, 2048')
    a.i('buffer_load_dwordx4 v[8:11], v2, s[%d:%d], s5 offen nt' % (S_X, S_X + 3))
    a.i('buffer_load_dwordx4 v[12:15], v2, s[%d:%d], s5 offen offset:1024 nt' % (S_X, S_X + 3))
    a.i('buffer_load_dwordx4 v[16:19], v2, s[%d:%d], s6 offen nt' % (S_X, S_X + 3))
    a.i('buffer_load_dwordx4 v[20:23], v2, s[%d:%d], s6 offen offset:1024 nt' % (S_X, S_X + 3))
    a.i('buffer_load_dwordx4 v[24:27], v2, s[%d:%d], 0 offen' % (S_WR, S_WR + 3))
    a.i('buffer_load_dwordx4 v[28:31], v2, s[%d:%d], 0 offen offset:1024' % (S_WR, S_WR + 3))
    a.i('v_mul_u32_u24 v3, 144, v1')
    a.i('s_lshl_b32 s7, s3, 2')
    a.i('v_add_u32 v3, s7, v3')
    a.i('v_add_u32 v4, 9216, v3')
    a.i('v_lshrrev_b32 v5, 3, v0')
    a.i('v_add_u32 v5, v5, v0')
    a.i('v_lshlrev_b32 v5, 4, v5')
    a.i('v_lshrrev_b32 v6, 2, v0')
    a.i('v_lshlrev_b32 v6, 14, v6')
    a.i('v_and_b32 v7, 3, v0')
    a.i('v_lshl_add_u32 v6, v7, 4, v6')
    a.i('s_mov_b32 s8, 0x05040100')
    a.i('s_mov_b32 s9, 0x07060302')
    a.i('v_mov_b32 v32, 0x3f80')
    a.i('v_mov_b32 v33, 0x3f800000')
    a.i('v_mov_b32 v34, 0x3f803f80')
    a.i('s_lshl_b32 s10, s2, 6')
    a.i('s_add_u32 s11, s10, 0x100000')
    a.i('s_add_u32 s12, s10, 0x200000')
    a.i('s_add_u32 s13, s10, 0x300000')
    a.i('s_waitcnt vmcnt(2)')
    for i in range(8):
        t = 40 + 2 * i
        a.i('v_perm_b32 v%d, v%d, v%d, s8' % (t, B + i, A + i))
        a.i('v_perm_b32 v%d, v%d, v%d, s9' % (t + 1, B + i, A + i))
        a.i('ds_write2_b32 v%d, v%d, v%d offset0:%d offset1:%d' % (3 if i < 4 else 4, t, t + 1, 8 * (i % 4), 8 * (i % 4) + 4))
    a.i('v_dot2_f32_bf16 v36, v%d, v34, 0' % A)
    a.i('v_dot2_f32_bf16 v37, v%d, v34, 0' % B)
    for i in range(1, 8):
        a.i('v_dot2_f32_bf16 v36, v%d, v34, v36' % (A + i))
        a.i('v_dot2_f32_bf16 v37, v%d, v34, v37' % (B + i))
    a.i('s_waitcnt lgkmcnt(0)')
    a.i('s_barrier')
    for q in range(4):
        a.i('ds_read_b128 v[%d:%d], v5 offset:%d' % (40 + 4 * q, 43 + 4 * q, q * 4608))
    reduce2(a, 36, 37, 38)
    a.i('v_mul_f32 v36, %s, v36' % fbits(1.0 / 1024))
    a.i('v_sub_f32 v37, 0, v36')
    a.i('v_cvt_pk_bf16_f32 v38, v36, v36')
    a.i('v_readlane_b32 s14, v37, 0')
    a.i('v_readlane_b32 s15, v37, 32')
    a.i('v_lshlrev_b32 v38, 16, v38')
    a.i('v_sub_f32 v39, 0, v38')
    for q in range(4):
        a.i('s_waitcnt lgkmcnt(%d)' % (3 - q))
        a.i('buffer_store_dwordx4 v[%d:%d], v6, s[%d:%d], s%d offen' % (40 + 4 * q, 43 + 4 * q, S_WS, S_WS + 3, 10 + q))
    for i in range(8):
        a.i('v_dot2_f32_bf16 v%d, v%d, v32, s14' % (64 + 2 * i, A + i))
        a.i('v_dot2_f32_bf16 v%d, v%d, v33, s14' % (65 + 2 * i, A + i))
    for i in range(8):
        a.i('v_dot2_f32_bf16 v%d, v%d, v32, s15' % (80 + 2 * i, B + i))
        a.i('v_dot2_f32_bf16 v%d, v%d, v33, s15' % (81 + 2 * i, B + i))
    a.i('v_readlane_b32 s14, v39, 0')
    a.i('v_readlane_b32 s15, v39, 32')
    a.i('v_mul_f32 v60, v64, v64')
    a.i('v_mul_f32 v61, v80, v80')
    a.i('v_mul_f32 v62, v65, v65')
    a.i('v_mul_f32 v63, v81, v81')
    for i in range(2, 16, 2):
        a.i('v_fmac_f32 v60, v%d, v%d' % (64 + i, 64 + i))
        a.i('v_fmac_f32 v61, v%d, v%d' % (80 + i, 80 + i))
        a.i('v_fmac_f32 v62, v%d, v%d' % (65 + i, 65 + i))
        a.i('v_fmac_f32 v63, v%d, v%d' % (81 + i, 81 + i))
    a.i('v_add_f32 v60, v60, v62')
    a.i('v_add_f32 v61, v61, v63')
    for i in range(8):
        a.i('v_dot2_f32_bf16 v%d, v%d, v32, s14' % (64 + 2 * i, A + i))
        a.i('v_dot2_f32_bf16 v%d, v%d, v33, s14' % (65 + 2 * i, A + i))
    for i in range(8):
        a.i('v_dot2_f32_bf16 v%d, v%d, v32, s15' % (80 + 2 * i, B + i))
        a.i('v_dot2_f32_bf16 v%d, v%d, v33, s15' % (81 + 2 * i, B + i))
    reduce2(a, 60, 61, 62)
    a.i('v_mul_f32 v60, %s, v60' % fbits(1.0 / 1024))
    a.i('v_cvt_pk_bf16_f32 v60, v60, v60')
    a.i('v_lshlrev_b32 v60, 16, v60')
    a.i('v_add_f32 v60, %s, v60' % fbits(1e-5))
    a.i('v_cvt_pk_bf16_f32 v60, v60, v60')
    a.i('v_lshlrev_b32 v60, 16, v60')
    a.i('v_sqrt_f32 v60, v60')
    a.i('v_cvt_pk_bf16_f32 v60, v60, v60')
    a.i('v_lshlrev_b32 v60, 16, v60')
    a.i('v_rcp_f32 v39, v60')
    for i in range(16):
        a.i('v_cvt_pk_bf16_f32 v%d, v%d, v%d' % (96 + i, 64 + 2 * i, 65 + 2 * i))
    a.i('v_readlane_b32 s14, v39, 0')
    a.i('v_readlane_b32 s15, v39, 32')
    for i in range(16):
        a.i('v_lshlrev_b32 v%d, 16, v%d' % (64 + 2 * i, 96 + i))
        a.i('v_and_b32 v%d, 0xffff0000, v%d' % (65 + 2 * i, 96 + i))
    for i in range(32):
        a.i('v_mul_f32 v%d, s%d, v%d' % (64 + i, 14 if i < 16 else 15, 64 + i))
    for i in range(16):
        a.i('v_cvt_pk_bf16_f32 v%d, v%d, v%d' % (96 + i, 64 + 2 * i, 65 + 2 * i))
    a.i('s_waitcnt vmcnt(4)')
    a.i('v_dot2_f32_bf16 v60, v96, v%d, 0' % W)
    a.i('v_dot2_f32_bf16 v61, v104, v%d, 0' % W)
    for i in range(1, 8):
        a.i('v_dot2_f32_bf16 v60, v%d, v%d, v60' % (96 + i, W + i))
        a.i('v_dot2_f32_bf16 v61, v%d, v%d, v61' % (104 + i, W + i))
    reduce2(a, 60, 61, 62)
    a.i('v_cvt_pk_bf16_f32 v60, v60, v60')
    a.i('v_and_b32 v60, 0xffff0000, v60')
    a.i('v_ashrrev_i32 v61, 31, v60')
    a.i('v_or_b32 v61, 0x80000000, v61')
    a.i('v_xor_b32 v60, v60, v61')
    a.i('v_and_b32 v60, 0xffff0000, v60')
    a.i('v_lshrrev_b32 v62, 5, v1')
    a.i('s_sub_u32 s14, 2047, s4')
    a.i('v_sub_u32 v61, s14, v62')
    a.i('v_or_b32 v60, v60, v61')
    a.i('v_readlane_b32 s14, v60, 0')
    a.i('v_readlane_b32 s15, v60, 32')
    a.i('v_lshlrev_b32 v62, 3, v62')
    a.i('s_lshl_b32 s5, s4, 3')
    a.i('s_add_u32 s5, s5, 0x%x' % WS_STATS)
    a.i('s_max_u32 s14, s14, s15')
    a.i('s_lshl_b32 s6, s4, 1')
    a.i('s_add_u32 s6, s6, 0x%x' % WS_KEYS)
    a.i('v_mov_b32 v60, s14')
    a.i('s_mov_b32 exec_lo, 1')
    a.i('s_mov_b32 exec_hi, 1')
    a.i('buffer_store_dwordx2 v[38:39], v62, s[%d:%d], s5 offen' % (S_WS, S_WS + 3))
    a.i('s_mov_b32 exec_hi, 0')
    a.i('buffer_store_dword v60, v62, s[%d:%d], s6 offen' % (S_WS, S_WS + 3))
    a.i('s_endpgm')

    a.label('k1_kgen')
    a.flush()
    a.i('s_sub_u32 s3, s3, 4')
    a.i('s_lshl_b32 s4, s2, 2')
    a.i('s_add_u32 s4, s4, s3')
    a.i('s_lshl_b32 s5, s4, 8')
    a.i('s_lshl_b32 s6, s4, 1')
    a.i('v_lshlrev_b32 v2, 2, v1')
    a.i('v_mov_b32 v3, 0')
    a.i('buffer_load_ushort v12, v3, s[%d:%d], s6 offen' % (S_DT, S_DT + 3))
    a.i('buffer_load_dword v8, v2, s[%d:%d], s5 offen nt' % (S_LA, S_LA + 3))
    a.i('buffer_load_dword v9, v2, s[%d:%d], s5 offen nt' % (S_AI, S_AI + 3))
    a.i('buffer_load_dword v10, v2, s[%d:%d], s5 offen nt' % (S_CR, S_CR + 3))
    a.i('buffer_load_dword v11, v2, s[%d:%d], s5 offen nt' % (S_CI, S_CI + 3))
    a.i('s_mov_b32 s8, %s' % fbits(L2E_HI))
    a.i('s_mov_b32 s9, %s' % fbits(L2E_LO))
    a.i('s_mov_b32 s10, %s' % fbits(I2PI_HI))
    a.i('s_mov_b32 s11, %s' % fbits(I2PI_LO))
    a.i('s_mul_i32 s7, s3, %d' % K1_KG_LDS)
    a.i('s_add_u32 s7, s7, %d' % K1_LN_LDS)
    a.i('v_lshlrev_b32 v4, 3, v1')
    a.i('v_add_u32 v4, s7, v4')
    a.i('v_and_b32 v5, 31, v1')
    a.i('v_lshrrev_b32 v6, 5, v1')
    a.i('v_min_u32 v7, 20, v5')
    a.i('v_mul_u32_u24 v7, %d, v7' % K1_KG_ROW)
    a.i('v_lshl_add_u32 v7, v6, 4, v7')
    a.i('v_add_u32 v7, s7, v7')
    a.i('v_mul_u32_u24 v13, %d, v5' % K1_KG_ROW)
    a.i('v_lshl_add_u32 v13, v6, 4, v13')
    a.i('s_add_u32 s12, s7, %d' % (21 * K1_KG_ROW))
    a.i('v_add_u32 v13, s12, v13')
    a.i('s_waitcnt vmcnt(0)')
    a.i('s_barrier')
    a.i('v_lshlrev_b32 v12, 16, v12')
    a.i('v_lshlrev_b32 v14, 16, v8')
    a.i('v_and_b32 v15, 0xffff0000, v8')
    exp_acc(a, [12, 14, 15], [22, 23, 24], [25, 26, 27], 8, 9)
    a.i('v_cvt_pk_bf16_f32 v12, v12, v12')
    a.i('v_cvt_pk_bf16_f32 v14, v14, v15')
    a.i('v_lshlrev_b32 v12, 16, v12')
    a.i('v_and_b32 v15, 0xffff0000, v14')
    a.i('v_lshlrev_b32 v14, 16, v14')
    a.i('v_lshlrev_b32 v16, 16, v9')
    a.i('v_and_b32 v17, 0xffff0000, v9')
    a.i('v_lshlrev_b32 v18, 16, v10')
    a.i('v_and_b32 v19, 0xffff0000, v10')
    a.i('v_lshlrev_b32 v20, 16, v11')
    a.i('v_and_b32 v21, 0xffff0000, v11')
    for r in range(14, 22):
        a.i('v_mul_f32 v%d, v12, v%d' % (r, r))
    a.i('v_mul_f32 v14, %s, v14' % fbits(-L2E_HI))
    a.i('v_mul_f32 v15, %s, v15' % fbits(-L2E_HI))
    for j in range(2):
        a.i('v_mul_f32 v%d, s10, v%d' % (22 + j, 16 + j))
    for j in range(2):
        a.i('v_fma_f32 v%d, v%d, s10, -v%d' % (24 + j, 16 + j, 22 + j))
    for j in range(2):
        a.i('v_fma_f32 v%d, v%d, s11, v%d' % (24 + j, 16 + j, 24 + j))
    for j in range(2):
        a.i('v_rndne_f32 v%d, v%d' % (26 + j, 22 + j))
    for j in range(2):
        a.i('v_sub_f32 v%d, v%d, v%d' % (22 + j, 22 + j, 26 + j))
    for j in range(2):
        a.i('v_add_f32 v%d, v%d, v%d' % (16 + j, 22 + j, 24 + j))
    a.i('v_add_f32 v28, abs(v18), abs(v19)')
    a.i('v_add_f32 v29, abs(v20), abs(v21)')
    a.i('v_add_f32 v28, v28, v29')
    reduce1(a, 28, 29)
    a.i('v_lshrrev_b32 v28, 23, v28')
    a.i('v_add_u32 v28, 1, v28')
    a.i('v_max_u32 v28, 20, v28')
    a.i('v_min_u32 v28, 255, v28')
    a.i('v_sub_u32 v29, 268, v28')
    a.i('v_lshlrev_b32 v29, 23, v29')
    a.i('v_subrev_u32 v30, 13, v28')
    a.i('v_lshlrev_b32 v30, 23, v30')
    EB = {1: 40, 8: 44, 64: 48, 256: 52}
    for p, e in EB.items():
        pf = fbits(float(p))
        for j in range(2):
            a.i('v_mul_f32 v%d, %s, v%d' % (22 + j, pf, 14 + j))
            a.i('v_mul_f32 v%d, %s, v%d' % (24 + j, pf, 16 + j))
        for j in range(2):
            a.i('v_exp_f32 v%d, v%d' % (22 + j, 22 + j))
            a.i('v_fract_f32 v%d, v%d' % (24 + j, 24 + j))
        for j in range(2):
            a.i('v_cos_f32 v%d, v%d' % (e + j, 24 + j))
            a.i('v_sin_f32 v%d, v%d' % (e + 2 + j, 24 + j))
        a.i('v_pk_mul_f32 v[%d:%d], v[%d:%d], v[22:23]' % (e, e + 1, e, e + 1))
        a.i('v_pk_mul_f32 v[%d:%d], v[%d:%d], v[22:23]' % (e + 2, e + 3, e + 2, e + 3))
    E1, E8, E64, E256, E2, E4 = 40, 44, 48, 52, 56, 60
    tmpc = [0]

    def cmul(d, x, y):
        t = 80 + 4 * (tmpc[0] % 4)
        tmpc[0] += 1
        a.i('v_pk_mul_f32 v[%d:%d], v[%d:%d], v[%d:%d]' % (t, t + 1, x, x + 1, y, y + 1))
        a.i('v_pk_mul_f32 v[%d:%d], v[%d:%d], v[%d:%d]' % (t + 2, t + 3, x, x + 1, y + 2, y + 3))
        a.i('v_pk_fma_f32 v[%d:%d], v[%d:%d], v[%d:%d], v[%d:%d] neg_lo:[1,0,0] neg_hi:[1,0,0]' % (d, d + 1, x + 2, x + 3, y + 2, y + 3, t, t + 1))
        a.i('v_pk_fma_f32 v[%d:%d], v[%d:%d], v[%d:%d], v[%d:%d]' % (d + 2, d + 3, x + 2, x + 3, y, y + 1, t + 2, t + 3))
    outc = [0]

    def emit(x, row, neg):
        o = 96 + 2 * (outc[0] % 8)
        outc[0] += 1
        n = '-' if neg else ''
        a.i('v_cvt_pk_f16_f32 v%d, v%d, %sv%d' % (o, x, n, x + 2))
        a.i('v_cvt_pk_f16_f32 v%d, v%d, %sv%d' % (o + 1, x + 1, n, x + 3))
        a.i('ds_write_b64 v4, v[%d:%d] offset:%d' % (o, o + 1, row * K1_KG_ROW))
    F = [64, 68, 72, 76]
    a.i('v_mov_b32 v64, 1.0')
    a.i('v_mov_b32 v65, 1.0')
    a.i('v_mov_b32 v66, 0')
    a.i('v_mov_b32 v67, 0')
    for k in range(4):
        a.i('v_mov_b32 v%d, v%d' % (68 + k, E64 + k))
    cmul(72, 68, E64)
    cmul(E2, E1, E1)
    cmul(76, 72, E64)
    cmul(E4, E2, E2)
    for q in range(4):
        emit(F[q], 21 + 8 * q, False)
    for i in range(1, 8):
        for q in range(4):
            cmul(F[q], F[q], E8)
        for q in range(4):
            emit(F[q], 21 + 8 * q + i, False)
    G, H, T1, T2 = 64, 68, 72, 76
    a.i('v_mul_f32 v64, v29, v18')
    a.i('v_mul_f32 v65, v29, v19')
    a.i('v_mul_f32 v66, v29, v20')
    a.i('v_mul_f32 v67, v29, v21')
    emit(G, 0, True)
    cmul(H, G, E1)
    cmul(G, G, E256)
    emit(H, 1, True)
    emit(G, 8, True)
    cmul(H, H, E1)
    cmul(T1, G, E2)
    cmul(G, G, E256)
    emit(H, 2, True)
    emit(T1, 9, True)
    emit(G, 12, True)
    cmul(H, H, E1)
    cmul(T1, T1, E2)
    cmul(T2, G, E4)
    cmul(G, G, E256)
    emit(H, 3, True)
    emit(T1, 10, True)
    emit(T2, 13, True)
    emit(G, 14, True)
    cmul(H, H, E1)
    cmul(T1, T1, E2)
    cmul(T2, G, E4)
    cmul(G, G, E256)
    emit(H, 4, True)
    emit(T1, 11, True)
    emit(T2, 15, True)
    emit(G, 16, True)
    for k in range(3):
        cmul(H, H, E1)
        cmul(G, G, E256)
        emit(H, 5 + k, True)
        emit(G, 17 + k, True)
    cmul(G, G, E256)
    emit(G, 20, True)
    ACC = 224
    for r in range(16):
        a.i('v_mov_b32 v%d, 0' % (ACC + r))
    a.i('s_waitcnt lgkmcnt(0)')
    FR = 96
    for half in range(2):
        for s in range(8):
            ss = half * 8 + s
            a.i('ds_read_b128 v[%d:%d], v7 offset:%d' % (FR + 8 * ss, FR + 8 * ss + 3, 32 * ss))
            a.i('ds_read_b128 v[%d:%d], v13 offset:%d' % (FR + 8 * ss + 4, FR + 8 * ss + 7, 32 * ss))
        if half == 1:
            for s in range(8):
                a.i('s_waitcnt lgkmcnt(15)' if s == 0 else 's_nop 0')
                a.i('v_mfma_f32_32x32x16_f16 v[%d:%d], v[%d:%d], v[%d:%d], v[%d:%d]' % (ACC, ACC + 15, FR + 8 * s, FR + 8 * s + 3, FR + 8 * s + 4, FR + 8 * s + 7, ACC, ACC + 15))
    for s in range(8, 16):
        a.i('s_waitcnt lgkmcnt(%d)' % (2 * (15 - s)))
        a.i('v_mfma_f32_32x32x16_f16 v[%d:%d], v[%d:%d], v[%d:%d], v[%d:%d]' % (ACC, ACC + 15, FR + 8 * s, FR + 8 * s + 3, FR + 8 * s + 4, FR + 8 * s + 7, ACC, ACC + 15))
    a.i('s_mul_i32 s5, s4, %d' % KT_STRIDE)
    a.i('s_add_u32 s5, s5, 0x%x' % WS_KT)
    a.i('v_lshlrev_b32 v8, 4, v5')
    a.i('v_lshl_add_u32 v9, v6, 3, v8')
    a.i('v_sub_u32 v9, 1080, v9')
    a.i('v_sub_u32 v10, 560, v8')
    a.i('v_sub_u32 v11, 48, v8')
    a.i('v_lshlrev_b32 v14, 2, v5')
    a.i('v_lshlrev_b32 v15, 1, v5')
    a.i('v_mov_b32 v16, 0')
    for r in range(4):
        a.i('v_mov_b32 v%d, 0' % (20 + r))
    D = ACC
    a.i('v_mov_b32 v17, 0')
    a.i('v_mov_b32 v17, v%d wave_shl:1' % (D + 4))
    a.i('v_cvt_pk_f16_f32 v40, v%d, v%d' % (D + 3, D + 2))
    a.i('v_cvt_pk_f16_f32 v41, v%d, v%d' % (D + 1, D + 0))
    a.i('buffer_store_dwordx2 v[40:41], v9, s[%d:%d], s5 offen' % (S_WS, S_WS + 3))
    a.i('v_cvt_pk_f16_f32 v44, v17, v%d' % (D + 7))
    a.i('v_cvt_pk_f16_f32 v45, v%d, v%d' % (D + 6, D + 6))
    a.i('v_cvt_pk_f16_f32 v46, v%d, v%d' % (D + 6, D + 5))
    a.i('v_cvt_pk_f16_f32 v47, v%d, v%d' % (D + 4, D + 4))
    a.i('v_cvt_pk_f16_f32 v48, v17, v17')
    a.i('v_cvt_pk_f16_f32 v49, v%d, v%d' % (D + 5, D + 5))
    a.i('v_cvt_pk_f16_f32 v50, v%d, v%d' % (D + 5, D + 4))
    a.i('v_mov_b32 v51, v47')
    a.i('v_cvt_pk_f16_f32 v52, v%d, v%d' % (D + 4, D + 5))
    a.i('v_cvt_pk_f16_f32 v53, v%d, v%d' % (D + 6, D + 7))
    a.i('v_cvt_pk_f16_f32 v54, v%d, v%d' % (D + 8, D + 9))
    a.i('v_cvt_pk_f16_f32 v55, v%d, v%d' % (D + 10, D + 11))
    a.i('s_mov_b32 exec_hi, 0')
    a.i('buffer_store_dwordx4 v[44:47], v10, s[%d:%d], s5 offen' % (S_WS, S_WS + 3))
    a.i('buffer_store_short v54, v15, s[%d:%d], s5 offen offset:%d' % (S_WS, S_WS + 3, 1360))
    a.i('buffer_store_short_d16_hi v54, v15, s[%d:%d], s5 offen offset:%d' % (S_WS, S_WS + 3, 1360 + 64))
    a.i('buffer_store_short v55, v15, s[%d:%d], s5 offen offset:%d' % (S_WS, S_WS + 3, 1360 + 128))
    a.i('buffer_store_short_d16_hi v55, v15, s[%d:%d], s5 offen offset:%d' % (S_WS, S_WS + 3, 1360 + 192))
    a.i('s_mov_b32 exec_lo, 1')
    a.i('buffer_store_dwordx4 v[20:23], v16, s[%d:%d], s5 offen offset:1088' % (S_WS, S_WS + 3))
    a.i('buffer_store_dword v30, v16, s[%d:%d], s5 offen offset:%d' % (S_WS, S_WS + 3, KT_INV))
    a.i('s_mov_b32 exec_lo, 0')
    a.i('s_mov_b32 exec_hi, -1')
    a.i('buffer_store_dword v52, v14, s[%d:%d], s5 offen offset:%d' % (S_WS, S_WS + 3, KT_TC))
    a.i('buffer_store_dword v53, v14, s[%d:%d], s5 offen offset:%d' % (S_WS, S_WS + 3, KT_TC + 128))
    a.i('s_mov_b32 exec_hi, 15')
    a.i('buffer_store_dwordx4 v[48:51], v11, s[%d:%d], s5 offen' % (S_WS, S_WS + 3))
    a.i('s_mov_b32 exec_hi, 1')
    a.i('buffer_store_short v54, v16, s[%d:%d], s5 offen offset:%d' % (S_WS, S_WS + 3, KT_TC + 512))
    a.label('k1_end')
    a.i('s_endpgm')


CH_XN = 0
CH_KN = 4608
KN_COPY = 1344
CH_KQ = CH_KN + 8 * KN_COPY
CH_Y = CH_KQ + 2048
CH_X = CH_Y + 4096
CH_STRIDE = CH_X + 4096
AUX_GU = 4 * CH_STRIDE
AUX_DN = AUX_GU + 4096
AUX_CNT = AUX_DN + 16384
K2_LDS = AUX_CNT + 64


class LdsQ:
    def __init__(self, a):
        self.a = a
        self.n = 0
        self.done = 0

    def issue(self, text):
        self.a.i(text)
        self.n += 1
        return self.n

    def wait(self, seq):
        if seq <= self.done:
            return
        out = self.n - seq
        if out > 15:
            out = 15
        self.a.i('s_waitcnt lgkmcnt(%d)' % out)
        self.done = self.n - out


def argmax_keys(a, K, t):
    a.i('v_max3_u32 v%d, v%d, v%d, v%d' % (K, K, K + 1, K + 2))
    a.i('v_max3_u32 v%d, v%d, v%d, v%d' % (K + 3, K + 3, K + 4, K + 5))
    a.i('v_max3_u32 v%d, v%d, v%d, v%d' % (K + 6, K + 6, K + 7, K + 8))
    a.i('v_max3_u32 v%d, v%d, v%d, v%d' % (K + 9, K + 9, K + 10, K + 11))
    a.i('v_max3_u32 v%d, v%d, v%d, v%d' % (K + 12, K + 12, K + 13, K + 14))
    a.i('v_max3_u32 v%d, v%d, v%d, v%d' % (K, K, K + 3, K + 6))
    a.i('v_max3_u32 v%d, v%d, v%d, v%d' % (K + 9, K + 9, K + 12, K + 15))
    a.i('v_max_u32 v%d, v%d, v%d' % (K, K, K + 9))
    reduce1(a, K, t, 'v_max_u32')


def lds_signal(a, vaddr, vone, off):
    a.i('s_waitcnt lgkmcnt(0)')
    a.i('s_mov_b64 exec, 1')
    a.i('ds_add_u32 v%d, v%d offset:%d' % (vaddr, vone, off))
    a.i('s_mov_b64 exec, -1')


def lds_poll(a, vaddr, vt, off, target, lab, stmp):
    a.flush()
    a.label(lab)
    a.i('ds_read_b32 v%d, v%d offset:%d' % (vt, vaddr, off))
    a.i('s_waitcnt lgkmcnt(0)')
    a.i('v_readfirstlane_b32 s%d, v%d' % (stmp, vt))
    a.i('s_cmp_ge_u32 s%d, %d' % (stmp, target))
    a.i('s_cbranch_scc1 %s_done' % lab)
    a.i('s_sleep 1')
    a.i('s_branch %s' % lab)
    a.label(lab + '_done')
    a.flush()


def gen_k2(a):
    S_X, S_WS, S_DK, S_WG, S_WU, S_WD, S_OUT = 48, 52, 56, 60, 64, 68, 72
    a.label('k2_kernel')
    a.i('s_cmp_ge_u32 s2, 256')
    a.i('s_cbranch_scc1 k2_end')
    load_ptrs(a)
    a.i('v_lshrrev_b32 v2, 6, v0')
    a.i('v_and_b32 v1, 63, v0')
    a.i('v_readfirstlane_b32 s3, v2')
    a.i('s_and_b32 s4, s2, 7')
    a.i('s_lshr_b32 s5, s2, 3')
    a.i('s_lshl_b32 s6, s4, 5')
    a.i('s_add_u32 s6, s6, s5')
    a.i('s_waitcnt lgkmcnt(0)')
    srd(a, S_X, P_X, 0x400000)
    srd(a, S_WS, P_WS, WS_SIZE)
    srd(a, S_DK, P_DK, 2048)
    srd(a, S_WG, P_WG, 1024 * 3584 * 2)
    srd(a, S_WU, P_WU, 1024 * 3584 * 2)
    srd(a, S_WD, P_WD, 1024 * 3584 * 2)
    srd(a, S_OUT, P_OUT, 0x400000)
    a.i('s_cmp_ge_u32 s3, 4')
    a.flush()
    a.i('s_cbranch_scc1 k2_aux')

    AB, BB, ACC = 32, 160, 224
    a.i('s_lshl_b32 s7, s6, 2')
    a.i('s_add_u32 s7, s7, s3')
    a.i('s_mul_i32 s8, s7, %d' % KT_STRIDE)
    a.i('s_add_u32 s8, s8, 0x%x' % WS_KT)
    a.i('s_mul_i32 s9, s3, %d' % CH_STRIDE)
    a.i('v_lshlrev_b32 v2, 4, v1')
    a.i('v_sub_u32 v3, 1072, v2')
    a.i('v_and_b32 v4, 3, v1')
    a.i('v_lshlrev_b32 v4, 4, v4')
    a.i('v_sub_u32 v4, 48, v4')
    a.i('v_lshlrev_b32 v5, 3, v1')
    a.i('v_mov_b32 v6, 0')
    R1, R2, TC, KEY = 64, 72, 80, 96
    a.i('buffer_load_dwordx4 v[%d:%d], v3, s[%d:%d], s8 offen' % (R1, R1 + 3, S_WS, S_WS + 3))
    a.i('buffer_load_dwordx4 v[%d:%d], v3, s[%d:%d], s8 offen offset:16' % (R1 + 4, R1 + 7, S_WS, S_WS + 3))
    a.i('buffer_load_dwordx4 v[%d:%d], v4, s[%d:%d], s8 offen' % (R2, R2 + 3, S_WS, S_WS + 3))
    a.i('buffer_load_dwordx4 v[%d:%d], v4, s[%d:%d], s8 offen offset:16' % (R2 + 4, R2 + 7, S_WS, S_WS + 3))
    a.i('buffer_load_dwordx4 v[%d:%d], v5, s[%d:%d], s8 offen offset:%d' % (TC, TC + 3, S_WS, S_WS + 3, KT_TC))
    a.i('buffer_load_dword v29, v6, s[%d:%d], s8 offen offset:%d' % (S_WS, S_WS + 3, KT_INV))
    a.i('s_mov_b32 s10, 0x%x' % WS_KEYS)
    for q in range(4):
        a.i('buffer_load_dwordx4 v[%d:%d], v2, s[%d:%d], s10 offen offset:%d' % (KEY + 4 * q, KEY + 4 * q + 3, S_WS, S_WS + 3, 1024 * q))
    a.i('s_lshl_b32 s11, s6, 3')
    a.i('buffer_load_dwordx2 v[30:31], v6, s[%d:%d], s11 offen' % (S_DK, S_DK + 3))
    a.i('v_and_b32 v20, 15, v1')
    a.i('v_lshrrev_b32 v21, 4, v1')
    for r in range(4):
        a.i('v_mov_b32 v%d, 0' % (24 + r))
    a.i('v_add_u32 v22, s9, v2')
    a.i('v_mul_u32_u24 v23, %d, v1' % KN_COPY)
    a.i('v_add_u32 v23, s9, v23')
    a.i('s_mov_b32 exec_hi, 0')
    a.i('ds_write_b128 v22, v[24:27] offset:%d' % CH_XN)
    a.i('s_mov_b32 exec_lo, 0xff')
    a.i('ds_write_b128 v23, v[24:27] offset:%d' % CH_KN)
    a.i('s_mov_b64 exec, -1')
    a.i('v_and_b32 v2, 7, v20')
    a.i('v_mul_u32_u24 v2, %d, v2' % KN_COPY)
    a.i('v_lshrrev_b32 v3, 3, v20')
    a.i('v_sub_u32 v3, v3, v21')
    a.i('v_add_u32 v3, 3, v3')
    a.i('v_lshl_add_u32 v2, v3, 4, v2')
    a.i('s_add_u32 s12, s9, %d' % CH_KN)
    a.i('v_add_u32 v2, s12, v2')
    a.i('v_lshlrev_b32 v3, 5, v20')
    a.i('v_lshl_add_u32 v3, v21, 4, v3')
    a.i('s_add_u32 s12, s9, %d' % (CH_XN + 32))
    a.i('v_add_u32 v3, s12, v3')
    a.i('v_lshlrev_b32 v28, 5, v20')
    a.i('v_lshl_add_u32 v28, v21, 3, v28')
    a.i('s_add_u32 s12, s9, %d' % CH_Y)
    a.i('v_add_u32 v28, s12, v28')
    a.i('v_lshlrev_b32 v22, 3, v21')
    a.i('v_sub_u32 v22, v20, v22')
    a.i('v_mov_b32 v23, 514')
    a.i('v_mov_b32 v24, 0x01000100')
    a.i('s_add_u32 s12, s9, %d' % (CH_KQ - 8 * 0x4400))
    for (cp, vaddr, vsel) in ((17, 4, 8), (32, 5, 12), (33, 6, 16)):
        T = 112
        for e in range(8):
            a.i('v_add_u32 v%d, %d, v22' % (T + e, 16 + 32 * cp - e))
        for e in range(8):
            a.i('v_cvt_f32_u32 v%d, v%d' % (T + e, T + e))
        for q in range(4):
            a.i('v_cvt_pk_bf16_f32 v%d, v%d, v%d' % (T + 8 + q, T + 2 * q, T + 2 * q + 1))
        a.i('v_lshrrev_b32 v%d, 16, v%d' % (T + 12, T + 11))
        a.i('v_lshl_or_b32 v%d, v%d, 16, v%d' % (T + 13, T + 12, T + 12))
        for q in range(4):
            a.i('v_sub_u32 v%d, v%d, v%d' % (T + 8 + q, T + 8 + q, T + 13))
        for q in range(4):
            a.i('v_mad_u32_u24 v%d, v%d, v23, v24' % (vsel + q, T + 8 + q))
        a.i('v_lshlrev_b32 v%d, 3, v%d' % (vaddr, T + 12))
        a.i('v_add_u32 v%d, s12, v%d' % (vaddr, vaddr))
    a.i('v_lshlrev_b32 v22, 4, v1')
    a.i('s_add_u32 s12, s9, %d' % (CH_KN + 16))
    a.i('v_add_u32 v22, s12, v22')
    a.i('v_lshlrev_b32 v23, 5, v1')
    a.i('s_add_u32 s12, s9, %d' % CH_KQ)
    a.i('v_add_u32 v23, s12, v23')

    def build_kn(R, off):
        S, Rp, Sp = 112, 120, 128
        for i in range(7):
            a.i('v_alignbit_b32 v%d, v%d, v%d, 16' % (S + i, R + i + 1, R + i))
        for i in range(1, 7):
            a.i('v_mov_b32 v%d, v%d' % (Rp + i - 1, R + i))
        for i in range(1, 7):
            a.i('v_alignbit_b32 v%d, v%d, v%d, 16' % (Sp + i - 1, R + i + 1, R + i))
        for c, src in ((7, R), (5, Rp), (3, R + 2), (1, Rp + 2), (6, S), (4, Sp), (2, S + 2), (0, Sp + 2)):
            a.i('ds_write_b128 v22, v[%d:%d] offset:%d' % (src, src + 3, c * KN_COPY + off))
    a.i('s_waitcnt vmcnt(9)')
    build_kn(R1, 0)
    a.i('s_waitcnt vmcnt(7)')
    a.i('s_mov_b64 exec, 15')
    build_kn(R2, 1024)
    a.i('s_mov_b64 exec, -1')
    a.i('s_waitcnt vmcnt(6)')
    a.i('v_mov_b32 v112, v%d' % TC)
    a.i('v_mov_b32 v113, v%d' % (TC + 1))
    a.i('v_alignbit_b32 v114, v%d, v%d, 16' % (TC + 1, TC))
    a.i('v_alignbit_b32 v115, v%d, v%d, 16' % (TC + 2, TC + 1))
    a.i('v_mov_b32 v116, v%d' % (TC + 1))
    a.i('v_mov_b32 v117, v%d' % (TC + 2))
    a.i('v_mov_b32 v118, v115')
    a.i('v_alignbit_b32 v119, v%d, v%d, 16' % (TC + 3, TC + 2))
    a.i('ds_write_b128 v23, v[112:115]')
    a.i('ds_write_b128 v23, v[116:119] offset:16')
    a.i('s_waitcnt vmcnt(1)')
    argmax_keys(a, KEY, KEY + 16)
    a.i('v_readfirstlane_b32 s13, v%d' % KEY)
    a.i('s_and_b32 s13, s13, 0x7ff')
    a.i('s_sub_u32 s13, 2047, s13')

    mf = []
    bseq = []
    nb = 0
    for phase in range(2):
        for D in range(8 if phase == 0 else 4):
            buf = nb % 2
            bseq.append((D, buf, len(mf)))
            nb += 1
            for C in range(4):
                Cg = C + 4 * phase
                if Cg + D > 7:
                    continue
                for cc in range(8):
                    mf.append((Cg + D, 8 * Cg + cc, 8 * D - cc, buf, cc))
    nm = len(mf)
    assert nm == 288
    first_useA, last_useA, last_acc = {}, {}, {}
    for m, (I, cp, b, buf, cc) in enumerate(mf):
        first_useA.setdefault(cp, m)
        last_useA[cp] = m
        last_acc[I] = m
    brange = []
    for k, (D, buf, start) in enumerate(bseq):
        end = (bseq[k + 1][2] if k + 1 < len(bseq) else nm) - 1
        brange.append((D, buf, start, end))

    def aslot(cp):
        C, cc = cp // 8, cp % 8
        return (C if C < 4 else 7 - C) * 8 + cc

    def areg(cp):
        return AB + 4 * aslot(cp)

    def breg(buf, cc):
        return BB + 32 * buf + 4 * cc
    ready = {}
    qt = [0]

    def far_params(cp):
        if cp < 32:
            return 4, 8, 64 * (cp - 17), True
        if cp == 32:
            return 5, 12, 0, True
        return 6, 16, 32 * (cp - 33), False

    def far_read(cp):
        t = 20 + 2 * (qt[0] % 4)
        qt[0] += 1
        vaddr, vsel, off, two = far_params(cp)
        if two:
            sq = q.issue('ds_read_b64 v[%d:%d], v%d offset:%d' % (t, t + 1, vaddr, off))
        else:
            sq = q.issue('ds_read_b32 v%d, v%d offset:%d' % (t, vaddr, off))
        farst[cp] = (t, sq)

    def far_perm(cp, k):
        t, sq = farst[cp]
        vaddr, vsel, off, two = far_params(cp)
        q.wait(sq)
        a.i('v_perm_b32 v%d, v%d, v%d, v%d' % (areg(cp) + k, t + 1 if two else t, t, vsel + k))
        if k == 3:
            ready[('A', cp)] = 0
    farst = {}
    q = LdsQ(a)
    a.i('s_waitcnt lgkmcnt(0)')
    for cp in (17, 18, 19):
        far_read(cp)
    for cp in range(17):
        ready[('A', cp)] = q.issue('ds_read_b128 v[%d:%d], v2 offset:%d' % (areg(cp), areg(cp) + 3, 64 * cp))
    for cp in range(17, 32):
        if cp + 3 < 32:
            far_read(cp + 3)
        for k in range(4):
            far_perm(cp, k)
    for r in range(32):
        a.i('v_mov_b32 v%d, 0' % (ACC + r))
    a.i('s_waitcnt vmcnt(0) lgkmcnt(0)')
    q.done = q.n
    a.i('s_barrier')

    tasks = []
    items = []
    for cp in range(32, 64):
        victim = 8 * (7 - cp // 8) + cp % 8
        items.append((last_useA[victim] + 1, 1, 'A', cp))
    for k in range(len(brange)):
        e = brange[k - 2][3] + 1 if k >= 2 else -1
        items.append((e, 0, 'B', k))
    for I in range(8):
        items.append((last_acc[I] + 3, 2, 'Y', I))
    items.sort()
    a_order = [x[3] for x in items if x[2] == 'A']
    nread = [0]
    for e, _, kind, x in items:
        if kind == 'A':
            pos = a_order.index(x)
            while nread[0] < min(len(a_order), pos + 3):
                tasks.append((-1, (lambda cp=a_order[nread[0]]: far_read(cp))))
                nread[0] += 1
            for k in range(4):
                tasks.append((e, (lambda cp=x, k=k: far_perm(cp, k))))
        elif kind == 'B':
            D, buf, st_, en_ = brange[x]
            for cc in range(8):
                def f(k=x, D=D, buf=buf, cc=cc):
                    b = 8 * D - cc
                    ready[('B', k, cc)] = q.issue('ds_read_b128 v[%d:%d], v3 offset:%d' % (breg(buf, cc), breg(buf, cc) + 3, 64 * (b + 7)))
                tasks.append((e, f))
        else:
            r = ACC + 4 * x
            for k in range(4):
                tasks.append((e, (lambda r=r, k=k: a.i('v_mul_f32 v%d, v29, v%d' % (r + k, r + k)))))
            tasks.append((e, (lambda r=r: a.i('v_cvt_pk_bf16_f32 v%d, v%d, v%d' % (r, r, r + 1)))))
            tasks.append((e, (lambda r=r: a.i('v_cvt_pk_bf16_f32 v%d, v%d, v%d' % (r + 1, r + 2, r + 3)))))
            tasks.append((e, (lambda r=r, I=x: q.issue('ds_write_b64 v28, v[%d:%d] offset:%d' % (r, r + 1, 512 * I)))))
    ti = 0
    SLOTS = 2
    for m, (I, cp, b, buf, cc) in enumerate(mf):
        k = [kk for kk, br in enumerate(brange) if br[2] <= m <= br[3]][0]
        while ('A', cp) not in ready or ('B', k, cc) not in ready:
            assert tasks[ti][0] <= m, (tasks[ti][0], m)
            tasks[ti][1]()
            ti += 1
        q.wait(max(ready[('A', cp)], ready[('B', k, cc)]))
        a.i('v_mfma_f32_16x16x32_f16 v[%d:%d], v[%d:%d], v[%d:%d], v[%d:%d]' % (
            ACC + 4 * I, ACC + 4 * I + 3, areg(cp), areg(cp) + 3, breg(buf, cc), breg(buf, cc) + 3, ACC + 4 * I, ACC + 4 * I + 3))
        n = 0
        while n < (8 if m == 0 else SLOTS) and ti < len(tasks) and tasks[ti][0] <= m:
            tasks[ti][1]()
            ti += 1
            n += 1
    while ti < len(tasks):
        tasks[ti][1]()
        ti += 1
    a.i('v_mov_b32 v20, %d' % AUX_CNT)
    a.i('v_mov_b32 v21, 1')
    lds_signal(a, 20, 21, 0)
    a.i('v_lshlrev_b32 v2, 4, v0')
    a.i('v_lshlrev_b32 v3, 14, v0')
    a.i('v_add_u32 v4, 4096, v3')
    a.i('v_add_u32 v5, 8192, v3')
    a.i('v_add_u32 v6, 12288, v3')
    a.i('v_lshlrev_b32 v8, 16, v30')
    a.i('v_and_b32 v9, 0xffff0000, v30')
    a.i('v_lshlrev_b32 v10, 16, v31')
    a.i('v_and_b32 v11, 0xffff0000, v31')
    a.i('v_mov_b32 v12, 0x3f80')
    a.i('v_mov_b32 v13, 0x3f800000')
    XNR, XR, YR = 32, 48, 64
    a.i('v_add_u32 v7, %d, v2' % (2 * CH_STRIDE))
    for c in range(4):
        a.i('ds_read_b128 v[%d:%d], v%d offset:%d' % (XNR + 4 * c, XNR + 4 * c + 3, 2 if c < 2 else 7, (c % 2) * CH_STRIDE + CH_XN + 512))
    for c in range(4):
        a.i('ds_read_b128 v[%d:%d], v%d offset:%d' % (XR + 4 * c, XR + 4 * c + 3, 2 if c < 2 else 7, (c % 2) * CH_STRIDE + CH_X))
    XF, TA, XX, O = 96, 128, 160, 192
    a.i('s_waitcnt lgkmcnt(4)')
    for c in range(4):
        for qd in range(4):
            a.i('v_cvt_f32_f16 v%d, v%d' % (XF + 8 * c + 2 * qd, XNR + 4 * c + qd))
            a.i('v_cvt_f32_f16_sdwa v%d, v%d dst_sel:DWORD dst_unused:UNUSED_PAD src0_sel:WORD_1' % (XF + 8 * c + 2 * qd + 1, XNR + 4 * c + qd))
    for c in range(4):
        for e in range(8):
            a.i('v_mul_f32 v%d, v%d, v%d' % (TA + 8 * c + e, 8 + c, XF + 8 * c + e))
    for k in range(16):
        a.i('v_cvt_pk_bf16_f32 v%d, v%d, v%d' % (O + k, TA + 2 * k, TA + 2 * k + 1))
    for k in range(16):
        a.i('v_lshlrev_b32 v%d, 16, v%d' % (TA + 2 * k, O + k))
        a.i('v_and_b32 v%d, 0xffff0000, v%d' % (TA + 2 * k + 1, O + k))
    a.i('s_waitcnt lgkmcnt(0)')
    for k in range(16):
        a.i('v_lshlrev_b32 v%d, 16, v%d' % (XX + 2 * k, XR + k))
        a.i('v_and_b32 v%d, 0xffff0000, v%d' % (XX + 2 * k + 1, XR + k))
    lds_poll(a, 20, 22, 0, 4, 'k2_cpoll', 14)
    for c in range(4):
        a.i('ds_read_b128 v[%d:%d], v%d offset:%d' % (YR + 4 * c, YR + 4 * c + 3, 2 if c < 2 else 7, (c % 2) * CH_STRIDE + CH_Y))
    a.i('s_lshl_b32 s14, s13, 1')
    a.i('s_add_u32 s14, s14, %d' % CH_Y)
    a.i('v_and_b32 v22, 3, v1')
    a.i('v_mul_u32_u24 v23, %d, v22' % CH_STRIDE)
    a.i('v_add_u32 v23, s14, v23')
    a.i('ds_read_u16 v24, v23')
    a.i('v_lshlrev_b32 v22, 1, v22')
    a.i('s_add_u32 s15, s11, 0x%x' % WS_YR)
    a.i('s_waitcnt lgkmcnt(1)')
    for k in range(16):
        a.i('v_dot2_f32_bf16 v%d, v%d, v12, v%d' % (TA + 2 * k, YR + k, TA + 2 * k))
        a.i('v_dot2_f32_bf16 v%d, v%d, v13, v%d' % (TA + 2 * k + 1, YR + k, TA + 2 * k + 1))
    for k in range(16):
        a.i('v_cvt_pk_bf16_f32 v%d, v%d, v%d' % (O + k, TA + 2 * k, TA + 2 * k + 1))
    for k in range(16):
        a.i('v_dot2_f32_bf16 v%d, v%d, v12, v%d' % (XX + 2 * k, O + k, XX + 2 * k))
        a.i('v_dot2_f32_bf16 v%d, v%d, v13, v%d' % (XX + 2 * k + 1, O + k, XX + 2 * k + 1))
    for k in range(16):
        a.i('v_cvt_pk_bf16_f32 v%d, v%d, v%d' % (O + k, XX + 2 * k, XX + 2 * k + 1))
    for k in range(16):
        a.i('v_dot2_f32_bf16 v%d, v%d, v12, v%d' % (XF + 2 * k, O + k, XF + 2 * k))
        a.i('v_dot2_f32_bf16 v%d, v%d, v13, v%d' % (XF + 2 * k + 1, O + k, XF + 2 * k + 1))
    for e in range(8):
        a.i('v_cvt_pk_bf16_f32 v%d, v%d, v%d' % (O + 2 * e, XF + e, XF + 8 + e))
        a.i('v_cvt_pk_bf16_f32 v%d, v%d, v%d' % (O + 2 * e + 1, XF + 16 + e, XF + 24 + e))
        a.i('buffer_store_dwordx2 v[%d:%d], v%d, s[%d:%d], s11 offen offset:%d' % (O + 2 * e, O + 2 * e + 1, 3 + e // 2, S_OUT, S_OUT + 3, 2048 * (e % 2)))
    a.i('s_cmp_lg_u32 s3, 0')
    a.i('s_cbranch_scc1 k2_end')
    a.i('s_waitcnt lgkmcnt(0)')
    a.i('s_mov_b64 exec, 15')
    a.i('buffer_store_short v24, v22, s[%d:%d], s15 offen' % (S_WS, S_WS + 3))
    a.i('s_endpgm')

    a.label('k2_aux')
    a.flush()
    a.i('s_sub_u32 s3, s3, 4')
    a.i('v_subrev_u32 v2, 256, v0')
    a.i('v_lshlrev_b32 v3, 6, v2')
    a.i('s_lshl_b32 s7, s6, 14')
    a.i('s_mov_b32 s8, 0x%x' % WS_STATS)
    a.i('s_mov_b32 s10, 0x%x' % WS_KEYS)
    a.i('v_lshlrev_b32 v4, 4, v1')
    XB, ST, KEY = 8, 24, 40
    WG, WU, WD = 64, 96, 128
    for c in range(4):
        a.i('buffer_load_dwordx4 v[%d:%d], v3, s[%d:%d], s7 offen offset:%d' % (XB + 4 * c, XB + 4 * c + 3, S_WS, S_WS + 3, 16 * c))
    for c in range(4):
        a.i('buffer_load_dwordx4 v[%d:%d], v3, s[%d:%d], s8 offen offset:%d' % (ST + 4 * c, ST + 4 * c + 3, S_WS, S_WS + 3, 16 * c))
    for qq in range(4):
        a.i('buffer_load_dwordx4 v[%d:%d], v4, s[%d:%d], s10 offen offset:%d' % (KEY + 4 * qq, KEY + 4 * qq + 3, S_WS, S_WS + 3, 1024 * qq))
    a.i('s_mul_i32 s11, s4, 28')
    a.i('s_add_u32 s11, s11, s5')
    a.i('s_cmp_ge_u32 s5, 28')
    a.i('s_cselect_b32 s12, 0, 1')
    a.i('v_lshrrev_b32 v5, 1, v1')
    a.i('v_lshlrev_b32 v5, 3, v5')
    a.i('s_lshl_b32 s13, s3, 8')
    a.i('v_add_u32 v5, s13, v5')
    a.i('v_mul_u32_u24 v6, 7168, v5')
    a.i('v_and_b32 v7, 1, v1')
    a.i('v_lshl_add_u32 v6, v7, 4, v6')
    a.i('s_lshl_b32 s13, s11, 5')
    a.i('s_cmp_eq_u32 s12, 0')
    a.flush()
    a.i('s_cbranch_scc1 k2_aux_now')
    for i in range(8):
        a.i('buffer_load_dwordx4 v[%d:%d], v6, s[%d:%d], s13 offen nt' % (WG + 4 * i, WG + 4 * i + 3, S_WG, S_WG + 3))
        a.i('buffer_load_dwordx4 v[%d:%d], v6, s[%d:%d], s13 offen nt' % (WU + 4 * i, WU + 4 * i + 3, S_WU, S_WU + 3))
        if i < 7:
            a.i('s_add_u32 s13, s13, 7168')
    a.i('s_lshl_b32 s13, s11, 4')
    a.i('s_lshl_b32 s14, s3, 2')
    a.i('s_add_u32 s13, s13, s14')
    a.i('s_lshl_b32 s13, s13, 11')
    for r in range(4):
        a.i('buffer_load_dwordx4 v[%d:%d], v4, s[%d:%d], s13 offen offset:%d nt' % (WD + 8 * r, WD + 8 * r + 3, S_WD, S_WD + 3, 2048 * (r % 2)))
        a.i('buffer_load_dwordx4 v[%d:%d], v4, s[%d:%d], s13 offen offset:%d nt' % (WD + 8 * r + 4, WD + 8 * r + 7, S_WD, S_WD + 3, 2048 * (r % 2) + 1024))
        if r == 1:
            a.i('s_add_u32 s13, s13, 4096')
    a.i('s_waitcnt vmcnt(28)')
    a.i('s_branch k2_aux_stage')
    a.label('k2_aux_now')
    a.i('s_waitcnt vmcnt(4)')
    a.label('k2_aux_stage')
    a.flush()
    a.i('v_mov_b32 v160, 0x3f80')
    a.i('v_mov_b32 v161, 0x3f800000')
    a.i('v_lshlrev_b32 v3, 4, v2')
    a.i('v_add_u32 v7, %d, v3' % (2 * CH_STRIDE))
    for r in range(8):
        a.i('v_sub_f32 v%d, 0, v%d' % (ST + 2 * r, ST + 2 * r))
    for c in range(4):
        a.i('ds_write_b128 v%d, v[%d:%d] offset:%d' % (3 if c < 2 else 7, XB + 4 * c, XB + 4 * c + 3, (c % 2) * CH_STRIDE + CH_X))
    E, PK = 164, 196
    for c in range(4):
        for qd in range(4):
            a.i('v_dot2_f32_bf16 v%d, v%d, v160, v%d' % (E + 8 * c + 2 * qd, XB + 4 * c + qd, ST + 4 * qd))
            a.i('v_dot2_f32_bf16 v%d, v%d, v161, v%d' % (E + 8 * c + 2 * qd + 1, XB + 4 * c + qd, ST + 4 * qd + 2))
    for k in range(16):
        a.i('v_cvt_pk_bf16_f32 v%d, v%d, v%d' % (PK + k, E + 2 * k, E + 2 * k + 1))
    for k in range(16):
        a.i('v_lshlrev_b32 v%d, 16, v%d' % (E + 2 * k, PK + k))
        a.i('v_and_b32 v%d, 0xffff0000, v%d' % (E + 2 * k + 1, PK + k))
    for c in range(4):
        for e in range(8):
            a.i('v_mul_f32 v%d, v%d, v%d' % (E + 8 * c + e, ST + 2 * e + 1, E + 8 * c + e))
    for k in range(16):
        a.i('v_cvt_pk_bf16_f32 v%d, v%d, v%d' % (PK + k, E + 2 * k, E + 2 * k + 1))
    for k in range(16):
        a.i('v_lshlrev_b32 v%d, 16, v%d' % (E + 2 * k, PK + k))
        a.i('v_and_b32 v%d, 0xffff0000, v%d' % (E + 2 * k + 1, PK + k))
    for k in range(16):
        a.i('v_cvt_pk_f16_f32 v%d, v%d, v%d' % (PK + k, E + 2 * k, E + 2 * k + 1))
    for c in range(4):
        a.i('ds_write_b128 v%d, v[%d:%d] offset:%d' % (3 if c < 2 else 7, PK + 4 * c, PK + 4 * c + 3, (c % 2) * CH_STRIDE + CH_XN + 512))
    a.i('v_mov_b32 v162, %d' % AUX_CNT)
    a.i('v_mov_b32 v164, 0')
    a.i('v_mov_b32 v165, 0')
    a.i('v_mov_b32 v166, 0')
    a.i('v_mov_b32 v167, 0')
    a.i('ds_write_b128 v162, v[164:167]')
    a.i('v_mov_b32 v163, 1')
    a.i('s_waitcnt lgkmcnt(0)')
    a.i('s_barrier')
    a.i('s_cmp_eq_u32 s12, 0')
    a.i('s_cbranch_scc1 k2_end')
    a.i('s_waitcnt vmcnt(24)')
    argmax_keys(a, KEY, KEY + 16)
    a.i('v_readfirstlane_b32 s14, v%d' % KEY)
    a.i('s_and_b32 s15, s14, 0x7ff')
    a.i('s_sub_u32 s15, 2047, s15')
    a.i('s_lshl_b32 s13, s15, 11')
    a.i('s_lshl_b32 s9, s15, 3')
    a.i('s_add_u32 s9, s9, 0x%x' % WS_STATS)
    a.i('v_lshlrev_b32 v5, 1, v5')
    a.i('v_mov_b32 v8, 0')
    a.i('buffer_load_dwordx4 v[12:15], v5, s[%d:%d], s13 offen' % (S_X, S_X + 3))
    a.i('buffer_load_dwordx2 v[10:11], v8, s[%d:%d], s9 offen' % (S_WS, S_WS + 3))
    a.i('s_waitcnt vmcnt(0)')
    a.i('v_sub_f32 v10, 0, v10')
    for qd in range(4):
        a.i('v_dot2_f32_bf16 v%d, v%d, v160, v10' % (16 + 2 * qd, 12 + qd))
        a.i('v_dot2_f32_bf16 v%d, v%d, v161, v10' % (17 + 2 * qd, 12 + qd))
    for qd in range(4):
        a.i('v_cvt_pk_bf16_f32 v%d, v%d, v%d' % (24 + qd, 16 + 2 * qd, 17 + 2 * qd))
    for qd in range(4):
        a.i('v_lshlrev_b32 v%d, 16, v%d' % (16 + 2 * qd, 24 + qd))
        a.i('v_and_b32 v%d, 0xffff0000, v%d' % (17 + 2 * qd, 24 + qd))
    for e in range(8):
        a.i('v_mul_f32 v%d, v11, v%d' % (16 + e, 16 + e))
    for qd in range(4):
        a.i('v_cvt_pk_bf16_f32 v%d, v%d, v%d' % (24 + qd, 16 + 2 * qd, 17 + 2 * qd))
    for qd in range(4):
        a.i('v_and_b32 v%d, 0xffff, v%d' % (32 + 2 * qd, 24 + qd))
        a.i('v_lshrrev_b32 v%d, 16, v%d' % (33 + 2 * qd, 24 + qd))
        a.i('v_lshlrev_b32 v%d, 16, v%d' % (40 + 2 * qd, 24 + qd))
        a.i('v_and_b32 v%d, 0xffff0000, v%d' % (41 + 2 * qd, 24 + qd))
    a.i('s_cmp_lg_u32 s2, 0')
    a.flush()
    a.i('s_cbranch_scc1 k2_aux_nopub')
    a.i('s_mov_b32 s13, 0x%x' % WS_XNR)
    a.i('s_mov_b32 s9, 0x%x' % WS_XR)
    a.i('buffer_store_dwordx4 v[24:27], v5, s[%d:%d], s13 offen' % (S_WS, S_WS + 3))
    a.i('buffer_store_dwordx4 v[12:15], v5, s[%d:%d], s9 offen' % (S_WS, S_WS + 3))
    a.i('s_mov_b32 s9, 0x%x' % WS_SEL)
    a.i('v_mov_b32 v9, s14')
    a.i('buffer_store_dword v9, v8, s[%d:%d], s9 offen' % (S_WS, S_WS + 3))
    a.label('k2_aux_nopub')
    a.flush()
    GA = 164
    for i in range(8):
        for mtx, Wb in ((0, WG), (1, WU)):
            for d in range(4):
                for h in range(2):
                    acc = GA + 8 * mtx + 2 * d + h
                    a.i('v_dot2_f32_bf16 v%d, v%d, v%d, %s' % (acc, Wb + 4 * i + d, (32 if h == 0 else 40) + i, '0' if i == 0 else 'v%d' % acc))
    for k in range(8):
        a.i('v_permlane32_swap_b32 v%d, v%d' % (GA + k, GA + 8 + k))
    for k in range(8):
        a.i('v_add_f32 v%d, v%d, v%d' % (GA + k, GA + k, GA + 8 + k))
    for k in range(4):
        a.i('v_permlane16_swap_b32 v%d, v%d' % (GA + k, GA + 4 + k))
    for k in range(4):
        a.i('v_add_f32 v%d, v%d, v%d' % (GA + k, GA + k, GA + 4 + k))
    for r in (8, 4, 2):
        for k in range(4):
            a.i('v_add_f32 v%d, v%d, v%d row_ror:%d' % (GA + k, GA + k, GA + k, r))
    a.i('s_lshl_b32 s13, s3, 10')
    a.i('s_add_u32 s13, s13, %d' % AUX_GU)
    a.i('v_add_u32 v16, s13, v4')
    a.i('ds_write_b128 v16, v[%d:%d]' % (GA, GA + 3))
    lds_signal(a, 162, 163, 4)
    lds_poll(a, 162, 17, 4, 4, 'k2_p1', 13)
    a.i('v_add_u32 v16, %d, v4' % AUX_GU)
    for w in range(4):
        a.i('ds_read_b128 v[%d:%d], v16 offset:%d' % (180 + 4 * w, 183 + 4 * w, 1024 * w))
    a.i('s_waitcnt lgkmcnt(0)')
    for k in range(4):
        a.i('v_add_f32 v%d, v%d, v%d' % (180 + k, 180 + k, 184 + k))
        a.i('v_add_f32 v%d, v%d, v%d' % (188 + k, 188 + k, 192 + k))
    for k in range(4):
        a.i('v_add_f32 v%d, v%d, v%d' % (180 + k, 180 + k, 188 + k))
    a.i('v_cvt_pk_bf16_f32 v184, v180, v181')
    a.i('v_cvt_pk_bf16_f32 v185, v182, v183')
    a.i('v_lshlrev_b32 v180, 16, v184')
    a.i('v_and_b32 v181, 0xffff0000, v184')
    a.i('v_lshlrev_b32 v182, 16, v185')
    a.i('v_and_b32 v183, 0xffff0000, v185')
    for k in range(4):
        a.i('v_mov_b32 v%d, v%d' % (188 + k, 180 + k))
    for k in range(4):
        a.i('v_permlane32_swap_b32 v%d, v%d' % (180 + k, 188 + k))
    for k in range(4):
        a.i('v_mul_f32 v%d, %s, v%d' % (184 + k, fbits(-L2E_HI), 180 + k))
    for k in range(4):
        a.i('v_exp_f32 v%d, v%d' % (184 + k, 184 + k))
    for k in range(4):
        a.i('v_add_f32 v%d, 1.0, v%d' % (184 + k, 184 + k))
    for k in range(4):
        a.i('v_rcp_f32 v%d, v%d' % (184 + k, 184 + k))
    for k in range(4):
        a.i('v_mul_f32 v%d, v%d, v%d' % (180 + k, 180 + k, 184 + k))
    a.i('v_cvt_pk_bf16_f32 v184, v180, v181')
    a.i('v_cvt_pk_bf16_f32 v185, v182, v183')
    a.i('v_lshlrev_b32 v180, 16, v184')
    a.i('v_and_b32 v181, 0xffff0000, v184')
    a.i('v_lshlrev_b32 v182, 16, v185')
    a.i('v_and_b32 v183, 0xffff0000, v185')
    for k in range(4):
        a.i('v_mul_f32 v%d, v%d, v%d' % (180 + k, 180 + k, 188 + k))
    a.i('v_cvt_pk_bf16_f32 v184, v180, v181')
    a.i('v_cvt_pk_bf16_f32 v185, v182, v183')
    a.i('s_lshr_b32 s13, s3, 1')
    a.i('s_and_b32 s9, s3, 1')
    a.i('s_lshl_b32 s9, s9, 4')
    a.i('s_add_u32 s13, s13, s9')
    a.i('v_readlane_b32 s76, v184, s13')
    a.i('v_readlane_b32 s77, v185, s13')
    a.i('s_and_b32 s78, s76, 0xffff')
    a.i('s_lshl_b32 s79, s76, 16')
    a.i('s_lshr_b32 s80, s76, 16')
    a.i('s_and_b32 s81, s76, 0xffff0000')
    a.i('s_and_b32 s82, s77, 0xffff')
    a.i('s_lshl_b32 s83, s77, 16')
    a.i('s_lshr_b32 s84, s77, 16')
    a.i('s_and_b32 s85, s77, 0xffff0000')
    DA = 164
    for r in range(4):
        for d in range(8):
            for h in range(2):
                acc = DA + 2 * d + h
                a.i('v_dot2_f32_bf16 v%d, v%d, s%d, %s' % (acc, WD + 8 * r + d, 78 + 2 * r + h, '0' if r == 0 else 'v%d' % acc))
    a.i('s_lshl_b32 s13, s3, 12')
    a.i('s_add_u32 s13, s13, %d' % AUX_DN)
    a.i('v_lshlrev_b32 v16, 5, v1')
    a.i('v_add_u32 v16, s13, v16')
    a.i('ds_write_b128 v16, v[164:167]')
    a.i('ds_write_b128 v16, v[168:171] offset:16')
    a.i('ds_write_b128 v16, v[172:175] offset:2048')
    a.i('ds_write_b128 v16, v[176:179] offset:2064')
    lds_signal(a, 162, 163, 8)
    lds_poll(a, 162, 17, 8, 4, 'k2_p2', 13)
    a.i('v_add_u32 v16, %d, v3' % AUX_DN)
    for w in range(4):
        a.i('ds_read_b128 v[%d:%d], v16 offset:%d' % (180 + 4 * w, 183 + 4 * w, 4096 * w))
    a.i('s_lshl_b32 s13, s11, 12')
    a.i('s_add_u32 s13, s13, 0x%x' % WS_PART)
    a.i('s_waitcnt lgkmcnt(0)')
    for k in range(4):
        a.i('v_add_f32 v%d, v%d, v%d' % (180 + k, 180 + k, 184 + k))
        a.i('v_add_f32 v%d, v%d, v%d' % (188 + k, 188 + k, 192 + k))
    for k in range(4):
        a.i('v_add_f32 v%d, v%d, v%d' % (180 + k, 180 + k, 188 + k))
    a.i('buffer_store_dwordx4 v[180:183], v3, s[%d:%d], s13 offen' % (S_WS, S_WS + 3))
    a.label('k2_end')
    a.i('s_endpgm')


def gen_k3(a):
    S_WS, S_DK, S_OUT = 48, 52, 56
    a.label('k3_kernel')
    a.i('s_cmp_ge_u32 s2, 64')
    a.i('s_cbranch_scc1 k3_end')
    load_ptrs(a)
    a.i('v_lshrrev_b32 v1, 2, v0')
    a.i('v_and_b32 v2, 3, v0')
    a.i('v_lshlrev_b32 v3, 12, v1')
    a.i('v_lshl_add_u32 v3, v2, 4, v3')
    a.i('v_lshlrev_b32 v4, 3, v2')
    a.i('v_mov_b32 v5, 0')
    a.i('s_lshl_b32 s4, s2, 6')
    a.i('s_add_u32 s4, s4, 0x%x' % WS_PART)
    a.i('s_lshl_b32 s5, s2, 5')
    a.i('s_waitcnt lgkmcnt(0)')
    srd(a, S_WS, P_WS, WS_SIZE)
    srd(a, S_DK, P_DK, 2048)
    srd(a, S_OUT, P_OUT, 0x400000)
    a.i('s_mov_b32 s6, 0x%x' % WS_SEL)
    a.i('buffer_load_dword v6, v5, s[%d:%d], s6 offen' % (S_WS, S_WS + 3))
    a.i('s_add_u32 s7, s5, 0x%x' % WS_YR)
    a.i('buffer_load_dwordx2 v[8:9], v4, s[%d:%d], s7 offen' % (S_WS, S_WS + 3))
    a.i('buffer_load_dwordx2 v[10:11], v4, s[%d:%d], s7 offen offset:%d' % (S_WS, S_WS + 3, WS_XNR - WS_YR))
    a.i('s_add_u32 s7, s5, 0x%x' % WS_XR)
    a.i('buffer_load_dwordx2 v[12:13], v4, s[%d:%d], s7 offen' % (S_WS, S_WS + 3))
    a.i('buffer_load_dwordx2 v[14:15], v4, s[%d:%d], s5 offen' % (S_DK, S_DK + 3))
    P = 32
    for i in range(14):
        a.i('buffer_load_dwordx4 v[%d:%d], v3, s[%d:%d], s4 offen' % (P + 4 * i, P + 4 * i + 3, S_WS, S_WS + 3))
        if i < 13:
            a.i('s_add_u32 s4, s4, 0x10000')
    a.i('s_waitcnt vmcnt(14)')
    a.i('v_readfirstlane_b32 s8, v6')
    a.i('s_and_b32 s9, s8, 0x7ff')
    a.i('s_sub_u32 s9, 2047, s9')
    a.i('s_lshl_b32 s9, s9, 11')
    a.i('s_add_u32 s9, s9, s5')
    a.i('v_and_b32 v6, 0xffff0000, v6')
    a.i('v_ashrrev_i32 v7, 31, v6')
    a.i('v_not_b32 v7, v7')
    a.i('v_or_b32 v7, 0x80000000, v7')
    a.i('v_xor_b32 v6, v6, v7')
    a.i('v_and_b32 v6, 0xffff0000, v6')
    a.i('v_mul_f32 v6, %s, v6' % fbits(-L2E_HI))
    a.i('v_exp_f32 v6, v6')
    a.i('v_add_f32 v6, 1.0, v6')
    a.i('v_rcp_f32 v6, v6')
    a.i('v_cvt_pk_bf16_f32 v6, v6, v6')
    a.i('v_lshlrev_b32 v6, 16, v6')
    for src, dst in ((8, 16), (10, 20), (12, 24), (14, 28)):
        for k in range(2):
            a.i('v_lshlrev_b32 v%d, 16, v%d' % (dst + 2 * k, src + k))
            a.i('v_and_b32 v%d, 0xffff0000, v%d' % (dst + 2 * k + 1, src + k))

    def rnd4(r):
        a.i('v_cvt_pk_bf16_f32 v8, v%d, v%d' % (r, r + 1))
        a.i('v_cvt_pk_bf16_f32 v9, v%d, v%d' % (r + 2, r + 3))
        a.i('v_lshlrev_b32 v%d, 16, v8' % r)
        a.i('v_and_b32 v%d, 0xffff0000, v8' % (r + 1))
        a.i('v_lshlrev_b32 v%d, 16, v9' % (r + 2))
        a.i('v_and_b32 v%d, 0xffff0000, v9' % (r + 3))
    for k in range(4):
        a.i('v_mul_f32 v%d, v%d, v%d' % (28 + k, 28 + k, 20 + k))
    rnd4(28)
    for k in range(4):
        a.i('v_add_f32 v%d, v%d, v%d' % (28 + k, 28 + k, 16 + k))
    rnd4(28)
    for k in range(4):
        a.i('v_add_f32 v%d, v%d, v%d' % (28 + k, 28 + k, 24 + k))
    rnd4(28)
    a.i('s_waitcnt vmcnt(0)')
    for st in (7,):
        for i in range(7):
            for k in range(4):
                a.i('v_add_f32 v%d, v%d, v%d' % (P + 4 * i + k, P + 4 * i + k, P + 4 * (i + 7) + k))
    for (x, y) in ((0, 1), (2, 3), (4, 5), (0, 2), (4, 6), (0, 4)):
        for k in range(4):
            a.i('v_add_f32 v%d, v%d, v%d' % (P + 4 * x + k, P + 4 * x + k, P + 4 * y + k))
    for k in range(4):
        a.i('v_mov_b32 v%d, v%d' % (P + 4 + k, P + k))
    for k in range(4):
        a.i('v_permlane32_swap_b32 v%d, v%d' % (P + k, P + 4 + k))
    for k in range(4):
        a.i('v_add_f32 v%d, v%d, v%d' % (P + k, P + k, P + 4 + k))
    for k in range(4):
        a.i('v_mov_b32 v%d, v%d' % (P + 4 + k, P + k))
    for k in range(4):
        a.i('v_permlane16_swap_b32 v%d, v%d' % (P + k, P + 4 + k))
    for k in range(4):
        a.i('v_add_f32 v%d, v%d, v%d' % (P + k, P + k, P + 4 + k))
    for r in (8, 4):
        for k in range(4):
            a.i('v_add_f32 v%d, v%d, v%d row_ror:%d' % (P + k, P + k, P + k, r))
    rnd4(P)
    for k in range(4):
        a.i('v_mul_f32 v%d, v6, v%d' % (P + k, P + k))
    rnd4(P)
    for k in range(4):
        a.i('v_add_f32 v%d, v%d, v%d' % (P + k, P + k, 20 + k))
    rnd4(P)
    for k in range(4):
        a.i('v_add_f32 v%d, v%d, v%d' % (P + k, P + k, 28 + k))
    a.i('v_cvt_pk_bf16_f32 v8, v%d, v%d' % (P, P + 1))
    a.i('v_cvt_pk_bf16_f32 v9, v%d, v%d' % (P + 2, P + 3))
    a.i('s_mov_b64 exec, 15')
    a.i('buffer_store_dwordx2 v[8:9], v4, s[%d:%d], s9 offen' % (S_OUT, S_OUT + 3))
    a.label('k3_end')
    a.i('s_endpgm')


def kd(name, vgpr, sgpr=96):
    acc = (vgpr + 3) // 4 * 4
    return '''.amdhsa_kernel %s
  .amdhsa_next_free_vgpr %d
  .amdhsa_next_free_sgpr %d
  .amdhsa_accum_offset %d
  .amdhsa_group_segment_fixed_size 0
  .amdhsa_kernarg_size 120
  .amdhsa_user_sgpr_count 2
  .amdhsa_user_sgpr_kernarg_segment_ptr 1
  .amdhsa_system_sgpr_workgroup_id_x 1
  .amdhsa_float_denorm_mode_32 3
.end_amdhsa_kernel
''' % (name, vgpr, sgpr, acc)


def main():
    hdr = open('cdna_kernels/%s.s.ref' % NAME).read().split('\n')
    head = [l for l in hdr if l.startswith(';') and '@launch' not in l and 'Override launch' not in l and 'grid=ceil' not in l]
    out = '\n'.join(head) + '\n'
    out += '; @launch kernel=k1_kernel grid=(256,1,1) block=(512,1,1) lds=%d\n' % K1_LDS
    out += '; @launch kernel=k2_kernel grid=(256,1,1) block=(512,1,1) lds=%d\n' % K2_LDS
    out += '; @launch kernel=k3_kernel grid=(64,1,1) block=(64,1,1) lds=0\n'
    out += '.amdgcn_target "amdgcn-amd-amdhsa--gfx950"\n.text\n'
    for nm, fn in (('k1_kernel', gen_k1), ('k2_kernel', gen_k2), ('k3_kernel', gen_k3)):
        a = Asm()
        out += '.globl %s\n.p2align 8\n.type %s,@function\n' % (nm, nm)
        fn(a)
        out += a.text()
        sys.stderr.write('%s: %d lines, %d nop states inserted\n' % (nm, len(a.lines), a.nops_inserted))
    out += '.section .rodata,"a"\n'
    for nm, v in (('k1_kernel', 240), ('k2_kernel', 256), ('k3_kernel', 96)):
        out += '.p2align 6\n' + kd(nm, v)
    dst = sys.argv[1] if len(sys.argv) > 1 else 'cdna_kernels/%s.s' % NAME
    open(dst, 'w').write(out)


if __name__ == '__main__':
    main()
```

```python
import sys, struct, os
sys.path.insert(0, os.path.dirname(__file__))
from asmlib import Asm

NAME = 'parallel_sum__ssm_conv_s4d__moe_arch_mod__prompt'

WS_XB = 0x000000
WS_STATS = 0x400000
WS_KEYS = 0x404000
WS_SEL = 0x405000
WS_YR = 0x406000
WS_XNR = 0x406800
WS_XR = 0x407000
WS_KT = 0x410000
KT_STRIDE = 1664
KT_TC = 1104
KT_INV = 1632
WS_PART = 0x600000
WS_SIZE = 0x10000000
NSL = 224


def fbits(x):
    return '0x%08x' % struct.unpack('<I', struct.pack('<f', x))[0]


L2E_HI = struct.unpack('<f', struct.pack('<f', 1.4426950408889634))[0]
L2E_LO = 1.4426950408889634 - L2E_HI
I2PI_HI = struct.unpack('<f', struct.pack('<f', 0.15915494309189535))[0]
I2PI_LO = 0.15915494309189535 - I2PI_HI


DIAG = bool(os.environ.get('DIAG'))
WS_DIAG = 0x700000


def stamp(a, slot, rt=False):
    if not DIAG:
        return
    a.i('s_waitcnt lgkmcnt(0)')
    a.i('%s s[98:99]' % ('s_memrealtime' if rt else 's_memtime'))
    a.i('s_waitcnt lgkmcnt(0)')
    a.i('s_mov_b32 s%d, s98' % (86 + slot))


def stamp_init(a):
    if not DIAG:
        return
    for k in range(12):
        a.i('s_mov_b32 s%d, 0' % (86 + k))
    stamp(a, 0, True)
    stamp(a, 1)


def stamp_flush(a, S_WS, kern):
    if not DIAG:
        return
    a.i('s_mov_b64 exec, -1')
    a.i('s_waitcnt vmcnt(0)')
    stamp(a, 10)
    stamp(a, 11, True)
    a.flush()
    a.i('v_mov_b32 v9, 0')
    for k in range(12):
        a.i('v_writelane_b32 v9, s%d, %d' % (86 + k, k))
    a.i('v_lshlrev_b32 v8, 2, v0')
    a.i('s_lshl_b32 s98, s2, 11')
    a.i('s_add_u32 s98, s98, 0x%x' % (WS_DIAG + kern * 0x80000))
    a.i('buffer_store_dword v9, v8, s[%d:%d], s98 offen' % (S_WS, S_WS + 3))


def srd(a, d, lo, size):
    a.i('s_mov_b32 s%d, s%d' % (d, lo))
    a.i('s_and_b32 s%d, s%d, 0xffff' % (d + 1, lo + 1))
    a.i('s_mov_b32 s%d, 0x%x' % (d + 2, size))
    a.i('s_mov_b32 s%d, 0x20000' % (d + 3))


def load_ptrs(a):
    a.i('s_load_dwordx16 s[16:31], s[0:1], 0')
    a.i('s_load_dwordx8 s[32:39], s[0:1], 64')
    a.i('s_load_dwordx4 s[40:43], s[0:1], 96')
    a.i('s_load_dwordx2 s[44:45], s[0:1], 112')
P_X, P_LA, P_AI, P_CR, P_CI, P_DT, P_DK = 16, 18, 20, 22, 24, 26, 28
P_WR, P_WG, P_WU, P_WD, P_OUT, P_DBG, P_WS = 32, 34, 36, 38, 40, 42, 44


def row_allreduce(a, v, op='v_add_f32'):
    for r in (8, 4, 2, 1):
        a.i('%s v%d, v%d, v%d row_ror:%d' % (op, v, v, v, r))


def reduce2(a, va, vb, vt, op='v_add_f32'):
    a.i('v_permlane32_swap_b32 v%d, v%d' % (va, vb))
    a.i('%s v%d, v%d, v%d' % (op, va, va, vb))
    a.i('v_mov_b32 v%d, v%d' % (vt, va))
    a.i('v_permlane16_swap_b32 v%d, v%d' % (va, vt))
    a.i('%s v%d, v%d, v%d' % (op, va, va, vt))
    row_allreduce(a, va, op)


def reduce1(a, va, vt, op='v_add_f32'):
    a.i('v_mov_b32 v%d, v%d' % (vt, va))
    reduce2(a, va, vt, vt, op) if False else None
    a.i('v_permlane32_swap_b32 v%d, v%d' % (va, vt))
    a.i('%s v%d, v%d, v%d' % (op, va, va, vt))
    a.i('v_mov_b32 v%d, v%d' % (vt, va))
    a.i('v_permlane16_swap_b32 v%d, v%d' % (va, vt))
    a.i('%s v%d, v%d, v%d' % (op, va, va, vt))
    row_allreduce(a, va, op)


def exp_acc(a, vs, t0, t1, s_hi, s_lo):
    for v, x, y in zip(vs, t0, t1):
        a.i('v_mul_f32 v%d, s%d, v%d' % (x, s_hi, v))
    for v, x, y in zip(vs, t0, t1):
        a.i('v_rndne_f32 v%d, v%d' % (x, x))
    for v, x, y in zip(vs, t0, t1):
        a.i('v_fma_f32 v%d, v%d, s%d, -v%d' % (y, v, s_hi, x))
    for v, x, y in zip(vs, t0, t1):
        a.i('v_fma_f32 v%d, v%d, s%d, v%d' % (y, v, s_lo, y))
    for v, x, y in zip(vs, t0, t1):
        a.i('v_exp_f32 v%d, v%d' % (y, y))
    for v, x, y in zip(vs, t0, t1):
        a.i('v_cvt_i32_f32 v%d, v%d' % (x, x))
    for v, x, y in zip(vs, t0, t1):
        a.i('v_ldexp_f32 v%d, v%d, v%d' % (v, y, x))


K1_LN_LDS = 18432
K1_KG_ROW = 528
K1_KG_LDS = 53 * K1_KG_ROW
K1_LDS = K1_LN_LDS + 4 * K1_KG_LDS


def gen_k1(a):
    S_X, S_WR, S_WS, S_LA, S_AI, S_CR, S_CI, S_DT = 48, 52, 56, 60, 64, 68, 72, 76
    a.label('k1_kernel')
    a.i('s_cmp_ge_u32 s2, 256')
    a.i('s_cbranch_scc1 k1_end')
    load_ptrs(a)
    a.i('v_lshrrev_b32 v2, 6, v0')
    a.i('v_and_b32 v1, 63, v0')
    a.i('v_readfirstlane_b32 s3, v2')
    a.i('s_waitcnt lgkmcnt(0)')
    srd(a, S_X, P_X, 0x400000)
    srd(a, S_WR, P_WR, 2048)
    srd(a, S_WS, P_WS, WS_SIZE)
    srd(a, S_LA, P_LA, 0x40000)
    srd(a, S_AI, P_AI, 0x40000)
    srd(a, S_CR, P_CR, 0x40000)
    srd(a, S_CI, P_CI, 0x40000)
    srd(a, S_DT, P_DT, 2048)
    stamp_init(a)
    a.i('s_cmp_ge_u32 s3, 4')
    a.flush()
    a.i('s_cbranch_scc1 k1_kgen')

    A, B, W = 8, 16, 24
    a.i('v_lshlrev_b32 v2, 4, v1')
    a.i('s_lshl_b32 s4, s2, 3')
    a.i('s_lshl_b32 s5, s3, 1')
    a.i('s_add_u32 s4, s4, s5')
    a.i('s_lshl_b32 s5, s4, 11')
    a.i('s_add_u32 s6, s5, 2048')
    a.i('buffer_load_dwordx4 v[8:11], v2, s[%d:%d], s5 offen nt' % (S_X, S_X + 3))
    a.i('buffer_load_dwordx4 v[12:15], v2, s[%d:%d], s5 offen offset:1024 nt' % (S_X, S_X + 3))
    a.i('buffer_load_dwordx4 v[16:19], v2, s[%d:%d], s6 offen nt' % (S_X, S_X + 3))
    a.i('buffer_load_dwordx4 v[20:23], v2, s[%d:%d], s6 offen offset:1024 nt' % (S_X, S_X + 3))
    a.i('buffer_load_dwordx4 v[24:27], v2, s[%d:%d], 0 offen' % (S_WR, S_WR + 3))
    a.i('buffer_load_dwordx4 v[28:31], v2, s[%d:%d], 0 offen offset:1024' % (S_WR, S_WR + 3))
    a.i('v_mul_u32_u24 v3, 144, v1')
    a.i('s_lshl_b32 s7, s3, 2')
    a.i('v_add_u32 v3, s7, v3')
    a.i('v_add_u32 v4, 9216, v3')
    a.i('v_lshrrev_b32 v5, 3, v0')
    a.i('v_add_u32 v5, v5, v0')
    a.i('v_lshlrev_b32 v5, 4, v5')
    a.i('v_lshrrev_b32 v6, 2, v0')
    a.i('v_lshlrev_b32 v6, 14, v6')
    a.i('v_and_b32 v7, 3, v0')
    a.i('v_lshl_add_u32 v6, v7, 4, v6')
    a.i('s_mov_b32 s8, 0x05040100')
    a.i('s_mov_b32 s9, 0x07060302')
    a.i('v_mov_b32 v32, 0x3f80')
    a.i('v_mov_b32 v33, 0x3f800000')
    a.i('v_mov_b32 v34, 0x3f803f80')
    a.i('s_lshl_b32 s10, s2, 6')
    a.i('s_add_u32 s11, s10, 0x100000')
    a.i('s_add_u32 s12, s10, 0x200000')
    a.i('s_add_u32 s13, s10, 0x300000')
    a.i('s_waitcnt vmcnt(2)')
    stamp(a, 2)
    for i in range(8):
        t = 40 + 2 * i
        a.i('v_perm_b32 v%d, v%d, v%d, s8' % (t, B + i, A + i))
        a.i('v_perm_b32 v%d, v%d, v%d, s9' % (t + 1, B + i, A + i))
        a.i('ds_write2_b32 v%d, v%d, v%d offset0:%d offset1:%d' % (3 if i < 4 else 4, t, t + 1, 8 * (i % 4), 8 * (i % 4) + 4))
    a.i('v_dot2_f32_bf16 v36, v%d, v34, 0' % A)
    a.i('v_dot2_f32_bf16 v37, v%d, v34, 0' % B)
    for i in range(1, 8):
        a.i('v_dot2_f32_bf16 v36, v%d, v34, v36' % (A + i))
        a.i('v_dot2_f32_bf16 v37, v%d, v34, v37' % (B + i))
    a.i('s_waitcnt lgkmcnt(0)')
    a.i('s_barrier')
    stamp(a, 3)
    for q in range(4):
        a.i('ds_read_b128 v[%d:%d], v5 offset:%d' % (40 + 4 * q, 43 + 4 * q, q * 4608))
    reduce2(a, 36, 37, 38)
    a.i('v_mul_f32 v36, %s, v36' % fbits(1.0 / 1024))
    a.i('v_sub_f32 v37, 0, v36')
    a.i('v_cvt_pk_bf16_f32 v38, v36, v36')
    a.i('v_readlane_b32 s14, v37, 0')
    a.i('v_readlane_b32 s15, v37, 32')
    a.i('v_lshlrev_b32 v38, 16, v38')
    a.i('v_sub_f32 v39, 0, v38')
    for q in range(4):
        a.i('s_waitcnt lgkmcnt(%d)' % (3 - q))
        a.i('buffer_store_dwordx4 v[%d:%d], v6, s[%d:%d], s%d offen' % (40 + 4 * q, 43 + 4 * q, S_WS, S_WS + 3, 10 + q))
    for i in range(8):
        a.i('v_dot2_f32_bf16 v%d, v%d, v32, s14' % (64 + 2 * i, A + i))
        a.i('v_dot2_f32_bf16 v%d, v%d, v33, s14' % (65 + 2 * i, A + i))
    for i in range(8):
        a.i('v_dot2_f32_bf16 v%d, v%d, v32, s15' % (80 + 2 * i, B + i))
        a.i('v_dot2_f32_bf16 v%d, v%d, v33, s15' % (81 + 2 * i, B + i))
    a.i('v_readlane_b32 s14, v39, 0')
    a.i('v_readlane_b32 s15, v39, 32')
    a.i('v_mul_f32 v60, v64, v64')
    a.i('v_mul_f32 v61, v80, v80')
    a.i('v_mul_f32 v62, v65, v65')
    a.i('v_mul_f32 v63, v81, v81')
    for i in range(2, 16, 2):
        a.i('v_fmac_f32 v60, v%d, v%d' % (64 + i, 64 + i))
        a.i('v_fmac_f32 v61, v%d, v%d' % (80 + i, 80 + i))
        a.i('v_fmac_f32 v62, v%d, v%d' % (65 + i, 65 + i))
        a.i('v_fmac_f32 v63, v%d, v%d' % (81 + i, 81 + i))
    a.i('v_add_f32 v60, v60, v62')
    a.i('v_add_f32 v61, v61, v63')
    for i in range(8):
        a.i('v_dot2_f32_bf16 v%d, v%d, v32, s14' % (64 + 2 * i, A + i))
        a.i('v_dot2_f32_bf16 v%d, v%d, v33, s14' % (65 + 2 * i, A + i))
    for i in range(8):
        a.i('v_dot2_f32_bf16 v%d, v%d, v32, s15' % (80 + 2 * i, B + i))
        a.i('v_dot2_f32_bf16 v%d, v%d, v33, s15' % (81 + 2 * i, B + i))
    reduce2(a, 60, 61, 62)
    a.i('v_mul_f32 v60, %s, v60' % fbits(1.0 / 1024))
    a.i('v_cvt_pk_bf16_f32 v60, v60, v60')
    a.i('v_lshlrev_b32 v60, 16, v60')
    a.i('v_add_f32 v60, %s, v60' % fbits(1e-5))
    a.i('v_cvt_pk_bf16_f32 v60, v60, v60')
    a.i('v_lshlrev_b32 v60, 16, v60')
    a.i('v_sqrt_f32 v60, v60')
    a.i('v_cvt_pk_bf16_f32 v60, v60, v60')
    a.i('v_lshlrev_b32 v60, 16, v60')
    a.i('v_rcp_f32 v39, v60')
    for i in range(16):
        a.i('v_cvt_pk_bf16_f32 v%d, v%d, v%d' % (96 + i, 64 + 2 * i, 65 + 2 * i))
    a.i('v_readlane_b32 s14, v39, 0')
    a.i('v_readlane_b32 s15, v39, 32')
    for i in range(16):
        a.i('v_lshlrev_b32 v%d, 16, v%d' % (64 + 2 * i, 96 + i))
        a.i('v_and_b32 v%d, 0xffff0000, v%d' % (65 + 2 * i, 96 + i))
    for i in range(32):
        a.i('v_mul_f32 v%d, s%d, v%d' % (64 + i, 14 if i < 16 else 15, 64 + i))
    for i in range(16):
        a.i('v_cvt_pk_bf16_f32 v%d, v%d, v%d' % (96 + i, 64 + 2 * i, 65 + 2 * i))
    a.i('s_waitcnt vmcnt(4)')
    stamp(a, 4)
    a.i('v_dot2_f32_bf16 v60, v96, v%d, 0' % W)
    a.i('v_dot2_f32_bf16 v61, v104, v%d, 0' % W)
    for i in range(1, 8):
        a.i('v_dot2_f32_bf16 v60, v%d, v%d, v60' % (96 + i, W + i))
        a.i('v_dot2_f32_bf16 v61, v%d, v%d, v61' % (104 + i, W + i))
    reduce2(a, 60, 61, 62)
    a.i('v_cvt_pk_bf16_f32 v60, v60, v60')
    a.i('v_and_b32 v60, 0xffff0000, v60')
    a.i('v_ashrrev_i32 v61, 31, v60')
    a.i('v_or_b32 v61, 0x80000000, v61')
    a.i('v_xor_b32 v60, v60, v61')
    a.i('v_and_b32 v60, 0xffff0000, v60')
    a.i('v_lshrrev_b32 v62, 5, v1')
    a.i('s_sub_u32 s14, 2047, s4')
    a.i('v_sub_u32 v61, s14, v62')
    a.i('v_or_b32 v60, v60, v61')
    a.i('v_readlane_b32 s14, v60, 0')
    a.i('v_readlane_b32 s15, v60, 32')
    a.i('v_lshlrev_b32 v62, 3, v62')
    a.i('s_lshl_b32 s5, s4, 3')
    a.i('s_add_u32 s5, s5, 0x%x' % WS_STATS)
    a.i('s_max_u32 s14, s14, s15')
    a.i('s_lshl_b32 s6, s4, 1')
    a.i('s_add_u32 s6, s6, 0x%x' % WS_KEYS)
    a.i('v_mov_b32 v60, s14')
    a.i('s_mov_b32 exec_lo, 1')
    a.i('s_mov_b32 exec_hi, 1')
    a.i('buffer_store_dwordx2 v[38:39], v62, s[%d:%d], s5 offen' % (S_WS, S_WS + 3))
    a.i('s_mov_b32 exec_hi, 0')
    a.i('buffer_store_dword v60, v62, s[%d:%d], s6 offen' % (S_WS, S_WS + 3))
    stamp(a, 5)
    stamp_flush(a, S_WS, 0)
    a.i('s_endpgm')

    a.label('k1_kgen')
    a.flush()
    a.i('s_sub_u32 s3, s3, 4')
    a.i('s_lshl_b32 s4, s2, 2')
    a.i('s_add_u32 s4, s4, s3')
    a.i('s_lshl_b32 s5, s4, 8')
    a.i('s_lshl_b32 s6, s4, 1')
    a.i('v_lshlrev_b32 v2, 2, v1')
    a.i('v_mov_b32 v3, 0')
    a.i('buffer_load_ushort v12, v3, s[%d:%d], s6 offen' % (S_DT, S_DT + 3))
    a.i('buffer_load_dword v8, v2, s[%d:%d], s5 offen nt' % (S_LA, S_LA + 3))
    a.i('buffer_load_dword v9, v2, s[%d:%d], s5 offen nt' % (S_AI, S_AI + 3))
    a.i('buffer_load_dword v10, v2, s[%d:%d], s5 offen nt' % (S_CR, S_CR + 3))
    a.i('buffer_load_dword v11, v2, s[%d:%d], s5 offen nt' % (S_CI, S_CI + 3))
    a.i('s_mov_b32 s8, %s' % fbits(L2E_HI))
    a.i('s_mov_b32 s9, %s' % fbits(L2E_LO))
    a.i('s_mov_b32 s10, %s' % fbits(I2PI_HI))
    a.i('s_mov_b32 s11, %s' % fbits(I2PI_LO))
    a.i('s_mul_i32 s7, s3, %d' % K1_KG_LDS)
    a.i('s_add_u32 s7, s7, %d' % K1_LN_LDS)
    a.i('v_lshlrev_b32 v4, 3, v1')
    a.i('v_add_u32 v4, s7, v4')
    a.i('v_and_b32 v5, 31, v1')
    a.i('v_lshrrev_b32 v6, 5, v1')
    a.i('v_min_u32 v7, 20, v5')
    a.i('v_mul_u32_u24 v7, %d, v7' % K1_KG_ROW)
    a.i('v_lshl_add_u32 v7, v6, 4, v7')
    a.i('v_add_u32 v7, s7, v7')
    a.i('v_mul_u32_u24 v13, %d, v5' % K1_KG_ROW)
    a.i('v_lshl_add_u32 v13, v6, 4, v13')
    a.i('s_add_u32 s12, s7, %d' % (21 * K1_KG_ROW))
    a.i('v_add_u32 v13, s12, v13')
    a.i('s_waitcnt vmcnt(0)')
    stamp(a, 2)
    a.i('s_barrier')
    stamp(a, 3)
    a.i('v_lshlrev_b32 v12, 16, v12')
    a.i('v_lshlrev_b32 v14, 16, v8')
    a.i('v_and_b32 v15, 0xffff0000, v8')
    exp_acc(a, [12, 14, 15], [22, 23, 24], [25, 26, 27], 8, 9)
    a.i('v_cvt_pk_bf16_f32 v12, v12, v12')
    a.i('v_cvt_pk_bf16_f32 v14, v14, v15')
    a.i('v_lshlrev_b32 v12, 16, v12')
    a.i('v_and_b32 v15, 0xffff0000, v14')
    a.i('v_lshlrev_b32 v14, 16, v14')
    a.i('v_lshlrev_b32 v16, 16, v9')
    a.i('v_and_b32 v17, 0xffff0000, v9')
    a.i('v_lshlrev_b32 v18, 16, v10')
    a.i('v_and_b32 v19, 0xffff0000, v10')
    a.i('v_lshlrev_b32 v20, 16, v11')
    a.i('v_and_b32 v21, 0xffff0000, v11')
    for r in range(14, 22):
        a.i('v_mul_f32 v%d, v12, v%d' % (r, r))
    a.i('v_mul_f32 v14, %s, v14' % fbits(-L2E_HI))
    a.i('v_mul_f32 v15, %s, v15' % fbits(-L2E_HI))
    for j in range(2):
        a.i('v_mul_f32 v%d, s10, v%d' % (22 + j, 16 + j))
    for j in range(2):
        a.i('v_fma_f32 v%d, v%d, s10, -v%d' % (24 + j, 16 + j, 22 + j))
    for j in range(2):
        a.i('v_fma_f32 v%d, v%d, s11, v%d' % (24 + j, 16 + j, 24 + j))
    for j in range(2):
        a.i('v_rndne_f32 v%d, v%d' % (26 + j, 22 + j))
    for j in range(2):
        a.i('v_sub_f32 v%d, v%d, v%d' % (22 + j, 22 + j, 26 + j))
    for j in range(2):
        a.i('v_add_f32 v%d, v%d, v%d' % (16 + j, 22 + j, 24 + j))
    a.i('v_add_f32 v28, abs(v18), abs(v19)')
    a.i('v_add_f32 v29, abs(v20), abs(v21)')
    a.i('v_add_f32 v28, v28, v29')
    reduce1(a, 28, 29)
    a.i('v_lshrrev_b32 v28, 23, v28')
    a.i('v_add_u32 v28, 1, v28')
    a.i('v_max_u32 v28, 20, v28')
    a.i('v_min_u32 v28, 255, v28')
    a.i('v_sub_u32 v29, 268, v28')
    a.i('v_lshlrev_b32 v29, 23, v29')
    a.i('v_subrev_u32 v30, 13, v28')
    a.i('v_lshlrev_b32 v30, 23, v30')
    EB = {1: 40, 8: 44, 64: 48, 256: 52}
    for p, e in EB.items():
        pf = fbits(float(p))
        for j in range(2):
            a.i('v_mul_f32 v%d, %s, v%d' % (22 + j, pf, 14 + j))
            a.i('v_mul_f32 v%d, %s, v%d' % (24 + j, pf, 16 + j))
        for j in range(2):
            a.i('v_exp_f32 v%d, v%d' % (22 + j, 22 + j))
            a.i('v_fract_f32 v%d, v%d' % (24 + j, 24 + j))
        for j in range(2):
            a.i('v_cos_f32 v%d, v%d' % (e + j, 24 + j))
            a.i('v_sin_f32 v%d, v%d' % (e + 2 + j, 24 + j))
        a.i('v_pk_mul_f32 v[%d:%d], v[%d:%d], v[22:23]' % (e, e + 1, e, e + 1))
        a.i('v_pk_mul_f32 v[%d:%d], v[%d:%d], v[22:23]' % (e + 2, e + 3, e + 2, e + 3))
    E1, E8, E64, E256, E2, E4 = 40, 44, 48, 52, 56, 60
    tmpc = [0]

    def cmul(d, x, y):
        t = 80 + 4 * (tmpc[0] % 4)
        tmpc[0] += 1
        a.i('v_pk_mul_f32 v[%d:%d], v[%d:%d], v[%d:%d]' % (t, t + 1, x, x + 1, y, y + 1))
        a.i('v_pk_mul_f32 v[%d:%d], v[%d:%d], v[%d:%d]' % (t + 2, t + 3, x, x + 1, y + 2, y + 3))
        a.i('v_pk_fma_f32 v[%d:%d], v[%d:%d], v[%d:%d], v[%d:%d] neg_lo:[1,0,0] neg_hi:[1,0,0]' % (d, d + 1, x + 2, x + 3, y + 2, y + 3, t, t + 1))
        a.i('v_pk_fma_f32 v[%d:%d], v[%d:%d], v[%d:%d], v[%d:%d]' % (d + 2, d + 3, x + 2, x + 3, y, y + 1, t + 2, t + 3))
    outc = [0]

    def emit(x, row, neg):
        o = 96 + 2 * (outc[0] % 8)
        outc[0] += 1
        n = '-' if neg else ''
        a.i('v_cvt_pk_f16_f32 v%d, v%d, %sv%d' % (o, x, n, x + 2))
        a.i('v_cvt_pk_f16_f32 v%d, v%d, %sv%d' % (o + 1, x + 1, n, x + 3))
        a.i('ds_write_b64 v4, v[%d:%d] offset:%d' % (o, o + 1, row * K1_KG_ROW))
    stamp(a, 4)
    F = [64, 68, 72, 76]
    a.i('v_mov_b32 v64, 1.0')
    a.i('v_mov_b32 v65, 1.0')
    a.i('v_mov_b32 v66, 0')
    a.i('v_mov_b32 v67, 0')
    for k in range(4):
        a.i('v_mov_b32 v%d, v%d' % (68 + k, E64 + k))
    cmul(72, 68, E64)
    cmul(E2, E1, E1)
    cmul(76, 72, E64)
    cmul(E4, E2, E2)
    for q in range(4):
        emit(F[q], 21 + 8 * q, False)
    for i in range(1, 8):
        for q in range(4):
            cmul(F[q], F[q], E8)
        for q in range(4):
            emit(F[q], 21 + 8 * q + i, False)
    G, H, T1, T2 = 64, 68, 72, 76
    a.i('v_mul_f32 v64, v29, v18')
    a.i('v_mul_f32 v65, v29, v19')
    a.i('v_mul_f32 v66, v29, v20')
    a.i('v_mul_f32 v67, v29, v21')
    emit(G, 0, True)
    cmul(H, G, E1)
    cmul(G, G, E256)
    emit(H, 1, True)
    emit(G, 8, True)
    cmul(H, H, E1)
    cmul(T1, G, E2)
    cmul(G, G, E256)
    emit(H, 2, True)
    emit(T1, 9, True)
    emit(G, 12, True)
    cmul(H, H, E1)
    cmul(T1, T1, E2)
    cmul(T2, G, E4)
    cmul(G, G, E256)
    emit(H, 3, True)
    emit(T1, 10, True)
    emit(T2, 13, True)
    emit(G, 14, True)
    cmul(H, H, E1)
    cmul(T1, T1, E2)
    cmul(T2, G, E4)
    cmul(G, G, E256)
    emit(H, 4, True)
    emit(T1, 11, True)
    emit(T2, 15, True)
    emit(G, 16, True)
    for k in range(3):
        cmul(H, H, E1)
        cmul(G, G, E256)
        emit(H, 5 + k, True)
        emit(G, 17 + k, True)
    cmul(G, G, E256)
    emit(G, 20, True)
    stamp(a, 5)
    ACC = 224
    for r in range(16):
        a.i('v_mov_b32 v%d, 0' % (ACC + r))
    a.i('s_waitcnt lgkmcnt(0)')
    FR = 96
    for half in range(2):
        for s in range(8):
            ss = half * 8 + s
            a.i('ds_read_b128 v[%d:%d], v7 offset:%d' % (FR + 8 * ss, FR + 8 * ss + 3, 32 * ss))
            a.i('ds_read_b128 v[%d:%d], v13 offset:%d' % (FR + 8 * ss + 4, FR + 8 * ss + 7, 32 * ss))
        if half == 1:
            for s in range(8):
                a.i('s_waitcnt lgkmcnt(15)' if s == 0 else 's_nop 0')
                a.i('v_mfma_f32_32x32x16_f16 v[%d:%d], v[%d:%d], v[%d:%d], v[%d:%d]' % (ACC, ACC + 15, FR + 8 * s, FR + 8 * s + 3, FR + 8 * s + 4, FR + 8 * s + 7, ACC, ACC + 15))
    for s in range(8, 16):
        a.i('s_waitcnt lgkmcnt(%d)' % (2 * (15 - s)))
        a.i('v_mfma_f32_32x32x16_f16 v[%d:%d], v[%d:%d], v[%d:%d], v[%d:%d]' % (ACC, ACC + 15, FR + 8 * s, FR + 8 * s + 3, FR + 8 * s + 4, FR + 8 * s + 7, ACC, ACC + 15))
    stamp(a, 6)
    a.i('s_mul_i32 s5, s4, %d' % KT_STRIDE)
    a.i('s_add_u32 s5, s5, 0x%x' % WS_KT)
    a.i('v_lshlrev_b32 v8, 4, v5')
    a.i('v_lshl_add_u32 v9, v6, 3, v8')
    a.i('v_sub_u32 v9, 1080, v9')
    a.i('v_sub_u32 v10, 560, v8')
    a.i('v_sub_u32 v11, 48, v8')
    a.i('v_lshlrev_b32 v14, 2, v5')
    a.i('v_lshlrev_b32 v15, 1, v5')
    a.i('v_mov_b32 v16, 0')
    for r in range(4):
        a.i('v_mov_b32 v%d, 0' % (20 + r))
    D = ACC
    a.i('v_mov_b32 v17, 0')
    a.i('v_mov_b32 v17, v%d wave_shl:1' % (D + 4))
    a.i('v_cvt_pk_f16_f32 v40, v%d, v%d' % (D + 3, D + 2))
    a.i('v_cvt_pk_f16_f32 v41, v%d, v%d' % (D + 1, D + 0))
    a.i('buffer_store_dwordx2 v[40:41], v9, s[%d:%d], s5 offen' % (S_WS, S_WS + 3))
    a.i('v_cvt_pk_f16_f32 v44, v17, v%d' % (D + 7))
    a.i('v_cvt_pk_f16_f32 v45, v%d, v%d' % (D + 6, D + 6))
    a.i('v_cvt_pk_f16_f32 v46, v%d, v%d' % (D + 6, D + 5))
    a.i('v_cvt_pk_f16_f32 v47, v%d, v%d' % (D + 4, D + 4))
    a.i('v_cvt_pk_f16_f32 v48, v17, v17')
    a.i('v_cvt_pk_f16_f32 v49, v%d, v%d' % (D + 5, D + 5))
    a.i('v_cvt_pk_f16_f32 v50, v%d, v%d' % (D + 5, D + 4))
    a.i('v_mov_b32 v51, v47')
    a.i('v_cvt_pk_f16_f32 v52, v%d, v%d' % (D + 4, D + 5))
    a.i('v_cvt_pk_f16_f32 v53, v%d, v%d' % (D + 6, D + 7))
    a.i('v_cvt_pk_f16_f32 v54, v%d, v%d' % (D + 8, D + 9))
    a.i('v_cvt_pk_f16_f32 v55, v%d, v%d' % (D + 10, D + 11))
    a.i('s_mov_b32 exec_hi, 0')
    a.i('buffer_store_dwordx4 v[44:47], v10, s[%d:%d], s5 offen' % (S_WS, S_WS + 3))
    a.i('buffer_store_short v54, v15, s[%d:%d], s5 offen offset:%d' % (S_WS, S_WS + 3, 1360))
    a.i('buffer_store_short_d16_hi v54, v15, s[%d:%d], s5 offen offset:%d' % (S_WS, S_WS + 3, 1360 + 64))
    a.i('buffer_store_short v55, v15, s[%d:%d], s5 offen offset:%d' % (S_WS, S_WS + 3, 1360 + 128))
    a.i('buffer_store_short_d16_hi v55, v15, s[%d:%d], s5 offen offset:%d' % (S_WS, S_WS + 3, 1360 + 192))
    a.i('s_mov_b32 exec_lo, 1')
    a.i('buffer_store_dwordx4 v[20:23], v16, s[%d:%d], s5 offen offset:1088' % (S_WS, S_WS + 3))
    a.i('buffer_store_dword v30, v16, s[%d:%d], s5 offen offset:%d' % (S_WS, S_WS + 3, KT_INV))
    a.i('s_mov_b32 exec_lo, 0')
    a.i('s_mov_b32 exec_hi, -1')
    a.i('buffer_store_dword v52, v14, s[%d:%d], s5 offen offset:%d' % (S_WS, S_WS + 3, KT_TC))
    a.i('buffer_store_dword v53, v14, s[%d:%d], s5 offen offset:%d' % (S_WS, S_WS + 3, KT_TC + 128))
    a.i('s_mov_b32 exec_hi, 15')
    a.i('buffer_store_dwordx4 v[48:51], v11, s[%d:%d], s5 offen' % (S_WS, S_WS + 3))
    a.i('s_mov_b32 exec_hi, 1')
    a.i('buffer_store_short v54, v16, s[%d:%d], s5 offen offset:%d' % (S_WS, S_WS + 3, KT_TC + 512))
    stamp(a, 7)
    stamp_flush(a, S_WS, 0)
    a.label('k1_end')
    a.i('s_endpgm')


CH_XN = 0
CH_KN = 4608
KN_COPY = 1344
CH_KQ = CH_KN + 8 * KN_COPY
CH_Y = CH_KQ + 2048
CH_X = CH_Y + 4096
CH_STRIDE = CH_X + 4096
AUX_GU = 4 * CH_STRIDE
AUX_DN = AUX_GU + 4096
AUX_CNT = AUX_DN + 16384
K2_LDS = AUX_CNT + 64


class LdsQ:
    def __init__(self, a):
        self.a = a
        self.n = 0
        self.done = 0

    def issue(self, text):
        self.a.i(text)
        self.n += 1
        return self.n

    def wait(self, seq):
        if seq <= self.done:
            return
        out = self.n - seq
        if out > 15:
            out = 15
        self.a.i('s_waitcnt lgkmcnt(%d)' % out)
        self.done = self.n - out


def argmax_keys(a, K, t):
    a.i('v_max3_u32 v%d, v%d, v%d, v%d' % (K, K, K + 1, K + 2))
    a.i('v_max3_u32 v%d, v%d, v%d, v%d' % (K + 3, K + 3, K + 4, K + 5))
    a.i('v_max3_u32 v%d, v%d, v%d, v%d' % (K + 6, K + 6, K + 7, K + 8))
    a.i('v_max3_u32 v%d, v%d, v%d, v%d' % (K + 9, K + 9, K + 10, K + 11))
    a.i('v_max3_u32 v%d, v%d, v%d, v%d' % (K + 12, K + 12, K + 13, K + 14))
    a.i('v_max3_u32 v%d, v%d, v%d, v%d' % (K, K, K + 3, K + 6))
    a.i('v_max3_u32 v%d, v%d, v%d, v%d' % (K + 9, K + 9, K + 12, K + 15))
    a.i('v_max_u32 v%d, v%d, v%d' % (K, K, K + 9))
    reduce1(a, K, t, 'v_max_u32')


def lds_signal(a, vaddr, vone, off):
    a.i('s_waitcnt lgkmcnt(0)')
    a.i('s_mov_b64 exec, 1')
    a.i('ds_add_u32 v%d, v%d offset:%d' % (vaddr, vone, off))
    a.i('s_mov_b64 exec, -1')


def lds_poll(a, vaddr, vt, off, target, lab, stmp):
    a.flush()
    a.label(lab)
    a.i('ds_read_b32 v%d, v%d offset:%d' % (vt, vaddr, off))
    a.i('s_waitcnt lgkmcnt(0)')
    a.i('v_readfirstlane_b32 s%d, v%d' % (stmp, vt))
    a.i('s_cmp_ge_u32 s%d, %d' % (stmp, target))
    a.i('s_cbranch_scc1 %s_done' % lab)
    a.i('s_sleep 1')
    a.i('s_branch %s' % lab)
    a.label(lab + '_done')
    a.flush()


def gen_k2(a):
    S_X, S_WS, S_DK, S_WG, S_WU, S_WD, S_OUT = 48, 52, 56, 60, 64, 68, 72
    a.label('k2_kernel')
    a.i('s_cmp_ge_u32 s2, 256')
    a.i('s_cbranch_scc1 k2_end')
    load_ptrs(a)
    a.i('v_lshrrev_b32 v2, 6, v0')
    a.i('v_and_b32 v1, 63, v0')
    a.i('v_readfirstlane_b32 s3, v2')
    a.i('s_and_b32 s4, s2, 7')
    a.i('s_lshr_b32 s5, s2, 3')
    a.i('s_lshl_b32 s6, s4, 5')
    a.i('s_add_u32 s6, s6, s5')
    a.i('s_waitcnt lgkmcnt(0)')
    srd(a, S_X, P_X, 0x400000)
    srd(a, S_WS, P_WS, WS_SIZE)
    srd(a, S_DK, P_DK, 2048)
    srd(a, S_WG, P_WG, 1024 * 3584 * 2)
    srd(a, S_WU, P_WU, 1024 * 3584 * 2)
    srd(a, S_WD, P_WD, 1024 * 3584 * 2)
    srd(a, S_OUT, P_OUT, 0x400000)
    stamp_init(a)
    a.i('s_cmp_ge_u32 s3, 4')
    a.flush()
    a.i('s_cbranch_scc1 k2_aux')

    AB, BB, ACC = 32, 160, 224
    a.i('s_lshl_b32 s7, s6, 2')
    a.i('s_add_u32 s7, s7, s3')
    a.i('s_mul_i32 s8, s7, %d' % KT_STRIDE)
    a.i('s_add_u32 s8, s8, 0x%x' % WS_KT)
    a.i('s_mul_i32 s9, s3, %d' % CH_STRIDE)
    a.i('v_lshlrev_b32 v2, 4, v1')
    a.i('v_sub_u32 v3, 1072, v2')
    a.i('v_and_b32 v4, 3, v1')
    a.i('v_lshlrev_b32 v4, 4, v4')
    a.i('v_sub_u32 v4, 48, v4')
    a.i('v_lshlrev_b32 v5, 3, v1')
    a.i('v_mov_b32 v6, 0')
    R1, R2, TC, KEY = 64, 72, 80, 96
    a.i('buffer_load_dwordx4 v[%d:%d], v3, s[%d:%d], s8 offen' % (R1, R1 + 3, S_WS, S_WS + 3))
    a.i('buffer_load_dwordx4 v[%d:%d], v3, s[%d:%d], s8 offen offset:16' % (R1 + 4, R1 + 7, S_WS, S_WS + 3))
    a.i('buffer_load_dwordx4 v[%d:%d], v4, s[%d:%d], s8 offen' % (R2, R2 + 3, S_WS, S_WS + 3))
    a.i('buffer_load_dwordx4 v[%d:%d], v4, s[%d:%d], s8 offen offset:16' % (R2 + 4, R2 + 7, S_WS, S_WS + 3))
    a.i('buffer_load_dwordx4 v[%d:%d], v5, s[%d:%d], s8 offen offset:%d' % (TC, TC + 3, S_WS, S_WS + 3, KT_TC))
    a.i('buffer_load_dword v29, v6, s[%d:%d], s8 offen offset:%d' % (S_WS, S_WS + 3, KT_INV))
    a.i('s_mov_b32 s10, 0x%x' % WS_KEYS)
    for q in range(4):
        a.i('buffer_load_dwordx4 v[%d:%d], v2, s[%d:%d], s10 offen offset:%d' % (KEY + 4 * q, KEY + 4 * q + 3, S_WS, S_WS + 3, 1024 * q))
    a.i('s_lshl_b32 s11, s6, 3')
    a.i('buffer_load_dwordx2 v[30:31], v6, s[%d:%d], s11 offen' % (S_DK, S_DK + 3))
    a.i('v_and_b32 v20, 15, v1')
    a.i('v_lshrrev_b32 v21, 4, v1')
    for r in range(4):
        a.i('v_mov_b32 v%d, 0' % (24 + r))
    a.i('v_add_u32 v22, s9, v2')
    a.i('v_mul_u32_u24 v23, %d, v1' % KN_COPY)
    a.i('v_add_u32 v23, s9, v23')
    a.i('s_mov_b32 exec_hi, 0')
    a.i('ds_write_b128 v22, v[24:27] offset:%d' % CH_XN)
    a.i('s_mov_b32 exec_lo, 0xff')
    a.i('ds_write_b128 v23, v[24:27] offset:%d' % CH_KN)
    a.i('s_mov_b64 exec, -1')
    a.i('v_and_b32 v2, 7, v20')
    a.i('v_mul_u32_u24 v2, %d, v2' % KN_COPY)
    a.i('v_lshrrev_b32 v3, 3, v20')
    a.i('v_sub_u32 v3, v3, v21')
    a.i('v_add_u32 v3, 3, v3')
    a.i('v_lshl_add_u32 v2, v3, 4, v2')
    a.i('s_add_u32 s12, s9, %d' % CH_KN)
    a.i('v_add_u32 v2, s12, v2')
    a.i('v_lshlrev_b32 v3, 5, v20')
    a.i('v_lshl_add_u32 v3, v21, 4, v3')
    a.i('s_add_u32 s12, s9, %d' % (CH_XN + 32))
    a.i('v_add_u32 v3, s12, v3')
    a.i('v_lshlrev_b32 v28, 5, v20')
    a.i('v_lshl_add_u32 v28, v21, 3, v28')
    a.i('s_add_u32 s12, s9, %d' % CH_Y)
    a.i('v_add_u32 v28, s12, v28')
    a.i('v_lshlrev_b32 v22, 3, v21')
    a.i('v_sub_u32 v22, v20, v22')
    a.i('v_mov_b32 v23, 514')
    a.i('v_mov_b32 v24, 0x01000100')
    a.i('s_add_u32 s12, s9, %d' % (CH_KQ - 8 * 0x4400))
    for (cp, vaddr, vsel) in ((17, 4, 8), (32, 5, 12), (33, 6, 16)):
        T = 112
        for e in range(8):
            a.i('v_add_u32 v%d, %d, v22' % (T + e, 16 + 32 * cp - e))
        for e in range(8):
            a.i('v_cvt_f32_u32 v%d, v%d' % (T + e, T + e))
        for q in range(4):
            a.i('v_cvt_pk_bf16_f32 v%d, v%d, v%d' % (T + 8 + q, T + 2 * q, T + 2 * q + 1))
        a.i('v_lshrrev_b32 v%d, 16, v%d' % (T + 12, T + 11))
        a.i('v_lshl_or_b32 v%d, v%d, 16, v%d' % (T + 13, T + 12, T + 12))
        for q in range(4):
            a.i('v_sub_u32 v%d, v%d, v%d' % (T + 8 + q, T + 8 + q, T + 13))
        for q in range(4):
            a.i('v_mad_u32_u24 v%d, v%d, v23, v24' % (vsel + q, T + 8 + q))
        a.i('v_lshlrev_b32 v%d, 3, v%d' % (vaddr, T + 12))
        a.i('v_add_u32 v%d, s12, v%d' % (vaddr, vaddr))
    a.i('v_lshlrev_b32 v22, 4, v1')
    a.i('s_add_u32 s12, s9, %d' % (CH_KN + 16))
    a.i('v_add_u32 v22, s12, v22')
    a.i('v_lshlrev_b32 v23, 5, v1')
    a.i('s_add_u32 s12, s9, %d' % CH_KQ)
    a.i('v_add_u32 v23, s12, v23')

    def build_kn(R, off):
        S, Rp, Sp = 112, 120, 128
        for i in range(7):
            a.i('v_alignbit_b32 v%d, v%d, v%d, 16' % (S + i, R + i + 1, R + i))
        for i in range(1, 7):
            a.i('v_mov_b32 v%d, v%d' % (Rp + i - 1, R + i))
        for i in range(1, 7):
            a.i('v_alignbit_b32 v%d, v%d, v%d, 16' % (Sp + i - 1, R + i + 1, R + i))
        for c, src in ((7, R), (5, Rp), (3, R + 2), (1, Rp + 2), (6, S), (4, Sp), (2, S + 2), (0, Sp + 2)):
            a.i('ds_write_b128 v22, v[%d:%d] offset:%d' % (src, src + 3, c * KN_COPY + off))
    a.i('s_waitcnt vmcnt(9)')
    stamp(a, 2)
    build_kn(R1, 0)
    a.i('s_waitcnt vmcnt(7)')
    a.i('s_mov_b64 exec, 15')
    build_kn(R2, 1024)
    a.i('s_mov_b64 exec, -1')
    a.i('s_waitcnt vmcnt(6)')
    a.i('v_mov_b32 v112, v%d' % TC)
    a.i('v_mov_b32 v113, v%d' % (TC + 1))
    a.i('v_alignbit_b32 v114, v%d, v%d, 16' % (TC + 1, TC))
    a.i('v_alignbit_b32 v115, v%d, v%d, 16' % (TC + 2, TC + 1))
    a.i('v_mov_b32 v116, v%d' % (TC + 1))
    a.i('v_mov_b32 v117, v%d' % (TC + 2))
    a.i('v_mov_b32 v118, v115')
    a.i('v_alignbit_b32 v119, v%d, v%d, 16' % (TC + 3, TC + 2))
    a.i('ds_write_b128 v23, v[112:115]')
    a.i('ds_write_b128 v23, v[116:119] offset:16')
    a.i('s_waitcnt vmcnt(1)')
    argmax_keys(a, KEY, KEY + 16)
    a.i('v_readfirstlane_b32 s13, v%d' % KEY)
    a.i('s_and_b32 s13, s13, 0x7ff')
    a.i('s_sub_u32 s13, 2047, s13')

    mf = []
    bseq = []
    nb = 0
    for phase in range(2):
        for D in range(8 if phase == 0 else 4):
            buf = nb % 2
            bseq.append((D, buf, len(mf)))
            nb += 1
            for C in range(4):
                Cg = C + 4 * phase
                if Cg + D > 7:
                    continue
                for cc in range(8):
                    mf.append((Cg + D, 8 * Cg + cc, 8 * D - cc, buf, cc))
    nm = len(mf)
    assert nm == 288
    first_useA, last_useA, last_acc = {}, {}, {}
    for m, (I, cp, b, buf, cc) in enumerate(mf):
        first_useA.setdefault(cp, m)
        last_useA[cp] = m
        last_acc[I] = m
    brange = []
    for k, (D, buf, start) in enumerate(bseq):
        end = (bseq[k + 1][2] if k + 1 < len(bseq) else nm) - 1
        brange.append((D, buf, start, end))

    def aslot(cp):
        C, cc = cp // 8, cp % 8
        return (C if C < 4 else 7 - C) * 8 + cc

    def areg(cp):
        return AB + 4 * aslot(cp)

    def breg(buf, cc):
        return BB + 32 * buf + 4 * cc
    ready = {}
    qt = [0]

    def far_params(cp):
        if cp < 32:
            return 4, 8, 64 * (cp - 17), True
        if cp == 32:
            return 5, 12, 0, True
        return 6, 16, 32 * (cp - 33), False

    def far_read(cp):
        t = 20 + 2 * (qt[0] % 4)
        qt[0] += 1
        vaddr, vsel, off, two = far_params(cp)
        if two:
            sq = q.issue('ds_read_b64 v[%d:%d], v%d offset:%d' % (t, t + 1, vaddr, off))
        else:
            sq = q.issue('ds_read_b32 v%d, v%d offset:%d' % (t, vaddr, off))
        farst[cp] = (t, sq)

    def far_perm(cp, k):
        t, sq = farst[cp]
        vaddr, vsel, off, two = far_params(cp)
        q.wait(sq)
        a.i('v_perm_b32 v%d, v%d, v%d, v%d' % (areg(cp) + k, t + 1 if two else t, t, vsel + k))
        if k == 3:
            ready[('A', cp)] = 0
    farst = {}
    q = LdsQ(a)
    a.i('s_waitcnt lgkmcnt(0)')
    for cp in (17, 18, 19):
        far_read(cp)
    for cp in range(17):
        ready[('A', cp)] = q.issue('ds_read_b128 v[%d:%d], v2 offset:%d' % (areg(cp), areg(cp) + 3, 64 * cp))
    for cp in range(17, 32):
        if cp + 3 < 32:
            far_read(cp + 3)
        for k in range(4):
            far_perm(cp, k)
    for r in range(32):
        a.i('v_mov_b32 v%d, 0' % (ACC + r))
    a.i('s_waitcnt vmcnt(0) lgkmcnt(0)')
    stamp(a, 3)
    q.done = q.n
    a.i('s_barrier')
    stamp(a, 4)

    tasks = []
    items = []
    for cp in range(32, 64):
        victim = 8 * (7 - cp // 8) + cp % 8
        items.append((last_useA[victim] + 1, 1, 'A', cp))
    for k in range(len(brange)):
        e = brange[k - 2][3] + 1 if k >= 2 else -1
        items.append((e, 0, 'B', k))
    for I in range(8):
        items.append((last_acc[I] + 3, 2, 'Y', I))
    items.sort()
    a_order = [x[3] for x in items if x[2] == 'A']
    nread = [0]
    for e, _, kind, x in items:
        if kind == 'A':
            pos = a_order.index(x)
            while nread[0] < min(len(a_order), pos + 3):
                tasks.append((-1, (lambda cp=a_order[nread[0]]: far_read(cp))))
                nread[0] += 1
            for k in range(4):
                tasks.append((e, (lambda cp=x, k=k: far_perm(cp, k))))
        elif kind == 'B':
            D, buf, st_, en_ = brange[x]
            for cc in range(8):
                def f(k=x, D=D, buf=buf, cc=cc):
                    b = 8 * D - cc
                    ready[('B', k, cc)] = q.issue('ds_read_b128 v[%d:%d], v3 offset:%d' % (breg(buf, cc), breg(buf, cc) + 3, 64 * (b + 7)))
                tasks.append((e, f))
        else:
            r = ACC + 4 * x
            for k in range(4):
                tasks.append((e, (lambda r=r, k=k: a.i('v_mul_f32 v%d, v29, v%d' % (r + k, r + k)))))
            tasks.append((e, (lambda r=r: a.i('v_cvt_pk_bf16_f32 v%d, v%d, v%d' % (r, r, r + 1)))))
            tasks.append((e, (lambda r=r: a.i('v_cvt_pk_bf16_f32 v%d, v%d, v%d' % (r + 1, r + 2, r + 3)))))
            tasks.append((e, (lambda r=r, I=x: q.issue('ds_write_b64 v28, v[%d:%d] offset:%d' % (r, r + 1, 512 * I)))))
    ti = 0
    SLOTS = 2
    for m, (I, cp, b, buf, cc) in enumerate(mf):
        k = [kk for kk, br in enumerate(brange) if br[2] <= m <= br[3]][0]
        while ('A', cp) not in ready or ('B', k, cc) not in ready:
            assert tasks[ti][0] <= m, (tasks[ti][0], m)
            tasks[ti][1]()
            ti += 1
        q.wait(max(ready[('A', cp)], ready[('B', k, cc)]))
        a.i('v_mfma_f32_16x16x32_f16 v[%d:%d], v[%d:%d], v[%d:%d], v[%d:%d]' % (
            ACC + 4 * I, ACC + 4 * I + 3, areg(cp), areg(cp) + 3, breg(buf, cc), breg(buf, cc) + 3, ACC + 4 * I, ACC + 4 * I + 3))
        n = 0
        while n < (8 if m == 0 else SLOTS) and ti < len(tasks) and tasks[ti][0] <= m:
            tasks[ti][1]()
            ti += 1
            n += 1
    while ti < len(tasks):
        tasks[ti][1]()
        ti += 1
    stamp(a, 5)
    a.i('v_mov_b32 v20, %d' % AUX_CNT)
    a.i('v_mov_b32 v21, 1')
    lds_signal(a, 20, 21, 0)
    a.i('v_lshlrev_b32 v2, 4, v0')
    a.i('v_lshlrev_b32 v3, 14, v0')
    a.i('v_add_u32 v4, 4096, v3')
    a.i('v_add_u32 v5, 8192, v3')
    a.i('v_add_u32 v6, 12288, v3')
    a.i('v_lshlrev_b32 v8, 16, v30')
    a.i('v_and_b32 v9, 0xffff0000, v30')
    a.i('v_lshlrev_b32 v10, 16, v31')
    a.i('v_and_b32 v11, 0xffff0000, v31')
    a.i('v_mov_b32 v12, 0x3f80')
    a.i('v_mov_b32 v13, 0x3f800000')
    XNR, XR, YR = 32, 48, 64
    a.i('v_add_u32 v7, %d, v2' % (2 * CH_STRIDE))
    for c in range(4):
        a.i('ds_read_b128 v[%d:%d], v%d offset:%d' % (XNR + 4 * c, XNR + 4 * c + 3, 2 if c < 2 else 7, (c % 2) * CH_STRIDE + CH_XN + 512))
    for c in range(4):
        a.i('ds_read_b128 v[%d:%d], v%d offset:%d' % (XR + 4 * c, XR + 4 * c + 3, 2 if c < 2 else 7, (c % 2) * CH_STRIDE + CH_X))
    XF, TA, XX, O = 96, 128, 160, 192
    a.i('s_waitcnt lgkmcnt(4)')
    for c in range(4):
        for qd in range(4):
            a.i('v_cvt_f32_f16 v%d, v%d' % (XF + 8 * c + 2 * qd, XNR + 4 * c + qd))
            a.i('v_cvt_f32_f16_sdwa v%d, v%d dst_sel:DWORD dst_unused:UNUSED_PAD src0_sel:WORD_1' % (XF + 8 * c + 2 * qd + 1, XNR + 4 * c + qd))
    for c in range(4):
        for e in range(8):
            a.i('v_mul_f32 v%d, v%d, v%d' % (TA + 8 * c + e, 8 + c, XF + 8 * c + e))
    for k in range(16):
        a.i('v_cvt_pk_bf16_f32 v%d, v%d, v%d' % (O + k, TA + 2 * k, TA + 2 * k + 1))
    for k in range(16):
        a.i('v_lshlrev_b32 v%d, 16, v%d' % (TA + 2 * k, O + k))
        a.i('v_and_b32 v%d, 0xffff0000, v%d' % (TA + 2 * k + 1, O + k))
    a.i('s_waitcnt lgkmcnt(0)')
    for k in range(16):
        a.i('v_lshlrev_b32 v%d, 16, v%d' % (XX + 2 * k, XR + k))
        a.i('v_and_b32 v%d, 0xffff0000, v%d' % (XX + 2 * k + 1, XR + k))
    stamp(a, 6)
    lds_poll(a, 20, 22, 0, 4, 'k2_cpoll', 14)
    stamp(a, 7)
    for c in range(4):
        a.i('ds_read_b128 v[%d:%d], v%d offset:%d' % (YR + 4 * c, YR + 4 * c + 3, 2 if c < 2 else 7, (c % 2) * CH_STRIDE + CH_Y))
    a.i('s_lshl_b32 s14, s13, 1')
    a.i('s_add_u32 s14, s14, %d' % CH_Y)
    a.i('v_and_b32 v22, 3, v1')
    a.i('v_mul_u32_u24 v23, %d, v22' % CH_STRIDE)
    a.i('v_add_u32 v23, s14, v23')
    a.i('ds_read_u16 v24, v23')
    a.i('v_lshlrev_b32 v22, 1, v22')
    a.i('s_add_u32 s15, s11, 0x%x' % WS_YR)
    a.i('s_waitcnt lgkmcnt(1)')
    for k in range(16):
        a.i('v_dot2_f32_bf16 v%d, v%d, v12, v%d' % (TA + 2 * k, YR + k, TA + 2 * k))
        a.i('v_dot2_f32_bf16 v%d, v%d, v13, v%d' % (TA + 2 * k + 1, YR + k, TA + 2 * k + 1))
    for k in range(16):
        a.i('v_cvt_pk_bf16_f32 v%d, v%d, v%d' % (O + k, TA + 2 * k, TA + 2 * k + 1))
    for k in range(16):
        a.i('v_dot2_f32_bf16 v%d, v%d, v12, v%d' % (XX + 2 * k, O + k, XX + 2 * k))
        a.i('v_dot2_f32_bf16 v%d, v%d, v13, v%d' % (XX + 2 * k + 1, O + k, XX + 2 * k + 1))
    for k in range(16):
        a.i('v_cvt_pk_bf16_f32 v%d, v%d, v%d' % (O + k, XX + 2 * k, XX + 2 * k + 1))
    for k in range(16):
        a.i('v_dot2_f32_bf16 v%d, v%d, v12, v%d' % (XF + 2 * k, O + k, XF + 2 * k))
        a.i('v_dot2_f32_bf16 v%d, v%d, v13, v%d' % (XF + 2 * k + 1, O + k, XF + 2 * k + 1))
    for e in range(8):
        a.i('v_cvt_pk_bf16_f32 v%d, v%d, v%d' % (O + 2 * e, XF + e, XF + 8 + e))
        a.i('v_cvt_pk_bf16_f32 v%d, v%d, v%d' % (O + 2 * e + 1, XF + 16 + e, XF + 24 + e))
        a.i('buffer_store_dwordx2 v[%d:%d], v%d, s[%d:%d], s11 offen offset:%d' % (O + 2 * e, O + 2 * e + 1, 3 + e // 2, S_OUT, S_OUT + 3, 2048 * (e % 2)))
    stamp(a, 8)
    stamp_flush(a, S_WS, 1)
    a.i('s_cmp_lg_u32 s3, 0')
    a.i('s_cbranch_scc1 k2_end')
    a.i('s_waitcnt lgkmcnt(0)')
    a.i('s_mov_b64 exec, 15')
    a.i('buffer_store_short v24, v22, s[%d:%d], s15 offen' % (S_WS, S_WS + 3))
    a.i('s_endpgm')

    a.label('k2_aux')
    a.flush()
    a.i('s_sub_u32 s3, s3, 4')
    a.i('v_subrev_u32 v2, 256, v0')
    a.i('v_lshlrev_b32 v3, 6, v2')
    a.i('s_lshl_b32 s7, s6, 14')
    a.i('s_mov_b32 s8, 0x%x' % WS_STATS)
    a.i('s_mov_b32 s10, 0x%x' % WS_KEYS)
    a.i('v_lshlrev_b32 v4, 4, v1')
    XB, ST, KEY = 8, 24, 40
    WG, WU, WD = 64, 96, 128
    for c in range(4):
        a.i('buffer_load_dwordx4 v[%d:%d], v3, s[%d:%d], s7 offen offset:%d' % (XB + 4 * c, XB + 4 * c + 3, S_WS, S_WS + 3, 16 * c))
    for c in range(4):
        a.i('buffer_load_dwordx4 v[%d:%d], v3, s[%d:%d], s8 offen offset:%d' % (ST + 4 * c, ST + 4 * c + 3, S_WS, S_WS + 3, 16 * c))
    for qq in range(4):
        a.i('buffer_load_dwordx4 v[%d:%d], v4, s[%d:%d], s10 offen offset:%d' % (KEY + 4 * qq, KEY + 4 * qq + 3, S_WS, S_WS + 3, 1024 * qq))
    a.i('s_mul_i32 s11, s4, 28')
    a.i('s_add_u32 s11, s11, s5')
    a.i('s_cmp_ge_u32 s5, 28')
    a.i('s_cselect_b32 s12, 0, 1')
    a.i('v_lshrrev_b32 v5, 1, v1')
    a.i('v_lshlrev_b32 v5, 3, v5')
    a.i('s_lshl_b32 s13, s3, 8')
    a.i('v_add_u32 v5, s13, v5')
    a.i('v_mul_u32_u24 v6, 7168, v5')
    a.i('v_and_b32 v7, 1, v1')
    a.i('v_lshl_add_u32 v6, v7, 4, v6')
    a.i('s_lshl_b32 s13, s11, 5')
    a.i('s_cmp_eq_u32 s12, 0')
    a.flush()
    a.i('s_cbranch_scc1 k2_aux_now')
    for i in range(8):
        a.i('buffer_load_dwordx4 v[%d:%d], v6, s[%d:%d], s13 offen nt' % (WG + 4 * i, WG + 4 * i + 3, S_WG, S_WG + 3))
        a.i('buffer_load_dwordx4 v[%d:%d], v6, s[%d:%d], s13 offen nt' % (WU + 4 * i, WU + 4 * i + 3, S_WU, S_WU + 3))
        if i < 7:
            a.i('s_add_u32 s13, s13, 7168')
    a.i('s_lshl_b32 s13, s11, 4')
    a.i('s_lshl_b32 s14, s3, 2')
    a.i('s_add_u32 s13, s13, s14')
    a.i('s_lshl_b32 s13, s13, 11')
    for r in range(4):
        a.i('buffer_load_dwordx4 v[%d:%d], v4, s[%d:%d], s13 offen offset:%d nt' % (WD + 8 * r, WD + 8 * r + 3, S_WD, S_WD + 3, 2048 * (r % 2)))
        a.i('buffer_load_dwordx4 v[%d:%d], v4, s[%d:%d], s13 offen offset:%d nt' % (WD + 8 * r + 4, WD + 8 * r + 7, S_WD, S_WD + 3, 2048 * (r % 2) + 1024))
        if r == 1:
            a.i('s_add_u32 s13, s13, 4096')
    a.i('s_waitcnt vmcnt(28)')
    a.i('s_branch k2_aux_stage')
    a.label('k2_aux_now')
    a.i('s_waitcnt vmcnt(4)')
    a.label('k2_aux_stage')
    a.flush()
    stamp(a, 2)
    a.i('v_mov_b32 v160, 0x3f80')
    a.i('v_mov_b32 v161, 0x3f800000')
    a.i('v_lshlrev_b32 v3, 4, v2')
    a.i('v_add_u32 v7, %d, v3' % (2 * CH_STRIDE))
    for r in range(8):
        a.i('v_sub_f32 v%d, 0, v%d' % (ST + 2 * r, ST + 2 * r))
    for c in range(4):
        a.i('ds_write_b128 v%d, v[%d:%d] offset:%d' % (3 if c < 2 else 7, XB + 4 * c, XB + 4 * c + 3, (c % 2) * CH_STRIDE + CH_X))
    E, PK = 164, 196
    for c in range(4):
        for qd in range(4):
            a.i('v_dot2_f32_bf16 v%d, v%d, v160, v%d' % (E + 8 * c + 2 * qd, XB + 4 * c + qd, ST + 4 * qd))
            a.i('v_dot2_f32_bf16 v%d, v%d, v161, v%d' % (E + 8 * c + 2 * qd + 1, XB + 4 * c + qd, ST + 4 * qd + 2))
    for k in range(16):
        a.i('v_cvt_pk_bf16_f32 v%d, v%d, v%d' % (PK + k, E + 2 * k, E + 2 * k + 1))
    for k in range(16):
        a.i('v_lshlrev_b32 v%d, 16, v%d' % (E + 2 * k, PK + k))
        a.i('v_and_b32 v%d, 0xffff0000, v%d' % (E + 2 * k + 1, PK + k))
    for c in range(4):
        for e in range(8):
            a.i('v_mul_f32 v%d, v%d, v%d' % (E + 8 * c + e, ST + 2 * e + 1, E + 8 * c + e))
    for k in range(16):
        a.i('v_cvt_pk_bf16_f32 v%d, v%d, v%d' % (PK + k, E + 2 * k, E + 2 * k + 1))
    for k in range(16):
        a.i('v_lshlrev_b32 v%d, 16, v%d' % (E + 2 * k, PK + k))
        a.i('v_and_b32 v%d, 0xffff0000, v%d' % (E + 2 * k + 1, PK + k))
    for k in range(16):
        a.i('v_cvt_pk_f16_f32 v%d, v%d, v%d' % (PK + k, E + 2 * k, E + 2 * k + 1))
    for c in range(4):
        a.i('ds_write_b128 v%d, v[%d:%d] offset:%d' % (3 if c < 2 else 7, PK + 4 * c, PK + 4 * c + 3, (c % 2) * CH_STRIDE + CH_XN + 512))
    a.i('v_mov_b32 v162, %d' % AUX_CNT)
    a.i('v_mov_b32 v164, 0')
    a.i('v_mov_b32 v165, 0')
    a.i('v_mov_b32 v166, 0')
    a.i('v_mov_b32 v167, 0')
    a.i('ds_write_b128 v162, v[164:167]')
    a.i('v_mov_b32 v163, 1')
    a.i('s_waitcnt lgkmcnt(0)')
    stamp(a, 3)
    a.i('s_barrier')
    stamp(a, 4)
    a.i('s_cmp_eq_u32 s12, 0')
    a.i('s_cbranch_scc1 k2_end')
    a.i('s_waitcnt vmcnt(24)')
    argmax_keys(a, KEY, KEY + 16)
    a.i('v_readfirstlane_b32 s14, v%d' % KEY)
    a.i('s_and_b32 s15, s14, 0x7ff')
    a.i('s_sub_u32 s15, 2047, s15')
    a.i('s_lshl_b32 s13, s15, 11')
    a.i('s_lshl_b32 s9, s15, 3')
    a.i('s_add_u32 s9, s9, 0x%x' % WS_STATS)
    a.i('v_lshlrev_b32 v5, 1, v5')
    a.i('v_mov_b32 v8, 0')
    a.i('buffer_load_dwordx4 v[12:15], v5, s[%d:%d], s13 offen' % (S_X, S_X + 3))
    a.i('buffer_load_dwordx2 v[10:11], v8, s[%d:%d], s9 offen' % (S_WS, S_WS + 3))
    a.i('s_waitcnt vmcnt(0)')
    stamp(a, 5)
    a.i('v_sub_f32 v10, 0, v10')
    for qd in range(4):
        a.i('v_dot2_f32_bf16 v%d, v%d, v160, v10' % (16 + 2 * qd, 12 + qd))
        a.i('v_dot2_f32_bf16 v%d, v%d, v161, v10' % (17 + 2 * qd, 12 + qd))
    for qd in range(4):
        a.i('v_cvt_pk_bf16_f32 v%d, v%d, v%d' % (24 + qd, 16 + 2 * qd, 17 + 2 * qd))
    for qd in range(4):
        a.i('v_lshlrev_b32 v%d, 16, v%d' % (16 + 2 * qd, 24 + qd))
        a.i('v_and_b32 v%d, 0xffff0000, v%d' % (17 + 2 * qd, 24 + qd))
    for e in range(8):
        a.i('v_mul_f32 v%d, v11, v%d' % (16 + e, 16 + e))
    for qd in range(4):
        a.i('v_cvt_pk_bf16_f32 v%d, v%d, v%d' % (24 + qd, 16 + 2 * qd, 17 + 2 * qd))
    for qd in range(4):
        a.i('v_and_b32 v%d, 0xffff, v%d' % (32 + 2 * qd, 24 + qd))
        a.i('v_lshrrev_b32 v%d, 16, v%d' % (33 + 2 * qd, 24 + qd))
        a.i('v_lshlrev_b32 v%d, 16, v%d' % (40 + 2 * qd, 24 + qd))
        a.i('v_and_b32 v%d, 0xffff0000, v%d' % (41 + 2 * qd, 24 + qd))
    a.i('s_cmp_lg_u32 s2, 0')
    a.flush()
    a.i('s_cbranch_scc1 k2_aux_nopub')
    a.i('s_mov_b32 s13, 0x%x' % WS_XNR)
    a.i('s_mov_b32 s9, 0x%x' % WS_XR)
    a.i('buffer_store_dwordx4 v[24:27], v5, s[%d:%d], s13 offen' % (S_WS, S_WS + 3))
    a.i('buffer_store_dwordx4 v[12:15], v5, s[%d:%d], s9 offen' % (S_WS, S_WS + 3))
    a.i('s_mov_b32 s9, 0x%x' % WS_SEL)
    a.i('v_mov_b32 v9, s14')
    a.i('buffer_store_dword v9, v8, s[%d:%d], s9 offen' % (S_WS, S_WS + 3))
    a.label('k2_aux_nopub')
    a.flush()
    GA = 164
    for i in range(8):
        for mtx, Wb in ((0, WG), (1, WU)):
            for d in range(4):
                for h in range(2):
                    acc = GA + 8 * mtx + 2 * d + h
                    a.i('v_dot2_f32_bf16 v%d, v%d, v%d, %s' % (acc, Wb + 4 * i + d, (32 if h == 0 else 40) + i, '0' if i == 0 else 'v%d' % acc))
    for k in range(8):
        a.i('v_permlane32_swap_b32 v%d, v%d' % (GA + k, GA + 8 + k))
    for k in range(8):
        a.i('v_add_f32 v%d, v%d, v%d' % (GA + k, GA + k, GA + 8 + k))
    for k in range(4):
        a.i('v_permlane16_swap_b32 v%d, v%d' % (GA + k, GA + 4 + k))
    for k in range(4):
        a.i('v_add_f32 v%d, v%d, v%d' % (GA + k, GA + k, GA + 4 + k))
    for r in (8, 4, 2):
        for k in range(4):
            a.i('v_add_f32 v%d, v%d, v%d row_ror:%d' % (GA + k, GA + k, GA + k, r))
    a.i('s_lshl_b32 s13, s3, 10')
    a.i('s_add_u32 s13, s13, %d' % AUX_GU)
    a.i('v_add_u32 v16, s13, v4')
    a.i('ds_write_b128 v16, v[%d:%d]' % (GA, GA + 3))
    lds_signal(a, 162, 163, 4)
    stamp(a, 6)
    lds_poll(a, 162, 17, 4, 4, 'k2_p1', 13)
    stamp(a, 7)
    a.i('v_add_u32 v16, %d, v4' % AUX_GU)
    for w in range(4):
        a.i('ds_read_b128 v[%d:%d], v16 offset:%d' % (180 + 4 * w, 183 + 4 * w, 1024 * w))
    a.i('s_waitcnt lgkmcnt(0)')
    for k in range(4):
        a.i('v_add_f32 v%d, v%d, v%d' % (180 + k, 180 + k, 184 + k))
        a.i('v_add_f32 v%d, v%d, v%d' % (188 + k, 188 + k, 192 + k))
    for k in range(4):
        a.i('v_add_f32 v%d, v%d, v%d' % (180 + k, 180 + k, 188 + k))
    a.i('v_cvt_pk_bf16_f32 v184, v180, v181')
    a.i('v_cvt_pk_bf16_f32 v185, v182, v183')
    a.i('v_lshlrev_b32 v180, 16, v184')
    a.i('v_and_b32 v181, 0xffff0000, v184')
    a.i('v_lshlrev_b32 v182, 16, v185')
    a.i('v_and_b32 v183, 0xffff0000, v185')
    for k in range(4):
        a.i('v_mov_b32 v%d, v%d' % (188 + k, 180 + k))
    for k in range(4):
        a.i('v_permlane32_swap_b32 v%d, v%d' % (180 + k, 188 + k))
    for k in range(4):
        a.i('v_mul_f32 v%d, %s, v%d' % (184 + k, fbits(-L2E_HI), 180 + k))
    for k in range(4):
        a.i('v_exp_f32 v%d, v%d' % (184 + k, 184 + k))
    for k in range(4):
        a.i('v_add_f32 v%d, 1.0, v%d' % (184 + k, 184 + k))
    for k in range(4):
        a.i('v_rcp_f32 v%d, v%d' % (184 + k, 184 + k))
    for k in range(4):
        a.i('v_mul_f32 v%d, v%d, v%d' % (180 + k, 180 + k, 184 + k))
    a.i('v_cvt_pk_bf16_f32 v184, v180, v181')
    a.i('v_cvt_pk_bf16_f32 v185, v182, v183')
    a.i('v_lshlrev_b32 v180, 16, v184')
    a.i('v_and_b32 v181, 0xffff0000, v184')
    a.i('v_lshlrev_b32 v182, 16, v185')
    a.i('v_and_b32 v183, 0xffff0000, v185')
    for k in range(4):
        a.i('v_mul_f32 v%d, v%d, v%d' % (180 + k, 180 + k, 188 + k))
    a.i('v_cvt_pk_bf16_f32 v184, v180, v181')
    a.i('v_cvt_pk_bf16_f32 v185, v182, v183')
    a.i('s_lshr_b32 s13, s3, 1')
    a.i('s_and_b32 s9, s3, 1')
    a.i('s_lshl_b32 s9, s9, 4')
    a.i('s_add_u32 s13, s13, s9')
    a.i('v_readlane_b32 s76, v184, s13')
    a.i('v_readlane_b32 s77, v185, s13')
    a.i('s_and_b32 s78, s76, 0xffff')
    a.i('s_lshl_b32 s79, s76, 16')
    a.i('s_lshr_b32 s80, s76, 16')
    a.i('s_and_b32 s81, s76, 0xffff0000')
    a.i('s_and_b32 s82, s77, 0xffff')
    a.i('s_lshl_b32 s83, s77, 16')
    a.i('s_lshr_b32 s84, s77, 16')
    a.i('s_and_b32 s85, s77, 0xffff0000')
    DA = 164
    for r in range(4):
        for d in range(8):
            for h in range(2):
                acc = DA + 2 * d + h
                a.i('v_dot2_f32_bf16 v%d, v%d, s%d, %s' % (acc, WD + 8 * r + d, 78 + 2 * r + h, '0' if r == 0 else 'v%d' % acc))
    a.i('s_lshl_b32 s13, s3, 12')
    a.i('s_add_u32 s13, s13, %d' % AUX_DN)
    a.i('v_lshlrev_b32 v16, 5, v1')
    a.i('v_add_u32 v16, s13, v16')
    a.i('ds_write_b128 v16, v[164:167]')
    a.i('ds_write_b128 v16, v[168:171] offset:16')
    a.i('ds_write_b128 v16, v[172:175] offset:2048')
    a.i('ds_write_b128 v16, v[176:179] offset:2064')
    lds_signal(a, 162, 163, 8)
    lds_poll(a, 162, 17, 8, 4, 'k2_p2', 13)
    stamp(a, 8)
    a.i('v_add_u32 v16, %d, v3' % AUX_DN)
    for w in range(4):
        a.i('ds_read_b128 v[%d:%d], v16 offset:%d' % (180 + 4 * w, 183 + 4 * w, 4096 * w))
    a.i('s_lshl_b32 s13, s11, 12')
    a.i('s_add_u32 s13, s13, 0x%x' % WS_PART)
    a.i('s_waitcnt lgkmcnt(0)')
    for k in range(4):
        a.i('v_add_f32 v%d, v%d, v%d' % (180 + k, 180 + k, 184 + k))
        a.i('v_add_f32 v%d, v%d, v%d' % (188 + k, 188 + k, 192 + k))
    for k in range(4):
        a.i('v_add_f32 v%d, v%d, v%d' % (180 + k, 180 + k, 188 + k))
    a.i('buffer_store_dwordx4 v[180:183], v3, s[%d:%d], s13 offen' % (S_WS, S_WS + 3))
    stamp(a, 9)
    stamp_flush(a, S_WS, 1)
    a.label('k2_end')
    a.i('s_endpgm')


def gen_k3(a):
    S_WS, S_DK, S_OUT = 48, 52, 56
    a.label('k3_kernel')
    a.i('s_cmp_ge_u32 s2, 64')
    a.i('s_cbranch_scc1 k3_end')
    load_ptrs(a)
    a.i('v_lshrrev_b32 v1, 2, v0')
    a.i('v_and_b32 v2, 3, v0')
    a.i('v_lshlrev_b32 v3, 12, v1')
    a.i('v_lshl_add_u32 v3, v2, 4, v3')
    a.i('v_lshlrev_b32 v4, 3, v2')
    a.i('v_mov_b32 v5, 0')
    a.i('s_lshl_b32 s4, s2, 6')
    a.i('s_add_u32 s4, s4, 0x%x' % WS_PART)
    a.i('s_lshl_b32 s5, s2, 5')
    a.i('s_waitcnt lgkmcnt(0)')
    srd(a, S_WS, P_WS, WS_SIZE)
    srd(a, S_DK, P_DK, 2048)
    srd(a, S_OUT, P_OUT, 0x400000)
    a.i('s_mov_b32 s6, 0x%x' % WS_SEL)
    a.i('buffer_load_dword v6, v5, s[%d:%d], s6 offen' % (S_WS, S_WS + 3))
    a.i('s_add_u32 s7, s5, 0x%x' % WS_YR)
    a.i('buffer_load_dwordx2 v[8:9], v4, s[%d:%d], s7 offen' % (S_WS, S_WS + 3))
    a.i('buffer_load_dwordx2 v[10:11], v4, s[%d:%d], s7 offen offset:%d' % (S_WS, S_WS + 3, WS_XNR - WS_YR))
    a.i('s_add_u32 s7, s5, 0x%x' % WS_XR)
    a.i('buffer_load_dwordx2 v[12:13], v4, s[%d:%d], s7 offen' % (S_WS, S_WS + 3))
    a.i('buffer_load_dwordx2 v[14:15], v4, s[%d:%d], s5 offen' % (S_DK, S_DK + 3))
    P = 32
    for i in range(14):
        a.i('buffer_load_dwordx4 v[%d:%d], v3, s[%d:%d], s4 offen' % (P + 4 * i, P + 4 * i + 3, S_WS, S_WS + 3))
        if i < 13:
            a.i('s_add_u32 s4, s4, 0x10000')
    a.i('s_waitcnt vmcnt(14)')
    a.i('v_readfirstlane_b32 s8, v6')
    a.i('s_and_b32 s9, s8, 0x7ff')
    a.i('s_sub_u32 s9, 2047, s9')
    a.i('s_lshl_b32 s9, s9, 11')
    a.i('s_add_u32 s9, s9, s5')
    a.i('v_and_b32 v6, 0xffff0000, v6')
    a.i('v_ashrrev_i32 v7, 31, v6')
    a.i('v_not_b32 v7, v7')
    a.i('v_or_b32 v7, 0x80000000, v7')
    a.i('v_xor_b32 v6, v6, v7')
    a.i('v_and_b32 v6, 0xffff0000, v6')
    a.i('v_mul_f32 v6, %s, v6' % fbits(-L2E_HI))
    a.i('v_exp_f32 v6, v6')
    a.i('v_add_f32 v6, 1.0, v6')
    a.i('v_rcp_f32 v6, v6')
    a.i('v_cvt_pk_bf16_f32 v6, v6, v6')
    a.i('v_lshlrev_b32 v6, 16, v6')
    for src, dst in ((8, 16), (10, 20), (12, 24), (14, 28)):
        for k in range(2):
            a.i('v_lshlrev_b32 v%d, 16, v%d' % (dst + 2 * k, src + k))
            a.i('v_and_b32 v%d, 0xffff0000, v%d' % (dst + 2 * k + 1, src + k))

    def rnd4(r):
        a.i('v_cvt_pk_bf16_f32 v8, v%d, v%d' % (r, r + 1))
        a.i('v_cvt_pk_bf16_f32 v9, v%d, v%d' % (r + 2, r + 3))
        a.i('v_lshlrev_b32 v%d, 16, v8' % r)
        a.i('v_and_b32 v%d, 0xffff0000, v8' % (r + 1))
        a.i('v_lshlrev_b32 v%d, 16, v9' % (r + 2))
        a.i('v_and_b32 v%d, 0xffff0000, v9' % (r + 3))
    for k in range(4):
        a.i('v_mul_f32 v%d, v%d, v%d' % (28 + k, 28 + k, 20 + k))
    rnd4(28)
    for k in range(4):
        a.i('v_add_f32 v%d, v%d, v%d' % (28 + k, 28 + k, 16 + k))
    rnd4(28)
    for k in range(4):
        a.i('v_add_f32 v%d, v%d, v%d' % (28 + k, 28 + k, 24 + k))
    rnd4(28)
    a.i('s_waitcnt vmcnt(0)')
    for st in (7,):
        for i in range(7):
            for k in range(4):
                a.i('v_add_f32 v%d, v%d, v%d' % (P + 4 * i + k, P + 4 * i + k, P + 4 * (i + 7) + k))
    for (x, y) in ((0, 1), (2, 3), (4, 5), (0, 2), (4, 6), (0, 4)):
        for k in range(4):
            a.i('v_add_f32 v%d, v%d, v%d' % (P + 4 * x + k, P + 4 * x + k, P + 4 * y + k))
    for k in range(4):
        a.i('v_mov_b32 v%d, v%d' % (P + 4 + k, P + k))
    for k in range(4):
        a.i('v_permlane32_swap_b32 v%d, v%d' % (P + k, P + 4 + k))
    for k in range(4):
        a.i('v_add_f32 v%d, v%d, v%d' % (P + k, P + k, P + 4 + k))
    for k in range(4):
        a.i('v_mov_b32 v%d, v%d' % (P + 4 + k, P + k))
    for k in range(4):
        a.i('v_permlane16_swap_b32 v%d, v%d' % (P + k, P + 4 + k))
    for k in range(4):
        a.i('v_add_f32 v%d, v%d, v%d' % (P + k, P + k, P + 4 + k))
    for r in (8, 4):
        for k in range(4):
            a.i('v_add_f32 v%d, v%d, v%d row_ror:%d' % (P + k, P + k, P + k, r))
    rnd4(P)
    for k in range(4):
        a.i('v_mul_f32 v%d, v6, v%d' % (P + k, P + k))
    rnd4(P)
    for k in range(4):
        a.i('v_add_f32 v%d, v%d, v%d' % (P + k, P + k, 20 + k))
    rnd4(P)
    for k in range(4):
        a.i('v_add_f32 v%d, v%d, v%d' % (P + k, P + k, 28 + k))
    a.i('v_cvt_pk_bf16_f32 v8, v%d, v%d' % (P, P + 1))
    a.i('v_cvt_pk_bf16_f32 v9, v%d, v%d' % (P + 2, P + 3))
    a.i('s_mov_b64 exec, 15')
    a.i('buffer_store_dwordx2 v[8:9], v4, s[%d:%d], s9 offen' % (S_OUT, S_OUT + 3))
    a.label('k3_end')
    a.i('s_endpgm')


def kd(name, vgpr, sgpr=102):
    acc = (vgpr + 3) // 4 * 4
    return '''.amdhsa_kernel %s
  .amdhsa_next_free_vgpr %d
  .amdhsa_next_free_sgpr %d
  .amdhsa_accum_offset %d
  .amdhsa_group_segment_fixed_size 0
  .amdhsa_kernarg_size 120
  .amdhsa_user_sgpr_count 2
  .amdhsa_user_sgpr_kernarg_segment_ptr 1
  .amdhsa_system_sgpr_workgroup_id_x 1
  .amdhsa_float_denorm_mode_32 3
.end_amdhsa_kernel
''' % (name, vgpr, sgpr, acc)


def main():
    hdr = open('cdna_kernels/%s.s.ref' % NAME).read().split('\n')
    head = [l for l in hdr if l.startswith(';') and '@launch' not in l and 'Override launch' not in l and 'grid=ceil' not in l]
    out = '\n'.join(head) + '\n'
    out += '; @launch kernel=k1_kernel grid=(256,1,1) block=(512,1,1) lds=%d\n' % K1_LDS
    out += '; @launch kernel=k2_kernel grid=(256,1,1) block=(512,1,1) lds=%d\n' % K2_LDS
    out += '; @launch kernel=k3_kernel grid=(64,1,1) block=(64,1,1) lds=0\n'
    out += '.amdgcn_target "amdgcn-amd-amdhsa--gfx950"\n.text\n'
    for nm, fn in (('k1_kernel', gen_k1), ('k2_kernel', gen_k2), ('k3_kernel', gen_k3)):
        a = Asm()
        out += '.globl %s\n.p2align 8\n.type %s,@function\n' % (nm, nm)
        fn(a)
        out += a.text()
        sys.stderr.write('%s: %d lines, %d nop states inserted\n' % (nm, len(a.lines), a.nops_inserted))
    out += '.section .rodata,"a"\n'
    for nm, v in (('k1_kernel', 240), ('k2_kernel', 256), ('k3_kernel', 96)):
        out += '.p2align 6\n' + kd(nm, v)
    dst = sys.argv[1] if len(sys.argv) > 1 else 'cdna_kernels/%s.s' % NAME
    open(dst, 'w').write(out)


if __name__ == '__main__':
    main()
```

```python
import sys, struct, os
sys.path.insert(0, os.path.dirname(__file__))
from asmlib import Asm

NAME = 'parallel_sum__ssm_conv_s4d__moe_arch_mod__prompt'

WS_YT = 0x000000
WS_STATS = 0x400000
WS_KEYS = 0x404000
WS_SEL = 0x405000
WS_YR = 0x406000
WS_XNR = 0x406800
WS_XR = 0x407000
WS_PT = 0x408000
WS_KT = 0xE00000
KT_STRIDE = 2048
KT_C3 = 1104
KT_C4 = 1616
KT_ES = 1936
KT_INV = 2032
WS_PART = 0x600000
WS_GUP = 0x5c0000
WS_XN = 0xA00000
WS_SIZE = 0x10000000
NSL = 224


def fbits(x):
    return '0x%08x' % struct.unpack('<I', struct.pack('<f', x))[0]


L2E_HI = struct.unpack('<f', struct.pack('<f', 1.4426950408889634))[0]
L2E_LO = 1.4426950408889634 - L2E_HI
I2PI_HI = struct.unpack('<f', struct.pack('<f', 0.15915494309189535))[0]
I2PI_LO = 0.15915494309189535 - I2PI_HI


DIAG = bool(os.environ.get('DIAG'))
EXP = os.environ.get('EXP', '')
OUTF = os.environ.get('OUTF', '')
XNLF = os.environ.get('XNLF', '')
K1SF = os.environ.get('K1SF', '')
WS_DIAG = 0x700000


def stamp(a, slot, rt=False):
    if not DIAG:
        return
    a.i('s_waitcnt lgkmcnt(0)')
    a.i('%s s[98:99]' % ('s_memrealtime' if rt else 's_memtime'))
    a.i('s_waitcnt lgkmcnt(0)')
    a.i('s_mov_b32 s%d, s98' % (86 + slot))


def stamp_init(a):
    if not DIAG:
        return
    for k in range(12):
        a.i('s_mov_b32 s%d, 0' % (86 + k))
    stamp(a, 0, True)
    stamp(a, 1)


def stamp_flush(a, S_WS, kern):
    if not DIAG:
        return
    a.i('s_mov_b64 exec, -1')
    a.i('s_waitcnt vmcnt(0)')
    stamp(a, 10)
    stamp(a, 11, True)
    a.flush()
    a.i('v_mov_b32 v9, 0')
    for k in range(12):
        a.i('v_writelane_b32 v9, s%d, %d' % (86 + k, k))
    a.i('v_lshlrev_b32 v8, 2, v0')
    a.i('s_lshl_b32 s98, s2, 12')
    a.i('s_add_u32 s98, s98, 0x%x' % (WS_DIAG + kern * 0x100000))
    a.i('buffer_store_dword v9, v8, s[%d:%d], s98 offen' % (S_WS, S_WS + 3))


def srd(a, d, lo, size):
    a.i('s_mov_b32 s%d, s%d' % (d, lo))
    a.i('s_and_b32 s%d, s%d, 0xffff' % (d + 1, lo + 1))
    a.i('s_mov_b32 s%d, 0x%x' % (d + 2, size))
    a.i('s_mov_b32 s%d, 0x20000' % (d + 3))


def load_ptrs(a):
    a.i('s_load_dwordx16 s[16:31], s[0:1], 0')
    a.i('s_load_dwordx8 s[32:39], s[0:1], 64')
    a.i('s_load_dwordx4 s[40:43], s[0:1], 96')
    a.i('s_load_dwordx2 s[44:45], s[0:1], 112')
P_X, P_LA, P_AI, P_CR, P_CI, P_DT, P_DK = 16, 18, 20, 22, 24, 26, 28
P_WR, P_WG, P_WU, P_WD, P_OUT, P_DBG, P_WS = 32, 34, 36, 38, 40, 42, 44


def row_allreduce(a, v, op='v_add_f32'):
    for r in (8, 4, 2, 1):
        a.i('%s v%d, v%d, v%d row_ror:%d' % (op, v, v, v, r))


def reduce2(a, va, vb, vt, op='v_add_f32'):
    a.i('v_permlane32_swap_b32 v%d, v%d' % (va, vb))
    a.i('%s v%d, v%d, v%d' % (op, va, va, vb))
    a.i('v_mov_b32 v%d, v%d' % (vt, va))
    a.i('v_permlane16_swap_b32 v%d, v%d' % (va, vt))
    a.i('%s v%d, v%d, v%d' % (op, va, va, vt))
    row_allreduce(a, va, op)


def reduce1(a, va, vt, op='v_add_f32'):
    a.i('v_mov_b32 v%d, v%d' % (vt, va))
    reduce2(a, va, vt, vt, op) if False else None
    a.i('v_permlane32_swap_b32 v%d, v%d' % (va, vt))
    a.i('%s v%d, v%d, v%d' % (op, va, va, vt))
    a.i('v_mov_b32 v%d, v%d' % (vt, va))
    a.i('v_permlane16_swap_b32 v%d, v%d' % (va, vt))
    a.i('%s v%d, v%d, v%d' % (op, va, va, vt))
    row_allreduce(a, va, op)


def exp_acc(a, vs, t0, t1, s_hi, s_lo):
    for v, x, y in zip(vs, t0, t1):
        a.i('v_mul_f32 v%d, s%d, v%d' % (x, s_hi, v))
    for v, x, y in zip(vs, t0, t1):
        a.i('v_rndne_f32 v%d, v%d' % (x, x))
    for v, x, y in zip(vs, t0, t1):
        a.i('v_fma_f32 v%d, v%d, s%d, -v%d' % (y, v, s_hi, x))
    for v, x, y in zip(vs, t0, t1):
        a.i('v_fma_f32 v%d, v%d, s%d, v%d' % (y, v, s_lo, y))
    for v, x, y in zip(vs, t0, t1):
        a.i('v_exp_f32 v%d, v%d' % (y, y))
    for v, x, y in zip(vs, t0, t1):
        a.i('v_cvt_i32_f32 v%d, v%d' % (x, x))
    for v, x, y in zip(vs, t0, t1):
        a.i('v_ldexp_f32 v%d, v%d, v%d' % (v, y, x))


K1_LN_LDS = 18432
K1_KG_ROW = 528
K1_KG_LDS = 53 * K1_KG_ROW
K1_KG0 = K1_LN_LDS
K1_CNT = K1_KG0 + 4 * K1_KG_LDS
K1_LDS = K1_CNT + 32


def gen_k1(a):
    S_X, S_WR, S_WS, S_LA, S_AI, S_CR, S_CI, S_DT, S_WG, S_WU = 48, 52, 56, 60, 64, 68, 72, 76, 80, 4
    a.label('k1_kernel')
    a.i('s_cmp_ge_u32 s2, 256')
    a.i('s_cbranch_scc1 k1_end')
    load_ptrs(a)
    a.i('v_lshrrev_b32 v2, 6, v0')
    a.i('v_and_b32 v1, 63, v0')
    a.i('v_readfirstlane_b32 s3, v2')
    a.i('s_waitcnt lgkmcnt(0)')
    srd(a, S_WS, P_WS, WS_SIZE)
    stamp_init(a)
    a.i('s_cmp_ge_u32 s3, 12')
    a.flush()
    a.i('s_cbranch_scc1 k1_P')
    a.i('s_cmp_ge_u32 s3, 4')
    a.i('s_cbranch_scc1 k1_kgen')

    srd(a, S_X, P_X, 0x400000)
    srd(a, S_WR, P_WR, 2048)
    A, B, W = 8, 16, 24
    a.i('v_lshlrev_b32 v2, 4, v1')
    a.i('s_lshl_b32 s4, s2, 3')
    a.i('s_lshl_b32 s5, s3, 1')
    a.i('s_add_u32 s4, s4, s5')
    a.i('s_lshl_b32 s5, s4, 11')
    a.i('s_add_u32 s6, s5, 2048')
    a.i('buffer_load_dwordx4 v[8:11], v2, s[%d:%d], s5 offen nt' % (S_X, S_X + 3))
    a.i('buffer_load_dwordx4 v[12:15], v2, s[%d:%d], s5 offen offset:1024 nt' % (S_X, S_X + 3))
    a.i('buffer_load_dwordx4 v[16:19], v2, s[%d:%d], s6 offen nt' % (S_X, S_X + 3))
    a.i('buffer_load_dwordx4 v[20:23], v2, s[%d:%d], s6 offen offset:1024 nt' % (S_X, S_X + 3))
    a.i('buffer_load_dwordx4 v[24:27], v2, s[%d:%d], 0 offen' % (S_WR, S_WR + 3))
    a.i('buffer_load_dwordx4 v[28:31], v2, s[%d:%d], 0 offen offset:1024' % (S_WR, S_WR + 3))
    a.i('v_mov_b32 v35, %d' % K1_CNT)
    for r in range(4):
        a.i('v_mov_b32 v%d, 0' % (40 + r))
    a.i('s_mov_b64 exec, 1')
    a.i('ds_write_b128 v35, v[40:43]')
    a.i('ds_write_b128 v35, v[40:43] offset:16')
    a.i('s_mov_b64 exec, -1')
    a.i('s_waitcnt lgkmcnt(0)')
    a.i('s_barrier')
    for r in range(4):
        a.i('v_mov_b32 v%d, -1' % (40 + r))
    a.i('s_lshl_b32 s7, s2, 9')
    a.i('s_lshl_b32 s8, s3, 7')
    a.i('s_add_u32 s7, s7, s8')
    a.i('s_add_u32 s7, s7, 0x%x' % WS_GUP)
    a.i('s_mov_b64 exec, 0xff')
    a.i('buffer_store_dwordx4 v[40:43], v2, s[%d:%d], s7 offen' % (S_WS, S_WS + 3))
    a.i('s_mov_b64 exec, -1')
    a.i('v_mul_u32_u24 v3, 144, v1')
    a.i('s_lshl_b32 s7, s3, 2')
    a.i('v_add_u32 v3, s7, v3')
    a.i('v_add_u32 v4, 9216, v3')
    a.i('v_lshrrev_b32 v5, 3, v0')
    a.i('v_add_u32 v5, v5, v0')
    a.i('v_lshlrev_b32 v5, 4, v5')
    a.i('v_lshrrev_b32 v6, 2, v0')
    a.i('v_lshlrev_b32 v6, 14, v6')
    a.i('v_and_b32 v7, 3, v0')
    a.i('v_lshl_add_u32 v6, v7, 4, v6')
    a.i('s_mov_b32 s8, 0x05040100')
    a.i('s_mov_b32 s9, 0x07060302')
    a.i('v_mov_b32 v32, 0x3f80')
    a.i('v_mov_b32 v33, 0x3f800000')
    a.i('v_mov_b32 v34, 0x3f803f80')
    a.i('v_mov_b32 v7, 1')
    a.i('s_lshl_b32 s10, s2, 6')
    a.i('s_add_u32 s10, s10, 0x%x' % WS_XN)
    a.i('s_waitcnt vmcnt(3)')
    stamp(a, 2)
    a.i('v_dot2_f32_bf16 v36, v%d, v34, 0' % A)
    a.i('v_dot2_f32_bf16 v37, v%d, v34, 0' % B)
    for i in range(1, 8):
        a.i('v_dot2_f32_bf16 v36, v%d, v34, v36' % (A + i))
        a.i('v_dot2_f32_bf16 v37, v%d, v34, v37' % (B + i))
    reduce2(a, 36, 37, 38)
    a.i('v_mul_f32 v36, %s, v36' % fbits(-1.0 / 1024))
    a.i('v_cvt_pk_bf16_f32 v39, 0, v36')
    a.i('v_xor_b32 v38, 0x80000000, v39')
    a.i('v_readlane_b32 s14, v39, 0')
    a.i('v_readlane_b32 s15, v39, 32')
    a.i('v_sub_f32 v36, v39, v36')
    for i in range(8):
        a.i('v_dot2_f32_bf16 v%d, v%d, v32, s14' % (64 + 2 * i, A + i))
        a.i('v_dot2_f32_bf16 v%d, v%d, v33, s14' % (65 + 2 * i, A + i))
    for i in range(8):
        a.i('v_dot2_f32_bf16 v%d, v%d, v32, s15' % (80 + 2 * i, B + i))
        a.i('v_dot2_f32_bf16 v%d, v%d, v33, s15' % (81 + 2 * i, B + i))
    a.i('v_mul_f32 v60, v64, v64')
    a.i('v_mul_f32 v61, v80, v80')
    a.i('v_mul_f32 v62, v65, v65')
    a.i('v_mul_f32 v63, v81, v81')
    for i in range(2, 16, 2):
        a.i('v_fmac_f32 v60, v%d, v%d' % (64 + i, 64 + i))
        a.i('v_fmac_f32 v61, v%d, v%d' % (80 + i, 80 + i))
        a.i('v_fmac_f32 v62, v%d, v%d' % (65 + i, 65 + i))
        a.i('v_fmac_f32 v63, v%d, v%d' % (81 + i, 81 + i))
    a.i('v_add_f32 v60, v60, v62')
    a.i('v_add_f32 v61, v61, v63')
    a.i('v_mul_f32 v36, v36, v36')
    reduce2(a, 60, 61, 62)
    a.i('v_mov_b32 v61, %s' % fbits(1.0 / 1024))
    a.i('v_fma_f32 v60, v60, v61, -v36')
    a.i('v_max_f32 v60, 0, v60')
    a.i('v_cvt_pk_bf16_f32 v60, 0, v60')
    a.i('v_add_f32 v60, %s, v60' % fbits(1e-5))
    a.i('v_cvt_pk_bf16_f32 v60, 0, v60')
    a.i('v_sqrt_f32 v60, v60')
    a.i('v_cvt_pk_bf16_f32 v60, 0, v60')
    a.i('v_rcp_f32 v39, v60')
    for i in range(32):
        a.i('v_cvt_pk_bf16_f32 v%d, 0, v%d' % (64 + i, 64 + i))
    a.i('v_readlane_b32 s14, v39, 0')
    a.i('v_readlane_b32 s15, v39, 32')
    for i in range(32):
        a.i('v_mul_f32 v%d, s%d, v%d' % (64 + i, 14 if i < 16 else 15, 64 + i))
    for i in range(16):
        a.i('v_cvt_pk_bf16_f32 v%d, v%d, v%d' % (96 + i, 64 + 2 * i, 65 + 2 * i))
    a.i('s_waitcnt vmcnt(1)')
    a.i('v_dot2_f32_bf16 v60, v96, v%d, 0' % W)
    a.i('v_dot2_f32_bf16 v61, v104, v%d, 0' % W)
    for i in range(1, 8):
        a.i('v_dot2_f32_bf16 v60, v%d, v%d, v60' % (96 + i, W + i))
        a.i('v_dot2_f32_bf16 v61, v%d, v%d, v61' % (104 + i, W + i))
    for i in range(16):
        a.i('v_lshlrev_b32 v%d, 16, v%d' % (64 + 2 * i, 96 + i))
        a.i('v_and_b32 v%d, 0xffff0000, v%d' % (65 + 2 * i, 96 + i))
    for i in range(8):
        t = 40 + 2 * i
        a.i('v_cvt_pk_f16_f32 v%d, v%d, v%d' % (t, 64 + 2 * i, 80 + 2 * i))
        a.i('v_cvt_pk_f16_f32 v%d, v%d, v%d' % (t + 1, 65 + 2 * i, 81 + 2 * i))
        a.i('ds_write2_b32 v%d, v%d, v%d offset0:%d offset1:%d' % (3 if i < 4 else 4, t, t + 1, 8 * (i % 4), 8 * (i % 4) + 4))
    lds_signal(a, 35, 7, 0)
    stamp(a, 3)
    reduce2(a, 60, 61, 62)
    a.i('v_cvt_pk_bf16_f32 v60, 0, v60')
    a.i('v_ashrrev_i32 v61, 31, v60')
    a.i('v_or_b32 v61, 0x80000000, v61')
    a.i('v_xor_b32 v60, v60, v61')
    a.i('v_and_b32 v60, 0xffff0000, v60')
    a.i('v_lshrrev_b32 v62, 5, v1')
    a.i('s_sub_u32 s14, 2047, s4')
    a.i('v_sub_u32 v61, s14, v62')
    a.i('v_or_b32 v60, v60, v61')
    a.i('v_readlane_b32 s14, v60, 0')
    a.i('v_readlane_b32 s15, v60, 32')
    a.i('v_lshlrev_b32 v62, 3, v62')
    a.i('s_lshl_b32 s5, s4, 3')
    a.i('s_add_u32 s5, s5, 0x%x' % WS_STATS)
    a.i('s_max_u32 s14, s14, s15')
    a.i('s_lshl_b32 s6, s4, 1')
    a.i('s_add_u32 s6, s6, 0x%x' % WS_KEYS)
    a.i('v_mov_b32 v60, s14')
    a.i('s_mov_b32 exec_lo, 1')
    a.i('s_mov_b32 exec_hi, 1')
    a.i('buffer_store_dwordx2 v[38:39], v62, s[%d:%d], s5 offen' % (S_WS, S_WS + 3))
    a.i('s_mov_b32 exec_hi, 0')
    a.i('buffer_store_dword v60, v62, s[%d:%d], s6 offen' % (S_WS, S_WS + 3))
    a.i('s_mov_b64 exec, -1')
    lds_poll(a, 35, 36, 0, 4, 'k1_lnp', 14)
    stamp(a, 4)
    for q in range(4):
        a.i('ds_read_b128 v[%d:%d], v5 offset:%d' % (64 + 4 * q, 67 + 4 * q, q * 4608))
    for q in range(4):
        a.i('s_waitcnt lgkmcnt(%d)' % (3 - q))
        a.i('buffer_store_dwordx4 v[%d:%d], v6, s[%d:%d], s10 offen %s' % (64 + 4 * q, 67 + 4 * q, S_WS, S_WS + 3, K1SF))
        if q < 3:
            a.i('s_add_u32 s10, s10, 0x100000')
    stamp(a, 5)
    stamp_flush(a, S_WS, 0)
    a.i('s_endpgm')

    a.label('k1_P')
    a.flush()
    srd(a, S_WG, P_WG, 1024 * 3584 * 2)
    srd(a, S_WU, P_WU, 1024 * 3584 * 2)
    a.i('s_and_b32 s8, s2, 7')
    a.i('s_lshr_b32 s9, s2, 3')
    a.i('s_sub_u32 s3, s3, 12')
    a.i('s_lshl_b32 s12, s9, 5')
    a.i('s_lshl_b32 s13, s3, 3')
    a.i('s_add_u32 s12, s12, s13')
    a.i('s_mul_i32 s12, s12, 7168')
    a.i('s_mul_i32 s13, s8, 896')
    a.i('s_add_u32 s12, s12, s13')
    a.i('v_lshlrev_b32 v3, 4, v1')
    a.i('s_cmp_lg_u32 s2, 0')
    a.i('s_cbranch_scc1 k1_nopt')
    a.i('s_lshr_b32 s14, 0x3412, 0')
    a.i('s_lshl_b32 s15, s3, 2')
    a.i('s_lshr_b32 s14, s14, s15')
    a.i('s_and_b32 s14, s14, 15')
    a.i('s_cmp_eq_u32 s3, 1')
    a.i('s_cselect_b32 s15, -4, -8')
    a.i('s_add_u32 s15, s15, s14')
    a.i('s_lshl_b32 s14, s14, 1')
    a.i('v_lshrrev_b32 v4, 4, v1')
    a.i('v_lshlrev_b32 v4, 3, v4')
    a.i('v_and_b32 v5, 15, v1')
    a.i('v_sub_u32 v4, v4, v5')
    a.i('v_add_u32 v4, s15, v4')
    a.i('v_mov_b32 v6, 0x3c00')
    a.i('v_mov_b32 v7, 0x3c000000')
    for e in range(8):
        a.i('v_add_u32 v8, %d, v4' % e)
        a.i('v_cmp_ge_u32 vcc, s14, v8')
        a.i('v_cndmask_b32 v%d, 0, v%d, vcc' % (16 + e, 6 + (e % 2)))
    for dd in range(4):
        a.i('v_or_b32 v%d, v%d, v%d' % (12 + dd, 16 + 2 * dd, 17 + 2 * dd))
    a.i('s_lshl_b32 s14, s3, 10')
    a.i('s_add_u32 s14, s14, 0x%x' % WS_PT)
    a.i('buffer_store_dwordx4 v[12:15], v3, s[%d:%d], s14 offen' % (S_WS, S_WS + 3))
    a.label('k1_nopt')
    a.flush()
    a.i('s_barrier')
    a.i('s_mov_b32 exec_hi, 0x00ffffff')
    PF = int(os.environ.get('PF', '6'))
    for i in range(int(os.environ.get('PFN', '6'))):
        if 2 * i >= PF:
            a.i('s_waitcnt vmcnt(%d)' % (PF - 2))
        a.i('buffer_load_dwordx4 v[%d:%d], v3, s[%d:%d], s12 offen nt' % (8 + 8 * i, 11 + 8 * i, S_WG, S_WG + 3))
        a.i('buffer_load_dwordx4 v[%d:%d], v3, s[%d:%d], s12 offen nt' % (12 + 8 * i, 15 + 8 * i, S_WU, S_WU + 3))
        if i < 7:
            a.i('s_add_u32 s12, s12, 7168')
    stamp(a, 2)
    stamp_flush(a, S_WS, 0)
    a.i('s_endpgm')

    a.label('k1_kgen')
    a.flush()
    srd(a, S_LA, P_LA, 0x40000)
    srd(a, S_AI, P_AI, 0x40000)
    srd(a, S_CR, P_CR, 0x40000)
    srd(a, S_CI, P_CI, 0x40000)
    srd(a, S_DT, P_DT, 2048)
    a.i('s_and_b32 s13, s3, 3')
    a.i('s_and_b32 s4, s2, 7')
    a.i('s_lshl_b32 s4, s4, 5')
    a.i('s_lshr_b32 s5, s2, 3')
    a.i('s_add_u32 s4, s4, s5')
    a.i('s_lshl_b32 s4, s4, 2')
    a.i('s_add_u32 s4, s4, s13')
    a.i('s_lshl_b32 s5, s4, 8')
    a.i('s_lshl_b32 s6, s4, 1')
    a.i('v_lshlrev_b32 v2, 2, v1')
    a.i('v_mov_b32 v3, 0')
    a.i('buffer_load_ushort v12, v3, s[%d:%d], s6 offen' % (S_DT, S_DT + 3))
    a.i('buffer_load_dword v8, v2, s[%d:%d], s5 offen nt' % (S_LA, S_LA + 3))
    a.i('buffer_load_dword v9, v2, s[%d:%d], s5 offen nt' % (S_AI, S_AI + 3))
    a.i('buffer_load_dword v10, v2, s[%d:%d], s5 offen nt' % (S_CR, S_CR + 3))
    a.i('buffer_load_dword v11, v2, s[%d:%d], s5 offen nt' % (S_CI, S_CI + 3))
    a.i('s_barrier')
    a.i('s_mov_b32 s8, %s' % fbits(L2E_HI))
    a.i('s_mov_b32 s9, %s' % fbits(L2E_LO))
    a.i('s_mov_b32 s10, %s' % fbits(I2PI_HI))
    a.i('s_mov_b32 s11, %s' % fbits(I2PI_LO))
    a.i('s_mul_i32 s7, s13, %d' % K1_KG_LDS)
    a.i('s_add_u32 s7, s7, %d' % K1_KG0)
    a.i('v_lshlrev_b32 v4, 3, v1')
    a.i('v_add_u32 v4, s7, v4')
    a.i('s_lshl_b32 s12, s13, 2')
    a.i('s_add_u32 s12, s12, %d' % (K1_CNT + 4))
    a.i('v_mov_b32 v31, s12')
    a.i('s_mul_i32 s5, s4, %d' % KT_STRIDE)
    a.i('s_add_u32 s5, s5, 0x%x' % WS_KT)
    a.i('s_waitcnt vmcnt(2)')
    stamp(a, 2)
    a.i('v_lshlrev_b32 v12, 16, v12')
    a.i('v_lshlrev_b32 v14, 16, v8')
    a.i('v_and_b32 v15, 0xffff0000, v8')
    exp_acc(a, [12, 14, 15], [22, 23, 24], [25, 26, 27], 8, 9)
    a.i('v_cvt_pk_bf16_f32 v12, 0, v12')
    a.i('v_cvt_pk_bf16_f32 v14, 0, v14')
    a.i('v_cvt_pk_bf16_f32 v15, 0, v15')
    a.i('v_lshlrev_b32 v16, 16, v9')
    a.i('v_and_b32 v17, 0xffff0000, v9')
    for r in range(14, 18):
        a.i('v_mul_f32 v%d, v12, v%d' % (r, r))
    a.i('v_mul_f32 v14, %s, v14' % fbits(-L2E_HI))
    a.i('v_mul_f32 v15, %s, v15' % fbits(-L2E_HI))
    for j in range(2):
        a.i('v_mul_f32 v%d, s10, v%d' % (22 + j, 16 + j))
    for j in range(2):
        a.i('v_fma_f32 v%d, v%d, s10, -v%d' % (24 + j, 16 + j, 22 + j))
    for j in range(2):
        a.i('v_fma_f32 v%d, v%d, s11, v%d' % (24 + j, 16 + j, 24 + j))
    for j in range(2):
        a.i('v_rndne_f32 v%d, v%d' % (26 + j, 22 + j))
    for j in range(2):
        a.i('v_sub_f32 v%d, v%d, v%d' % (22 + j, 22 + j, 26 + j))
    for j in range(2):
        a.i('v_add_f32 v%d, v%d, v%d' % (16 + j, 22 + j, 24 + j))

    def direct(pairs):
        for n, (p, e) in enumerate(pairs):
            pf = fbits(float(p))
            for j in range(2):
                a.i('v_mul_f32 v%d, %s, v%d' % (80 + 4 * n + j, pf, 14 + j))
                a.i('v_mul_f32 v%d, %s, v%d' % (82 + 4 * n + j, pf, 16 + j))
        for n, (p, e) in enumerate(pairs):
            for j in range(2):
                a.i('v_fract_f32 v%d, v%d' % (82 + 4 * n + j, 82 + 4 * n + j))
                a.i('v_exp_f32 v%d, v%d' % (80 + 4 * n + j, 80 + 4 * n + j))
        for n, (p, e) in enumerate(pairs):
            for j in range(2):
                a.i('v_cos_f32 v%d, v%d' % (e + j, 82 + 4 * n + j))
                a.i('v_sin_f32 v%d, v%d' % (e + 2 + j, 82 + 4 * n + j))
        for n, (p, e) in enumerate(pairs):
            a.i('v_pk_mul_f32 v[%d:%d], v[%d:%d], v[%d:%d]' % (e, e + 1, e, e + 1, 80 + 4 * n, 81 + 4 * n))
            a.i('v_pk_mul_f32 v[%d:%d], v[%d:%d], v[%d:%d]' % (e + 2, e + 3, e + 2, e + 3, 80 + 4 * n, 81 + 4 * n))
    E1, E8, E64, E256, E2, E4 = 40, 44, 48, 52, 56, 60
    tmpc = [0]

    def cmuls(lst):
        ts = []
        for _ in lst:
            ts.append(80 + 4 * (tmpc[0] % 4))
            tmpc[0] += 1
        for (d, x, y), t in zip(lst, ts):
            a.i('v_pk_mul_f32 v[%d:%d], v[%d:%d], v[%d:%d]' % (t, t + 1, x, x + 1, y, y + 1))
            a.i('v_pk_mul_f32 v[%d:%d], v[%d:%d], v[%d:%d]' % (t + 2, t + 3, x, x + 1, y + 2, y + 3))
        for (d, x, y), t in zip(lst, ts):
            a.i('v_pk_fma_f32 v[%d:%d], v[%d:%d], v[%d:%d], v[%d:%d] neg_lo:[1,0,0] neg_hi:[1,0,0]' % (d, d + 1, x + 2, x + 3, y + 2, y + 3, t, t + 1))
            a.i('v_pk_fma_f32 v[%d:%d], v[%d:%d], v[%d:%d], v[%d:%d]' % (d + 2, d + 3, x + 2, x + 3, y, y + 1, t + 2, t + 3))
    outc = [0]

    def emit(x, row, neg):
        o = 96 + 2 * (outc[0] % 8)
        outc[0] += 1
        n = '-' if neg else ''
        a.i('v_cvt_pk_f16_f32 v%d, v%d, %sv%d' % (o, x, n, x + 2))
        a.i('v_cvt_pk_f16_f32 v%d, v%d, %sv%d' % (o + 1, x + 1, n, x + 3))
        a.i('ds_write_b64 v4, v[%d:%d] offset:%d' % (o, o + 1, row * K1_KG_ROW))
    a.i('s_cmp_ge_u32 s3, 8')
    a.flush()
    a.i('s_cbranch_scc1 k1_KA')

    for r in range(4):
        a.i('v_mov_b32 v%d, 0' % (100 + r))
    a.i('v_lshlrev_b32 v5, 4, v1')
    a.i('buffer_store_dwordx4 v[100:103], v5, s[%d:%d], s5 offen' % (S_WS, S_WS + 3))
    a.i('s_mov_b32 exec_hi, 0x7fffffff')
    a.i('buffer_store_dwordx4 v[100:103], v5, s[%d:%d], s5 offen offset:1024' % (S_WS, S_WS + 3))
    a.i('s_mov_b64 exec, -1')
    direct([(8, E8), (64, 68)])
    stamp(a, 3)
    F = [64, 68, 72, 76]
    a.i('v_mov_b32 v96, 0x3c00')
    a.i('v_mov_b32 v97, 0x3c00')
    a.i('ds_write_b64 v4, v[96:97] offset:%d' % (21 * K1_KG_ROW))
    outc[0] = 1
    cmuls([(72, 68, 68)])
    emit(E8, 21 + 1, False)
    emit(68, 21 + 8, False)
    cmuls([(76, 72, 68), (64, E8, E8)])
    emit(72, 21 + 16, False)
    cmuls([(68, 68, E8), (72, 72, E8)])
    emit(76, 21 + 24, False)
    emit(64, 21 + 2, False)
    cmuls([(76, 76, E8)])
    emit(68, 21 + 9, False)
    emit(72, 21 + 17, False)
    emit(76, 21 + 25, False)
    for i in range(2, 8):
        if i < 7:
            cmuls([(F[0], F[0], E8), (F[1], F[1], E8), (F[2], F[2], E8), (F[3], F[3], E8)])
            emit(F[0], 21 + i + 1, False)
        else:
            cmuls([(F[1], F[1], E8), (F[2], F[2], E8), (F[3], F[3], E8)])
        for qq in range(1, 4):
            emit(F[qq], 21 + 8 * qq + i, False)
    a.i('v_and_b32 v5, 31, v1')
    a.i('v_lshrrev_b32 v6, 5, v1')
    a.i('v_min_u32 v7, 20, v5')
    a.i('v_mul_u32_u24 v7, %d, v7' % K1_KG_ROW)
    a.i('v_lshl_add_u32 v7, v6, 4, v7')
    a.i('v_add_u32 v7, s7, v7')
    a.i('v_mul_u32_u24 v13, %d, v5' % K1_KG_ROW)
    a.i('v_lshl_add_u32 v13, v6, 4, v13')
    a.i('s_add_u32 s12, s7, %d' % (21 * K1_KG_ROW))
    a.i('v_add_u32 v13, s12, v13')
    a.i('s_waitcnt lgkmcnt(0)')
    stamp(a, 4)
    ACC = 112
    FB, FA = 16, 80
    a.i('v_mov_b32 v14, v31')
    for s in range(16):
        a.i('ds_read_b128 v[%d:%d], v13 offset:%d' % (FB + 4 * s, FB + 4 * s + 3, 32 * s))
    a.i('v_lshlrev_b32 v8, 4, v5')
    a.i('v_lshl_add_u32 v9, v6, 3, v8')
    a.i('v_sub_u32 v9, 1080, v9')
    a.i('v_sub_u32 v10, 560, v8')
    a.i('v_sub_u32 v11, 48, v8')
    a.i('v_lshlrev_b32 v12, 2, v5')
    a.i('v_lshlrev_b32 v13, 1, v5')
    lds_poll(a, 14, 15, 0, 1, 'k1_kap', 14)
    stamp(a, 5)
    for s in range(8):
        a.i('ds_read_b128 v[%d:%d], v7 offset:%d' % (FA + 4 * s, FA + 4 * s + 3, 32 * s))
    for s in range(16):
        a.i('s_waitcnt lgkmcnt(%d)' % (7 if s < 8 else 15 - s))
        f = FA + 4 * (s % 8)
        a.i('v_mfma_f32_32x32x16_f16 v[%d:%d], v[%d:%d], v[%d:%d], %s' % (ACC, ACC + 15, f, f + 3, FB + 4 * s, FB + 4 * s + 3, '0' if s == 0 else 'v[%d:%d]' % (ACC, ACC + 15)))
        if s < 8:
            a.i('ds_read_b128 v[%d:%d], v7 offset:%d' % (f, f + 3, 32 * (s + 8)))
    stamp(a, 6)
    D = ACC
    a.i('v_mov_b32 v17, 0')
    a.i('v_cmp_ne_u32 vcc, 33, v1')
    a.i('v_mov_b32 v17, v%d wave_shl:1' % (D + 4))
    a.i('v_cvt_pk_f16_f32 v40, v%d, v%d' % (D + 3, D + 2))
    a.i('v_cvt_pk_f16_f32 v41, v%d, v%d' % (D + 1, D + 0))
    a.i('buffer_store_dwordx2 v[40:41], v9, s[%d:%d], s5 offen' % (S_WS, S_WS + 3))
    a.i('v_cvt_pk_f16_f32 v44, v17, v%d' % (D + 7))
    a.i('v_cvt_pk_f16_f32 v45, v%d, v%d' % (D + 6, D + 6))
    a.i('v_cvt_pk_f16_f32 v46, v%d, v%d' % (D + 6, D + 5))
    a.i('v_cvt_pk_f16_f32 v47, v%d, v%d' % (D + 4, D + 4))
    a.i('v_cvt_pk_f16_f32 v48, v17, v17')
    a.i('v_cvt_pk_f16_f32 v49, v%d, v%d' % (D + 5, D + 5))
    a.i('v_cvt_pk_f16_f32 v50, v%d, v%d' % (D + 5, D + 4))
    a.i('v_mov_b32 v51, v47')
    a.i('v_cndmask_b32 v48, 0, v48, vcc')
    a.i('v_cvt_pk_f16_f32 v52, v%d, v%d' % (D + 4, D + 5))
    a.i('v_cvt_pk_f16_f32 v53, v%d, v%d' % (D + 6, D + 7))
    a.i('v_cvt_pk_f16_f32 v54, v%d, v%d' % (D + 8, D + 9))
    a.i('v_cvt_pk_f16_f32 v55, v%d, v%d' % (D + 10, D + 11))
    W_ = (S_WS, S_WS + 3)
    a.i('s_mov_b32 exec_hi, 0')
    a.i('buffer_store_dwordx4 v[44:47], v10, s[%d:%d], s5 offen' % W_)
    a.i('buffer_store_short_d16_hi v54, v13, s[%d:%d], s5 offen offset:%d' % (W_ + (KT_C4 + 2 * (29 + 32),)))
    a.i('buffer_store_short v55, v13, s[%d:%d], s5 offen offset:%d' % (W_ + (KT_C4 + 2 * (29 + 64),)))
    a.i('buffer_store_short_d16_hi v55, v13, s[%d:%d], s5 offen offset:%d' % (W_ + (KT_C4 + 2 * (29 + 96),)))
    a.i('s_mov_b32 exec_lo, -2')
    a.i('buffer_store_short v54, v13, s[%d:%d], s5 offen offset:%d' % (W_ + (KT_C4 + 2 * 29,)))
    a.i('s_mov_b32 exec_lo, 1')
    a.i('buffer_store_short v54, v3, s[%d:%d], s5 offen offset:%d' % (W_ + (KT_C3 + 2 * 184,)))
    a.i('buffer_store_short v54, v3, s[%d:%d], s5 offen offset:%d' % (W_ + (KT_ES + 54,)))
    a.i('buffer_store_short v54, v3, s[%d:%d], s5 offen offset:%d' % (W_ + (KT_ES + 56,)))
    a.i('s_mov_b32 exec_lo, 0')
    a.i('s_mov_b32 exec_hi, -1')
    a.i('buffer_store_dword v53, v12, s[%d:%d], s5 offen offset:%d' % (W_ + (KT_C3 + 240,)))
    a.i('s_mov_b32 exec_hi, -4')
    a.i('buffer_store_dword v52, v12, s[%d:%d], s5 offen offset:%d' % (W_ + (KT_C3 + 112,)))
    a.i('s_mov_b32 exec_hi, 3')
    a.i('buffer_store_dwordx4 v[48:51], v11, s[%d:%d], s5 offen' % W_)
    a.i('s_mov_b32 exec_hi, 1')
    a.i('buffer_store_short v54, v3, s[%d:%d], s5 offen offset:%d' % (W_ + (KT_C4 + 2 * 157,)))
    stamp(a, 7)
    stamp_flush(a, S_WS, 0)
    a.i('s_endpgm')

    a.label('k1_KA')
    a.flush()
    a.i('s_waitcnt vmcnt(0)')
    a.i('v_lshlrev_b32 v18, 16, v10')
    a.i('v_and_b32 v19, 0xffff0000, v10')
    a.i('v_lshlrev_b32 v20, 16, v11')
    a.i('v_and_b32 v21, 0xffff0000, v11')
    for r in range(18, 22):
        a.i('v_mul_f32 v%d, v12, v%d' % (r, r))
    a.i('v_add_f32 v28, abs(v18), abs(v19)')
    a.i('v_add_f32 v29, abs(v20), abs(v21)')
    a.i('v_add_f32 v28, v28, v29')
    direct([(1, E1), (256, E256)])
    reduce1(a, 28, 29)
    cmuls([(E2, E1, E1)])
    a.i('v_lshrrev_b32 v28, 23, v28')
    a.i('v_add_u32 v28, 1, v28')
    a.i('v_max_u32 v28, 20, v28')
    a.i('v_min_u32 v28, 255, v28')
    a.i('v_sub_u32 v29, 268, v28')
    a.i('v_lshlrev_b32 v29, 23, v29')
    a.i('v_subrev_u32 v30, 13, v28')
    a.i('v_lshlrev_b32 v30, 23, v30')
    cmuls([(E4, E2, E2)])
    stamp(a, 3)
    G, H, T1, T2 = 64, 68, 72, 76
    a.i('v_mul_f32 v64, v29, v18')
    a.i('v_mul_f32 v65, v29, v19')
    a.i('v_mul_f32 v66, v29, v20')
    a.i('v_mul_f32 v67, v29, v21')
    G2 = 44
    emit(G, 0, True)
    cmuls([(H, G, E1), (G2, G, E256)])
    emit(H, 1, True)
    emit(G2, 8, True)
    cmuls([(H, H, E1), (T1, G2, E2), (G, G2, E256)])
    emit(H, 2, True)
    emit(T1, 9, True)
    emit(G, 12, True)
    cmuls([(H, H, E1), (T1, T1, E2), (T2, G, E4), (G2, G, E256)])
    emit(H, 3, True)
    emit(T1, 10, True)
    emit(T2, 13, True)
    emit(G2, 14, True)
    cmuls([(H, H, E1), (T1, T1, E2), (T2, G2, E4), (G, G2, E256)])
    emit(H, 4, True)
    emit(T1, 11, True)
    emit(T2, 15, True)
    emit(G, 16, True)
    for k in range(3):
        cmuls([(H, H, E1), (G, G, E256)])
        emit(H, 5 + k, True)
        emit(G, 17 + k, True)
    cmuls([(G, G, E256)])
    emit(G, 20, True)
    a.i('v_mov_b32 v29, 1')
    lds_signal(a, 31, 29, 0)
    a.i('s_mov_b64 exec, 1')
    a.i('buffer_store_dword v30, v3, s[%d:%d], s5 offen offset:%d' % (S_WS, S_WS + 3, KT_INV))
    stamp(a, 4)
    stamp_flush(a, S_WS, 0)
    a.label('k1_end')
    a.i('s_endpgm')


CH_XN = 0
CH_KN = 4608
KN_COPY = 1088
CH_STRIDE = CH_KN + 8 * KN_COPY + 16
AUX_W = 4 * CH_STRIDE
AUX_XS = AUX_W + 65536
AUX_Z = AUX_XS + 512
AUX_HS = AUX_Z + 512
AUX_CNT = AUX_HS + 64
K2_LDS = AUX_CNT + 32
WD_RS = 544


class LdsQ:
    def __init__(self, a):
        self.a = a
        self.n = 0
        self.done = 0

    def issue(self, text):
        self.a.i(text)
        self.n += 1
        return self.n

    def wait(self, seq):
        if seq <= self.done:
            return
        out = self.n - seq
        if out > 15:
            out = 15
        self.a.i('s_waitcnt lgkmcnt(%d)' % out)
        self.done = self.n - out


class Sched:
    def __init__(self, a):
        self.a = a
        self.ops = []

    @staticmethod
    def R(base, n=4):
        return set(range(base, base + n))

    def mfma(self, text, reads, writes):
        self.ops.append(dict(k='m', t=[text], r=set(reads), w=set(writes)))

    def lds_read(self, text, reads, writes, lead):
        self.ops.append(dict(k='l', t=[text], r=set(reads), w=set(writes), lead=lead))

    def lds_write(self, texts, reads, lead=0):
        self.ops.append(dict(k='w', t=list(texts), r=set(reads), w=set(), lead=lead))

    def valu(self, text, reads, writes, lead):
        self.ops.append(dict(k='v', t=[text], r=set(reads), w=set(writes), lead=lead))

    def run(self, cap=2, mdist=6):
        a = self.a
        nm = sum(1 for o in self.ops if o['k'] == 'm')
        buckets = {i: [] for i in range(-1, nm)}
        vcount = {i: 0 for i in range(-1, nm)}
        placed = []
        mpos = 0
        mlist = []
        lastw_pos = -1
        for o in self.ops:
            if o['k'] == 'm':
                o['pos'] = mpos
                mlist.append(o)
                placed.append(o)
                mpos += 1
                continue
            lb = -1
            for p in placed:
                raw = p['w'] & o['r']
                if raw or (p['r'] & o['w']) or (p['w'] & o['w']):
                    pp = p['pos']
                    if p['k'] == 'm' and (raw or (p['w'] & o['w'])):
                        pp += mdist
                    if p['k'] == 'l' and raw:
                        pp += 8
                    lb = max(lb, pp)
            if o['k'] == 'w':
                lb = max(lb, lastw_pos)
            dl = mpos - 1
            if o['k'] in ('v', 'w') and o.get('lead', 0) < 0:
                dl = nm - 1
            t = min(max(lb, mpos - 1 - max(o['lead'], 0)), max(dl, min(lb, nm - 1))) if o['lead'] >= 0 else min(lb, nm - 1)
            if o['k'] == 'v':
                while vcount[t] >= cap and t < dl:
                    t += 1
                vcount[t] += 1
            if t > dl:
                t = dl
            for p in placed:
                if (p['w'] & o['r']) or (p['r'] & o['w']) or (p['w'] & o['w']):
                    assert p['pos'] <= t, (p, o, t)
            o['pos'] = t
            if o['k'] == 'w':
                lastw_pos = t
            buckets[t].append(o)
            placed.append(o)
        q = LdsQ(a)
        pend = {}

        def emit(o):
            need = 0
            for r in (o['r'] | o['w']):
                if r in pend:
                    need = max(need, pend[r])
            if need:
                q.wait(need)
            if o['k'] == 'l':
                sq = q.issue(o['t'][0])
                for r in o['w']:
                    pend[r] = sq
            elif o['k'] == 'w':
                for t in o['t']:
                    if t.startswith('ds_'):
                        q.issue(t)
                    else:
                        a.i(t)
            else:
                a.i(o['t'][0])
        for o in buckets[-1]:
            emit(o)
        for i, m in enumerate(mlist):
            emit(m)
            for o in buckets[i]:
                emit(o)


def argmax_keys(a, K, t):
    a.i('v_max3_u32 v%d, v%d, v%d, v%d' % (K, K, K + 1, K + 2))
    a.i('v_max3_u32 v%d, v%d, v%d, v%d' % (K + 3, K + 3, K + 4, K + 5))
    a.i('v_max3_u32 v%d, v%d, v%d, v%d' % (K + 6, K + 6, K + 7, K + 8))
    a.i('v_max3_u32 v%d, v%d, v%d, v%d' % (K + 9, K + 9, K + 10, K + 11))
    a.i('v_max3_u32 v%d, v%d, v%d, v%d' % (K + 12, K + 12, K + 13, K + 14))
    a.i('v_max3_u32 v%d, v%d, v%d, v%d' % (K, K, K + 3, K + 6))
    a.i('v_max3_u32 v%d, v%d, v%d, v%d' % (K + 9, K + 9, K + 12, K + 15))
    a.i('v_max_u32 v%d, v%d, v%d' % (K, K, K + 9))
    reduce1(a, K, t, 'v_max_u32')


def lds_signal(a, vaddr, vone, off):
    a.i('s_waitcnt lgkmcnt(0)')
    a.i('s_mov_b64 exec, 1')
    a.i('ds_add_u32 v%d, v%d offset:%d' % (vaddr, vone, off))
    a.i('s_mov_b64 exec, -1')


def lds_poll(a, vaddr, vt, off, target, lab, stmp):
    a.flush()
    a.label(lab)
    a.i('ds_read_b32 v%d, v%d offset:%d' % (vt, vaddr, off))
    a.i('s_waitcnt lgkmcnt(0)')
    a.i('v_readfirstlane_b32 s%d, v%d' % (stmp, vt))
    a.i('s_cmp_ge_u32 s%d, %d' % (stmp, target))
    a.i('s_cbranch_scc1 %s_done' % lab)
    a.i('s_sleep 1')
    a.i('s_branch %s' % lab)
    a.label(lab + '_done')
    a.flush()


def unpack2(a, dlo, dhi, src):
    a.i('v_lshlrev_b32 v%d, 16, v%d' % (dlo, src))
    a.i('v_and_b32 v%d, 0xffff0000, v%d' % (dhi, src))


def gen_k2(a):
    S_X, S_WS, S_DK, S_WG, S_WU, S_WD, S_OUT, S_DBG = 48, 52, 56, 60, 64, 68, 72, 76
    a.label('k2_kernel')
    a.i('s_cmp_ge_u32 s2, 256')
    a.i('s_cbranch_scc1 k2_end')
    load_ptrs(a)
    a.i('v_lshrrev_b32 v2, 6, v0')
    a.i('v_and_b32 v1, 63, v0')
    a.i('v_readfirstlane_b32 s3, v2')
    a.i('s_and_b32 s4, s2, 7')
    a.i('s_lshr_b32 s5, s2, 3')
    a.i('s_lshl_b32 s6, s4, 5')
    a.i('s_add_u32 s6, s6, s5')
    a.i('s_mul_i32 s7, s4, 7')
    a.i('s_lshr_b32 s8, s5, 2')
    a.i('s_add_u32 s7, s7, s8')
    a.i('s_and_b32 s8, s5, 3')
    a.i('s_waitcnt lgkmcnt(0)')
    srd(a, S_X, P_X, 0x400000)
    srd(a, S_WS, P_WS, WS_SIZE)
    srd(a, S_DK, P_DK, 2048)
    srd(a, S_WG, P_WG, 1024 * 3584 * 2)
    srd(a, S_WU, P_WU, 1024 * 3584 * 2)
    srd(a, S_WD, P_WD, 1024 * 3584 * 2)
    srd(a, S_OUT, P_OUT, 0x400000)
    srd(a, S_DBG, P_DBG, 256)
    stamp_init(a)
    a.i('s_cmp_ge_u32 s3, 8')
    a.flush()
    a.i('s_cbranch_scc1 k2_E')
    a.i('s_cmp_ge_u32 s3, 4')
    a.i('s_cbranch_scc1 k2_G')

    VB, VY, VA, QT = 2, 3, 4, 6
    ACC = 8
    P3 = (40, 44)
    P4 = (48, 52)
    C3 = {(2, 0): 56, (2, 1): 60, (3, 0): 64, (3, 1): 68, (4, 0): 72, (4, 1): 76}
    C4 = {4: 80, 5: 84, 6: 88, 7: 92}
    D3, D4 = 96, 112
    FR = [(120, 124, 128), (132, 136, 140)]
    WN = {-8: 144, -16: 148, 0: 152}
    F16, FS = 160, 164
    free_order = [92, 88, 84, 156, 48, 52, 152, 112, 116, 80, 72, 76, 128, 140, 64, 68]
    need_order = [7, 15, 6, 14, 5, 13, 4, 12, 3, 11, 2, 10, 1, 9, 0, 8]
    AR = {cp: r for cp, r in zip(need_order, free_order)}
    AR[16] = F16
    RING = [40, 44, 144, 148, 96, 100, 104, 108]
    a.i('s_lshl_b32 s9, s6, 2')
    a.i('s_add_u32 s9, s9, s3')
    a.i('s_lshl_b32 s10, s9, 11')
    a.i('s_add_u32 s10, s10, 0x%x' % WS_KT)
    a.i('s_lshl_b32 s15, s9, 12')
    a.i('s_mul_i32 s9, s3, %d' % CH_STRIDE)
    a.i('v_lshlrev_b32 v24, 4, v1')
    a.i('v_sub_u32 v25, 1072, v24')
    a.i('v_and_b32 v36, 15, v1')
    a.i('v_lshrrev_b32 v37, 4, v1')
    a.i('v_lshlrev_b32 v38, 3, v37')
    a.i('v_sub_u32 v38, v38, v36')
    a.i('v_lshlrev_b32 v26, 1, v38')
    a.i('v_add_u32 v26, 30, v26')
    a.i('v_lshlrev_b32 v39, 2, v37')
    a.i('v_sub_u32 v39, v36, v39')
    a.i('v_add_u32 v39, 12, v39')
    a.i('v_lshlrev_b32 v27, 3, v39')
    a.i('v_lshlrev_b32 v23, 2, v39')
    a.i('v_mov_b32 v28, 0')
    a.i('s_mov_b32 s13, 0x%x' % WS_PT)
    R1 = 96
    W_ = (S_WS, S_WS + 3)
    a.i('buffer_load_dwordx4 v[%d:%d], v25, s[%d:%d], s10 offen' % ((R1, R1 + 3) + W_))
    a.i('buffer_load_dwordx4 v[%d:%d], v25, s[%d:%d], s10 offen offset:16' % ((R1 + 4, R1 + 7) + W_))
    for r in range(4):
        a.i('v_mov_b32 v%d, 0' % (32 + r))
    a.i('v_add_u32 v29, s9, v24')
    a.i('v_mul_u32_u24 v30, %d, v1' % KN_COPY)
    a.i('v_add_u32 v30, s9, v30')
    a.i('v_mov_b32 v31, %d' % AUX_CNT)
    a.i('s_mov_b32 exec_lo, 1')
    a.i('s_mov_b32 exec_hi, 0')
    a.i('ds_write_b128 v31, v[32:35]')
    a.i('ds_write_b128 v31, v[32:35] offset:16')
    a.i('s_waitcnt lgkmcnt(0)')
    a.i('s_barrier')
    a.i('s_mov_b32 exec_lo, -1')
    a.i('ds_write_b128 v29, v[32:35] offset:%d' % CH_XN)
    a.i('s_mov_b32 exec_lo, 0xff')
    a.i('ds_write_b128 v30, v[32:35] offset:%d' % CH_KN)
    a.i('s_mov_b64 exec, -1')
    for n_, reg in enumerate((P3[0], P3[1], P4[0], P4[1])):
        a.i('buffer_load_dwordx4 v[%d:%d], v24, s[%d:%d], s13 offen offset:%d' % ((reg, reg + 3) + W_ + (1024 * n_,)))
    for (dl, hh), reg in C3.items():
        a.i('buffer_load_dwordx4 v[%d:%d], v27, s[%d:%d], s10 offen offset:%d' % ((reg, reg + 3) + W_ + (KT_C3 + 8 * (16 * dl - 2 * hh - 12) - 144,)))
    for dl, reg in C4.items():
        a.i('buffer_load_dwordx4 v[%d:%d], v23, s[%d:%d], s10 offen offset:%d' % ((reg, reg + 3) + W_ + (KT_C4 + 4 * (16 * dl - 2 - 12) - 200,)))
    a.i('buffer_load_dword v7, v28, s[%d:%d], s10 offen offset:%d' % (W_ + (KT_INV,)))
    a.i('buffer_load_dwordx4 v[%d:%d], v26, s[%d:%d], s10 offen' % ((F16, F16 + 3) + W_))
    a.i('buffer_load_dwordx4 v[%d:%d], v26, s[%d:%d], s10 offen offset:%d' % ((FS, FS + 3) + W_ + (KT_ES,)))
    a.i('v_and_b32 v%d, 7, v36' % VA)
    a.i('v_mul_u32_u24 v%d, %d, v%d' % (VA, KN_COPY, VA))
    a.i('v_lshrrev_b32 v39, 3, v36')
    a.i('v_sub_u32 v39, v39, v37')
    a.i('v_add_u32 v39, 3, v39')
    a.i('v_lshl_add_u32 v%d, v39, 4, v%d' % (VA, VA))
    a.i('s_add_u32 s12, s9, %d' % CH_KN)
    a.i('v_add_u32 v%d, s12, v%d' % (VA, VA))
    a.i('v_lshlrev_b32 v%d, 5, v36' % VB)
    a.i('v_lshl_add_u32 v%d, v37, 4, v%d' % (VB, VB))
    a.i('s_add_u32 s12, s9, %d' % (CH_XN + 32))
    a.i('v_add_u32 v%d, s12, v%d' % (VB, VB))
    a.i('v_lshlrev_b32 v%d, 5, v36' % VY)
    a.i('v_lshl_add_u32 v%d, v37, 3, v%d' % (VY, VY))
    a.i('s_add_u32 s12, s9, %d' % (CH_KN + 16))
    a.i('v_add_u32 v30, s12, v24')
    a.i('v_mov_b32 v%d, %d' % (QT, AUX_CNT))
    a.i('s_waitcnt vmcnt(17)')
    stamp(a, 2)
    S_, Rp, Sp = 104, 112, 120
    for i in range(7):
        a.i('v_alignbit_b32 v%d, v%d, v%d, 16' % (S_ + i, R1 + i + 1, R1 + i))
    for i in range(1, 7):
        a.i('v_mov_b32 v%d, v%d' % (Rp + i - 1, R1 + i))
    for i in range(1, 7):
        a.i('v_alignbit_b32 v%d, v%d, v%d, 16' % (Sp + i - 1, R1 + i + 1, R1 + i))
    for c, src in ((7, R1), (5, Rp), (3, R1 + 2), (1, Rp + 2), (6, S_), (4, Sp), (2, S_ + 2), (0, Sp + 2)):
        a.i('ds_write_b128 v30, v[%d:%d] offset:%d' % (src, src + 3, c * KN_COPY))
    a.i('s_waitcnt vmcnt(0) lgkmcnt(0)')
    a.i('v_readfirstlane_b32 s11, v7')
    stamp(a, 3)
    lds_poll(a, QT, QT + 1, 0, 4, 'k2_cst', 14)
    stamp(a, 4)

    sc = Sched(a)
    R = Sched.R
    started = set()

    def mm(dst, A_, B_, accum=True):
        first = (dst not in started) or not accum
        started.add(dst)
        sc.mfma('v_mfma_f32_16x16x32_f16 v[%d:%d], v[%d:%d], v[%d:%d], %s' % (dst, dst + 3, A_, A_ + 3, B_, B_ + 3, '0' if first else 'v[%d:%d]' % (dst, dst + 3)),
                R(A_) | R(B_) | (set() if first else R(dst)), R(dst))

    def stA(beta):
        for w in ((-8, -16, 0) if beta < 4 else (-8, -16)):
            sc.lds_read('ds_read_b128 v[%d:%d], v%d offset:%d' % (WN[w], WN[w] + 3, VB, 2 * (256 * beta + w) + 448), {VB}, R(WN[w]), 14)
        for phi in range(4):
            mm(D3 + 4 * phi, WN[-8 if phi < 2 else -16], P3[phi % 2], accum=False)
        if beta < 4:
            mm(D4, WN[-8], P4[0], accum=False)
            mm(D4 + 4, WN[0], P4[1], accum=False)

    def cvt(d, x, y):
        sc.valu('v_cvt_pk_f16_f32 v%d, v%d, v%d' % (d, x, y), {x, y}, {d}, 40)

    def stB(beta):
        f = FR[beta % 2]
        for hh in range(2):
            r0, r1 = 2 * hh, 2 * hh + 1
            cvt(f[hh] + 0, D3 + r1, D3 + 4 + r1)
            cvt(f[hh] + 1, D3 + 8 + r1, D3 + 12 + r1)
            cvt(f[hh] + 2, D3 + r0, D3 + 4 + r0)
            cvt(f[hh] + 3, D3 + 8 + r0, D3 + 12 + r0)
        if beta < 4:
            for dd in range(4):
                cvt(f[2] + dd, D4 + 4 + 3 - dd, D4 + 3 - dd)

    def stC(beta):
        f = FR[beta % 2]
        for dl in (2, 3, 4):
            if beta + dl <= 7:
                for hh in range(2):
                    mm(ACC + 4 * (beta + dl), f[hh], C3[(dl, hh)])
        if beta < 4:
            for dl in (7, 6, 5, 4):
                if beta + dl <= 7:
                    mm(ACC + 4 * (beta + dl), f[2], C4[dl])
    stA(0)
    stB(0)
    for beta in range(6):
        if beta + 1 < 6:
            stA(beta + 1)
        stC(beta)
        if beta + 1 < 6:
            stB(beta + 1)
    loadedA = {16}
    for bi, b in enumerate(range(-7, 57)):
        br = RING[bi % len(RING)]
        sc.lds_read('ds_read_b128 v[%d:%d], v%d offset:%d' % (br, br + 3, VB, 64 * (b + 7)), {VB}, R(br), 14)
        uses = [(I, 8 * I - b) for I in range(8) if 0 <= 8 * I - b <= 16]
        for I, cp in uses:
            if cp not in loadedA:
                loadedA.add(cp)
                sc.lds_read('ds_read_b128 v[%d:%d], v%d offset:%d' % (AR[cp], AR[cp] + 3, VA, 64 * cp), {VA}, R(AR[cp]), 60)
        if b in (0, 8, 16, 24):
            mm(ACC + 4 * (b // 8 + 4), FS, br)
        for I, cp in reversed(uses):
            mm(ACC + 4 * I, AR[cp], br)
            if cp == 0:
                r = ACC + 4 * I
                for k in range(4):
                    sc.valu('v_mul_f32 v%d, s11, v%d' % (r + k, r + k), {r + k}, {r + k}, -1)
                sc.valu('v_cvt_pk_bf16_f32 v%d, v%d, v%d' % (r, r, r + 1), {r, r + 1}, {r}, -1)
                sc.valu('v_cvt_pk_bf16_f32 v%d, v%d, v%d' % (r + 1, r + 2, r + 3), {r + 2, r + 3}, {r + 1}, -1)
                sc.lds_write(['buffer_store_dwordx2 v[%d:%d], v%d, s[%d:%d], s15 offen offset:%d' % (r, r + 1, VY, S_WS, S_WS + 3, 512 * I)], {r, r + 1}, -1)
    sc.run()
    stamp(a, 5)
    stamp_flush(a, S_WS, 1)
    a.i('s_endpgm')

    a.label('k2_G')
    a.flush()
    if 'noG' in EXP:
        a.i('s_endpgm')
    a.i('s_cmp_ge_u32 s5, 28')
    a.i('s_cbranch_scc1 k2_end')
    a.i('s_sub_u32 s3, s3, 4')
    WD = 64
    a.i('v_lshrrev_b32 v2, 3, v1')
    a.i('v_and_b32 v4, 7, v1')
    a.i('v_and_b32 v5, 2, v2')
    a.i('v_xor_b32 v4, v4, v5')
    a.i('v_xor_b32 v5, 4, v4')
    a.i('s_lshl_b32 s9, s8, 8')
    a.i('s_lshl_b32 s10, s3, 6')
    a.i('s_add_u32 s9, s9, s10')
    a.i('v_add_u32 v3, s9, v2')
    a.i('v_mul_u32_u24 v3, 7168, v3')
    a.i('v_lshl_add_u32 v4, v4, 4, v3')
    a.i('v_lshl_add_u32 v5, v5, 4, v3')
    a.i('s_lshl_b32 s11, s7, 7')
    a.i('s_lshl_b32 s12, s3, 13')
    a.i('s_add_u32 s12, s12, %d' % AUX_W)
    a.i('s_lshl_b32 s16, s7, 6')
    a.i('s_lshl_b32 s13, s8, 4')
    a.i('s_add_u32 s16, s16, s13')
    a.i('s_lshl_b32 s16, s16, 11')
    a.i('s_lshl_b32 s13, s3, 9')
    a.i('s_add_u32 s16, s16, s13')
    a.i('v_lshrrev_b32 v8, 5, v1')
    a.i('v_and_b32 v9, 31, v1')
    a.i('v_lshlrev_b32 v10, 11, v8')
    a.i('v_lshl_add_u32 v10, v9, 4, v10')
    a.i('v_mul_u32_u24 v11, %d, v8' % WD_RS)
    a.i('v_lshl_add_u32 v11, v9, 4, v11')
    a.i('s_mul_i32 s13, s3, %d' % (16 * WD_RS))
    a.i('s_add_u32 s13, s13, %d' % AUX_W)
    a.i('v_add_u32 v11, s13, v11')
    a.i('v_mov_b32 v6, %d' % AUX_CNT)
    a.i('v_mov_b32 v7, 1')
    for r in range(4):
        a.i('v_mov_b32 v%d, 0' % (12 + r))
    a.i('v_lshlrev_b32 v16, 4, v1')
    a.i('v_add_u32 v16, %d, v16' % AUX_Z)
    a.i('s_mov_b32 exec_hi, 15')
    a.i('ds_write_b128 v16, v[12:15]')
    a.i('s_mov_b64 exec, -1')
    a.i('s_waitcnt lgkmcnt(0)')
    a.i('s_barrier')
    GD = os.environ.get('GD', '')
    if GD == 'staged':
        lds_poll(a, 6, 8, 0, 4, 'k2_gst', 14)
    if GD == '':
        lds_poll(a, 6, 8, 20, 1, 'k2_gst', 14)
    for i in range(8):
        for mtx, S_ in ((0, S_WG), (1, S_WU)):
            a.i('s_add_u32 m0, s12, %d' % (mtx * 32768 + 1024 * i))
            a.i('s_nop 0')
            a.i('buffer_load_dwordx4 v%d, s[%d:%d], s11 offen nt lds' % (4 + (i % 2), S_, S_ + 3))
        if i < 7:
            a.i('s_add_u32 s11, s11, %d' % (8 * 7168))
    stamp(a, 2)
    if 'noprio' not in EXP:
        a.i('s_setprio 2')
    a.i('v_lshrrev_b32 v16, 4, v1')
    a.i('v_bfe_u32 v17, v1, 2, 2')
    a.i('v_and_b32 v18, 3, v1')
    a.i('v_lshrrev_b32 v19, 1, v17')
    a.i('v_and_b32 v20, 1, v16')
    a.i('v_lshl_or_b32 v19, v20, 1, v19')
    a.i('v_xor_b32 v19, s3, v19')
    a.i('v_lshl_add_u32 v20, v16, 3, v17')
    a.i('v_lshlrev_b32 v20, 7, v20')
    a.i('v_lshl_add_u32 v20, v19, 5, v20')
    a.i('v_lshl_add_u32 v20, v18, 3, v20')
    a.i('v_add_u32 v20, %d, v20' % AUX_W)
    a.i('v_lshlrev_b32 v21, 4, v16')
    a.i('v_add_u32 v22, %d, v21' % AUX_XS)
    a.i('v_add_u32 v23, %d, v21' % AUX_Z)
    a.i('v_cmp_eq_u32 vcc, 0, v17')
    a.i('v_cndmask_b32 v24, v23, v22, vcc')
    a.i('v_cmp_eq_u32 vcc, 1, v17')
    a.i('v_cndmask_b32 v25, v23, v22, vcc')
    a.i('v_lshl_add_u32 v26, v16, 2, v17')
    a.i('v_mul_u32_u24 v26, %d, v26' % WD_RS)
    a.i('v_lshl_add_u32 v26, v18, 3, v26')
    a.i('v_add_u32 v26, s13, v26')
    a.i('v_lshlrev_b32 v21, 3, v16')
    a.i('v_add_u32 v22, %d, v21' % AUX_HS)
    a.i('v_add_u32 v23, %d, v21' % (AUX_HS + 32))
    for gm in range(4):
        a.i('v_cmp_eq_u32 vcc, %d, v17' % gm)
        a.i('v_cndmask_b32 v%d, v23, v22, vcc' % (28 + gm))
    a.i('s_lshl_b32 s12, s7, 11')
    a.i('s_add_u32 s12, s12, 0x%x' % WS_GUP)
    a.i('s_lshl_b32 s15, s8, 9')
    a.i('s_add_u32 s15, s15, s12')
    a.i('s_lshl_b32 s14, s3, 7')
    a.i('s_add_u32 s15, s15, s14')
    a.i('v_lshlrev_b32 v27, 2, v1')
    a.i('s_waitcnt vmcnt(0)')
    lds_signal(a, 6, 7, 8)
    for i in range(8):
        a.i('buffer_load_dwordx4 v[%d:%d], v10, s[%d:%d], s16 offen nt' % (WD + 4 * i, WD + 4 * i + 3, S_WD, S_WD + 3))
        if i < 7:
            a.i('s_add_u32 s16, s16, 4096')
    lds_poll(a, 6, 8, 4, 1, 'k2_gx', 14)
    XA = 96
    for st in range(8):
        a.i('ds_read_b128 v[%d:%d], v24 offset:%d' % (XA + 8 * st, XA + 8 * st + 3, 64 * st))
        a.i('ds_read_b128 v[%d:%d], v25 offset:%d' % (XA + 8 * st + 4, XA + 8 * st + 7, 64 * st))
    lds_poll(a, 6, 8, 8, 4, 'k2_gw', 14)
    stamp(a, 3)
    BR = 32
    q = LdsQ(a)
    seqs = {}

    def rd(n):
        st, mtx = n // 2, n % 2
        r = BR + 4 * (n % 8)
        q.issue('ds_read_b64_tr_b16 v[%d:%d], v20 offset:%d' % (r, r + 1, mtx * 32768 + st * 4096))
        seqs[n] = q.issue('ds_read_b64_tr_b16 v[%d:%d], v20 offset:%d' % (r + 2, r + 3, mtx * 32768 + st * 4096 + 512))
    for n in range(7):
        rd(n)
    for n in range(16):
        st, mtx = n // 2, n % 2
        r = BR + 4 * (n % 8)
        q.wait(seqs[n])
        a.i('v_mfma_f32_16x16x32_bf16 v[12:15], v[%d:%d], v[%d:%d], %s' % (XA + 8 * st + 4 * mtx, XA + 8 * st + 4 * mtx + 3, r, r + 3, '0' if n == 0 else 'v[12:15]'))
        if n + 7 < 16:
            rd(n + 7)
    lds_signal(a, 6, 7, 12)
    a.i('s_mov_b32 exec_hi, 0')
    a.i('buffer_store_dword v12, v27, s[%d:%d], s15 offen sc0 sc1' % (S_WS, S_WS + 3))
    a.i('s_mov_b64 exec, -1')
    stamp(a, 4)
    lds_poll(a, 6, 8, 12, 4, 'k2_gc', 14)
    a.i('s_waitcnt vmcnt(1)')
    for i in range(8):
        a.i('ds_write_b128 v11, v[%d:%d] offset:%d' % (WD + 4 * i, WD + 4 * i + 3, 2 * i * WD_RS))
    for t in range(16):
        a.i('ds_read_b64_tr_b16 v[%d:%d], v26 offset:%d' % (XA + 2 * t, XA + 2 * t + 1, 32 * t))
    a.i('s_cmp_lg_u32 s3, 0')
    a.flush()
    a.i('s_cbranch_scc1 k2_g_nopub')
    a.i('v_and_b32 v33, 12, v1')
    a.i('v_lshlrev_b32 v33, 7, v33')
    a.i('v_and_b32 v35, 16, v1')
    a.i('v_lshl_add_u32 v33, v35, 2, v33')
    a.i('v_lshl_add_u32 v33, v18, 4, v33')
    a.i('s_lshl_b32 s13, s8, 7')
    a.i('s_add_u32 s13, s13, s12')
    stamp(a, 5)
    a.flush()
    a.label('k2_gpoll')
    a.i('buffer_load_dwordx4 v[40:43], v33, s[%d:%d], s13 offen sc0 sc1' % (S_WS, S_WS + 3))
    a.i('s_waitcnt vmcnt(0)')
    a.i('v_max3_u32 v44, v40, v41, v42')
    a.i('v_max_u32 v44, v44, v43')
    a.i('v_cmp_ne_u32 vcc, -1, v44')
    a.i('s_cmp_eq_u64 vcc, -1')
    a.i('s_cbranch_scc1 k2_gpoll_done')
    a.i('s_sleep 2')
    a.i('s_branch k2_gpoll')
    a.label('k2_gpoll_done')
    a.flush()
    stamp(a, 6)
    for r in (4, 8):
        for k in range(4):
            a.i('v_add_f32 v%d, v%d, v%d row_ror:%d' % (40 + k, 40 + k, 40 + k, r))
    for k in range(4):
        a.i('v_cvt_pk_bf16_f32 v%d, 0, v%d' % (40 + k, 40 + k))
    for k in range(4):
        a.i('v_mov_b32 v%d, v%d' % (44 + k, 40 + k))
    for k in range(4):
        a.i('v_permlane16_swap_b32 v%d, v%d' % (40 + k, 44 + k))
    for k in range(4):
        a.i('v_mul_f32 v%d, %s, v%d' % (36 + k, fbits(-L2E_HI), 40 + k))
    for k in range(4):
        a.i('v_exp_f32 v%d, v%d' % (36 + k, 36 + k))
    for k in range(4):
        a.i('v_add_f32 v%d, 1.0, v%d' % (36 + k, 36 + k))
    for k in range(4):
        a.i('v_rcp_f32 v%d, v%d' % (36 + k, 36 + k))
    for k in range(4):
        a.i('v_mul_f32 v%d, v%d, v%d' % (40 + k, 40 + k, 36 + k))
    for k in range(4):
        a.i('v_cvt_pk_bf16_f32 v%d, 0, v%d' % (40 + k, 40 + k))
    for k in range(4):
        a.i('v_mul_f32 v%d, v%d, v%d' % (40 + k, 40 + k, 44 + k))
    a.i('v_cvt_pk_bf16_f32 v40, v40, v41')
    a.i('v_cvt_pk_bf16_f32 v41, v42, v43')
    a.i('v_lshlrev_b32 v32, 3, v1')
    a.i('v_add_u32 v32, %d, v32' % AUX_HS)
    a.i('s_mov_b64 exec, 15')
    a.i('ds_write_b64 v32, v[40:41]')
    a.i('s_mov_b64 exec, -1')
    lds_signal(a, 6, 7, 16)
    a.label('k2_g_nopub')
    a.flush()
    a.i('s_lshl_b32 s13, s7, 2')
    a.i('s_add_u32 s13, s13, s8')
    a.i('s_lshl_b32 s13, s13, 12')
    a.i('s_add_u32 s13, s13, 0x%x' % WS_PART)
    a.i('s_lshl_b32 s14, s3, 10')
    a.i('s_add_u32 s13, s13, s14')
    lds_poll(a, 6, 8, 16, 1, 'k2_ph', 14)
    stamp(a, 7)
    for gm in range(4):
        a.i('ds_read_b64 v[%d:%d], v%d' % (32 + 2 * gm, 33 + 2 * gm, 28 + gm))
    a.i('s_waitcnt lgkmcnt(0)')
    for u in range(4):
        for gm in range(4):
            t = 4 * u + gm
            a.i('v_mfma_f32_16x16x16_bf16 v[%d:%d], v[%d:%d], v[%d:%d], %s' % (48 + 4 * u, 51 + 4 * u, 32 + 2 * gm, 33 + 2 * gm, XA + 2 * t, XA + 2 * t + 1,
                                                                             '0' if gm == 0 else 'v[%d:%d]' % (48 + 4 * u, 51 + 4 * u)))
    for u in range(4):
        a.i('buffer_store_dword v%d, v27, s[%d:%d], s13 offen offset:%d' % (48 + 4 * u, S_WS, S_WS + 3, 256 * u))
    stamp(a, 9)
    stamp_flush(a, S_WS, 1)
    a.i('s_endpgm')

    a.label('k2_E')
    a.flush()
    a.i('s_sub_u32 s3, s3, 8')
    a.i('v_lshlrev_b32 v5, 4, v1')
    a.i('v_mov_b32 v6, 0')
    a.i('s_lshl_b32 s9, s6, 14')
    a.i('s_lshl_b32 s10, s3, 12')
    a.i('s_add_u32 s9, s9, s10')
    a.i('s_add_u32 s10, s9, 0x%x' % WS_XN)
    a.i('s_mov_b32 s11, 0x%x' % WS_KEYS)
    XN, KEY = 24, 40
    for c in range(4):
        a.i('buffer_load_dwordx4 v[%d:%d], v5, s[%d:%d], s10 offen offset:%d %s' % (XN + 4 * c, XN + 4 * c + 3, S_WS, S_WS + 3, 1024 * c, XNLF))
    a.i('s_cmp_lg_u32 s3, 0')
    a.i('s_cbranch_scc1 k2_e_nokey')
    for qq in range(4):
        a.i('buffer_load_dwordx4 v[%d:%d], v5, s[%d:%d], s11 offen offset:%d' % (KEY + 4 * qq, KEY + 4 * qq + 3, S_WS, S_WS + 3, 1024 * qq))
    a.label('k2_e_nokey')
    a.i('s_barrier')
    a.i('v_mov_b32 v60, %d' % AUX_CNT)
    a.i('v_mov_b32 v61, 1')
    a.i('v_lshlrev_b32 v7, 3, v1')
    a.i('s_lshl_b32 s10, s8, 9')
    a.i('v_and_b32 v62, 3, v1')
    a.i('v_mul_u32_u24 v62, %d, v62' % CH_STRIDE)
    a.i('v_and_b32 v63, 60, v1')
    a.i('v_lshl_add_u32 v62, v63, 2, v62')
    a.i('s_lshl_b32 s13, s3, 10')
    a.i('v_add_u32 v62, s13, v62')
    a.i('s_cmp_lg_u32 s3, 0')
    a.flush()
    a.i('s_cbranch_scc1 k2_e_rest')
    a.i('s_waitcnt vmcnt(4)')
    for qq in range(4):
        a.i('ds_write_b128 v62, v[%d:%d] offset:%d' % (XN + 4 * qq, XN + 4 * qq + 3, CH_XN + 512 + 256 * qq))
    lds_signal(a, 60, 61, 0)
    a.i('s_waitcnt vmcnt(0)')
    stamp(a, 2)
    argmax_keys(a, KEY, KEY + 16)
    a.i('v_readfirstlane_b32 s14, v%d' % KEY)
    a.i('s_and_b32 s15, s14, 0x7ff')
    a.i('s_sub_u32 s15, 2047, s15')
    a.i('s_lshl_b32 s13, s15, 11')
    a.i('s_add_u32 s13, s13, s10')
    a.i('s_lshl_b32 s9, s15, 3')
    a.i('s_add_u32 s9, s9, 0x%x' % WS_STATS)
    a.i('buffer_load_dwordx2 v[40:41], v7, s[%d:%d], s13 offen' % (S_X, S_X + 3))
    a.i('buffer_load_dwordx2 v[42:43], v6, s[%d:%d], s9 offen' % (S_WS, S_WS + 3))
    lds_signal(a, 60, 61, 20)
    stamp(a, 3)
    a.i('s_waitcnt vmcnt(0)')
    unpack2(a, 44, 45, 40)
    unpack2(a, 46, 47, 41)
    for k in range(4):
        a.i('v_sub_f32 v%d, v%d, v42' % (44 + k, 44 + k))
    for k in range(4):
        a.i('v_cvt_pk_bf16_f32 v%d, 0, v%d' % (44 + k, 44 + k))
    for k in range(4):
        a.i('v_mul_f32 v%d, v43, v%d' % (44 + k, 44 + k))
    a.i('v_cvt_pk_bf16_f32 v48, v44, v45')
    a.i('v_cvt_pk_bf16_f32 v49, v46, v47')
    a.i('v_add_u32 v50, %d, v7' % AUX_XS)
    a.i('ds_write_b64 v50, v[48:49]')
    lds_signal(a, 60, 61, 4)
    a.i('s_cmp_lg_u32 s2, 0')
    a.flush()
    a.i('s_cbranch_scc1 k2_e_fin')
    a.i('s_mov_b32 s9, 0x%x' % WS_SEL)
    a.i('v_mov_b32 v51, s14')
    a.i('buffer_store_dword v51, v6, s[%d:%d], s9 offen' % (S_WS, S_WS + 3))
    a.i('s_branch k2_e_fin')
    a.label('k2_e_rest')
    a.flush()
    a.i('s_waitcnt vmcnt(0)')
    for qq in range(4):
        a.i('ds_write_b128 v62, v[%d:%d] offset:%d' % (XN + 4 * qq, XN + 4 * qq + 3, CH_XN + 512 + 256 * qq))
    lds_signal(a, 60, 61, 0)
    a.label('k2_e_fin')
    a.flush()
    stamp(a, 4)
    stamp_flush(a, S_WS, 1)
    a.label('k2_end')
    a.i('s_endpgm')


K3_LDS = 16384 + 2048 + 64


def rnd(a, regs):
    for r in regs:
        a.i('v_cvt_pk_bf16_f32 v%d, 0, v%d' % (r, r))


def gen_k3(a):
    S_X, S_WS, S_DK, S_OUT = 48, 52, 56, 60
    a.label('k3_kernel')
    a.i('s_cmp_ge_u32 s2, 272')
    a.i('s_cbranch_scc1 k3_end')
    load_ptrs(a)
    a.i('v_lshrrev_b32 v2, 6, v0')
    a.i('v_and_b32 v1, 63, v0')
    a.i('v_readfirstlane_b32 s3, v2')
    a.i('s_waitcnt lgkmcnt(0)')
    a.i('s_mov_b32 s15, 0x%x' % WS_SEL)
    a.i('s_load_dword s14, s[%d:%d], s15' % (P_WS, P_WS + 1))
    srd(a, S_X, P_X, 0x400000)
    srd(a, S_WS, P_WS, WS_SIZE)
    srd(a, S_DK, P_DK, 2048)
    srd(a, S_OUT, P_OUT, 0x400000)
    stamp_init(a)
    a.i('s_cmp_ge_u32 s2, 256')
    a.flush()
    a.i('s_cbranch_scc1 k3_row')
    a.i('s_and_b32 s4, s2, 7')
    a.i('s_lshr_b32 s5, s2, 3')
    a.i('v_lshrrev_b32 v2, 3, v1')
    a.i('v_and_b32 v4, 7, v1')
    a.i('v_and_b32 v5, 2, v2')
    a.i('v_xor_b32 v4, v4, v5')
    a.i('v_xor_b32 v5, 4, v4')
    a.i('v_lshlrev_b32 v3, 12, v2')
    a.i('v_lshl_add_u32 v4, v4, 4, v3')
    a.i('v_lshl_add_u32 v5, v5, 4, v3')
    a.i('s_lshl_b32 s6, s4, 7')
    a.i('s_lshl_b32 s7, s3, 4')
    a.i('s_add_u32 s6, s6, s7')
    a.i('s_lshl_b32 s6, s6, 12')
    a.i('s_lshl_b32 s7, s5, 7')
    a.i('s_add_u32 s6, s6, s7')
    a.i('s_lshl_b32 s7, s3, 11')
    a.i('s_mov_b32 m0, s7')
    a.i('s_add_u32 s8, s6, 0x8000')
    a.i('buffer_load_dwordx4 v4, s[%d:%d], s6 offen lds' % (S_WS, S_WS + 3))
    a.i('s_add_u32 m0, s7, 1024')
    a.i('s_nop 0')
    a.i('buffer_load_dwordx4 v5, s[%d:%d], s8 offen lds' % (S_WS, S_WS + 3))
    a.i('s_and_b32 s9, s3, 3')
    a.i('s_lshr_b32 s10, s3, 2')
    a.i('v_and_b32 v6, 15, v1')
    a.i('v_lshrrev_b32 v7, 4, v1')
    a.i('v_lshlrev_b32 v8, 11, v6')
    a.i('v_lshl_add_u32 v8, v7, 4, v8')
    a.i('s_lshl_b32 s11, s5, 6')
    a.i('s_lshl_b32 s12, s10, 4')
    a.i('s_add_u32 s11, s11, s12')
    a.i('s_lshl_b32 s12, s11, 11')
    a.i('s_lshl_b32 s13, s4, 8')
    a.i('s_lshl_b32 s15, s9, 6')
    a.i('s_add_u32 s13, s13, s15')
    a.i('s_add_u32 s12, s12, s13')
    a.i('s_add_u32 s16, s12, 0x10000')
    a.i('buffer_load_dwordx4 v[16:19], v8, s[%d:%d], s12 offen nt' % (S_X, S_X + 3))
    a.i('buffer_load_dwordx4 v[20:23], v8, s[%d:%d], s16 offen nt' % (S_X, S_X + 3))
    a.i('v_lshlrev_b32 v9, 3, v6')
    a.i('s_lshl_b32 s15, s11, 3')
    a.i('s_add_u32 s15, s15, 0x%x' % WS_STATS)
    a.i('buffer_load_dwordx2 v[24:25], v9, s[%d:%d], s15 offen' % (S_WS, S_WS + 3))
    a.i('buffer_load_dwordx2 v[26:27], v9, s[%d:%d], s15 offen offset:256' % (S_WS, S_WS + 3))
    a.i('v_lshlrev_b32 v9, 4, v7')
    a.i('buffer_load_dwordx4 v[28:31], v9, s[%d:%d], s13 offen' % (S_DK, S_DK + 3))
    a.i('v_bfe_u32 v10, v1, 2, 2')
    a.i('v_and_b32 v11, 3, v1')
    a.i('v_lshrrev_b32 v12, 1, v10')
    a.i('v_and_b32 v13, 1, v7')
    a.i('v_lshl_or_b32 v12, v13, 1, v12')
    a.i('v_xor_b32 v12, s10, v12')
    a.i('v_xor_b32 v13, 2, v12')
    a.i('v_lshl_add_u32 v14, v7, 3, v10')
    a.i('v_lshlrev_b32 v14, 7, v14')
    a.i('v_lshl_add_u32 v14, v11, 3, v14')
    a.i('s_lshl_b32 s15, s9, 12')
    a.i('v_add_u32 v14, s15, v14')
    a.i('v_lshl_add_u32 v12, v12, 5, v14')
    a.i('v_lshl_add_u32 v13, v13, 5, v14')
    a.i('v_add_u32 v6, s11, v6')
    XX, XF, TA, DK = 32, 48, 64, 80
    a.i('s_waitcnt vmcnt(0) lgkmcnt(0)')
    stamp(a, 2)
    a.i('s_barrier')
    a.i('ds_read_b64_tr_b16 v[88:89], v12')
    a.i('ds_read_b64_tr_b16 v[90:91], v12 offset:512')
    a.i('ds_read_b64_tr_b16 v[92:93], v13')
    a.i('ds_read_b64_tr_b16 v[94:95], v13 offset:512')
    a.i('s_and_b32 s14, s14, 0x7ff')
    a.i('s_sub_u32 s14, 2047, s14')
    a.i('s_sub_u32 s15, s14, 32')
    for k in range(8):
        unpack2(a, XX + 2 * k, XX + 2 * k + 1, 16 + k)
    for k in range(4):
        unpack2(a, DK + 2 * k, DK + 2 * k + 1, 28 + k)
    for k in range(16):
        a.i('v_sub_f32 v%d, v%d, v%d' % (XF + k, XX + k, 24 if k < 8 else 26))
    rnd(a, range(XF, XF + 16))
    for k in range(16):
        a.i('v_mul_f32 v%d, v%d, v%d' % (XF + k, XF + k, 25 if k < 8 else 27))
    rnd(a, range(XF, XF + 16))
    for k in range(16):
        a.i('v_mul_f32 v%d, v%d, v%d' % (TA + k, XF + k, DK + (k % 8)))
    rnd(a, range(TA, TA + 16))
    a.i('s_waitcnt lgkmcnt(0)')
    for k in range(8):
        unpack2(a, 16 + 2 * k, 17 + 2 * k, 88 + k)
    for k in range(16):
        a.i('v_add_f32 v%d, v%d, v%d' % (TA + k, TA + k, 16 + k))
    rnd(a, range(TA, TA + 16))
    for k in range(16):
        a.i('v_add_f32 v%d, v%d, v%d' % (TA + k, TA + k, XX + k))
    rnd(a, range(TA, TA + 16))
    for k in range(16):
        a.i('v_add_f32 v%d, v%d, v%d' % (TA + k, TA + k, XF + k))
    for k in range(8):
        a.i('v_cvt_pk_bf16_f32 v%d, v%d, v%d' % (16 + k, TA + 2 * k, TA + 2 * k + 1))
    a.i('v_cmp_ne_u32 vcc, s14, v6')
    a.i('s_mov_b64 exec, vcc')
    a.i('buffer_store_dwordx4 v[16:19], v8, s[%d:%d], s12 offen' % (S_OUT, S_OUT + 3))
    a.i('s_mov_b64 exec, -1')
    a.i('v_cmp_ne_u32 vcc, s15, v6')
    a.i('s_mov_b64 exec, vcc')
    a.i('buffer_store_dwordx4 v[20:23], v8, s[%d:%d], s16 offen' % (S_OUT, S_OUT + 3))
    stamp(a, 3)
    stamp_flush(a, S_WS, 2)
    a.i('s_endpgm')

    a.label('k3_row')
    a.flush()
    a.i('s_sub_u32 s4, s2, 256')
    a.i('v_lshrrev_b32 v2, 4, v1')
    a.i('v_and_b32 v3, 15, v1')
    a.i('v_lshlrev_b32 v4, 12, v2')
    a.i('v_lshl_add_u32 v4, v3, 4, v4')
    a.i('s_mul_i32 s5, s3, %d' % (28 * 4096))
    a.i('s_lshl_b32 s6, s4, 8')
    a.i('s_add_u32 s5, s5, s6')
    a.i('s_add_u32 s5, s5, 0x%x' % WS_PART)
    P = 32
    for i in range(7):
        a.i('buffer_load_dwordx4 v[%d:%d], v4, s[%d:%d], s5 offen' % (P + 4 * i, P + 4 * i + 3, S_WS, S_WS + 3))
        if i < 6:
            a.i('s_add_u32 s5, s5, 0x4000')
    a.i('s_waitcnt lgkmcnt(0)')
    a.i('s_and_b32 s9, s14, 0x7ff')
    a.i('s_sub_u32 s9, 2047, s9')
    a.i('v_lshlrev_b32 v5, 1, v1')
    a.i('v_lshlrev_b32 v6, 12, v1')
    a.i('v_mov_b32 v7, 0')
    a.i('s_lshl_b32 s7, s4, 7')
    a.i('s_lshl_b32 s10, s9, 11')
    a.i('s_add_u32 s10, s10, s7')
    a.i('s_lshl_b32 s11, s4, 18')
    a.i('s_lshl_b32 s12, s9, 1')
    a.i('s_add_u32 s11, s11, s12')
    a.i('s_lshl_b32 s12, s9, 3')
    a.i('s_add_u32 s12, s12, 0x%x' % WS_STATS)
    a.i('buffer_load_ushort v8, v5, s[%d:%d], s10 offen' % (S_X, S_X + 3))
    a.i('buffer_load_ushort v9, v6, s[%d:%d], s11 offen' % (S_WS, S_WS + 3))
    a.i('buffer_load_ushort v10, v5, s[%d:%d], s7 offen' % (S_DK, S_DK + 3))
    a.i('buffer_load_dwordx2 v[12:13], v7, s[%d:%d], s12 offen' % (S_WS, S_WS + 3))
    a.i('s_waitcnt vmcnt(4)')
    for (x_, y_) in ((0, 1), (2, 3), (4, 5), (0, 2), (4, 6), (0, 4)):
        for k in range(4):
            a.i('v_add_f32 v%d, v%d, v%d' % (P + 4 * x_ + k, P + 4 * x_ + k, P + 4 * y_ + k))
    for k in range(4):
        a.i('v_mov_b32 v%d, v%d' % (P + 4 + k, P + k))
    for k in range(4):
        a.i('v_permlane32_swap_b32 v%d, v%d' % (P + k, P + 4 + k))
    for k in range(4):
        a.i('v_add_f32 v%d, v%d, v%d' % (P + k, P + k, P + 4 + k))
    for k in range(4):
        a.i('v_mov_b32 v%d, v%d' % (P + 4 + k, P + k))
    for k in range(4):
        a.i('v_permlane16_swap_b32 v%d, v%d' % (P + k, P + 4 + k))
    for k in range(4):
        a.i('v_add_f32 v%d, v%d, v%d' % (P + k, P + k, P + 4 + k))
    a.i('s_lshl_b32 s13, s3, 8')
    a.i('v_lshlrev_b32 v14, 4, v3')
    a.i('v_add_u32 v14, s13, v14')
    a.i('s_mov_b64 exec, 0xffff')
    a.i('ds_write_b128 v14, v[%d:%d]' % (P, P + 3))
    a.i('s_mov_b64 exec, -1')
    a.i('s_waitcnt lgkmcnt(0)')
    a.i('s_barrier')
    a.i('s_cmp_lg_u32 s3, 0')
    a.i('s_cbranch_scc1 k3_end')
    a.i('v_lshlrev_b32 v14, 2, v1')
    for w in range(8):
        a.i('ds_read_b32 v%d, v14 offset:%d' % (P + w, 256 * w))
    a.i('v_mov_b32 v16, s14')
    a.i('v_and_b32 v16, 0xffff0000, v16')
    a.i('v_ashrrev_i32 v17, 31, v16')
    a.i('v_not_b32 v17, v17')
    a.i('v_or_b32 v17, 0x80000000, v17')
    a.i('v_xor_b32 v16, v16, v17')
    a.i('v_and_b32 v16, 0xffff0000, v16')
    a.i('v_mul_f32 v16, %s, v16' % fbits(-L2E_HI))
    a.i('v_exp_f32 v16, v16')
    a.i('v_add_f32 v16, 1.0, v16')
    a.i('v_rcp_f32 v16, v16')
    rnd(a, [16])
    a.i('s_waitcnt vmcnt(0)')
    for r in (8, 9, 10):
        a.i('v_lshlrev_b32 v%d, 16, v%d' % (r, r))
    a.i('v_sub_f32 v11, v8, v12')
    rnd(a, [11])
    a.i('v_mul_f32 v11, v11, v13')
    rnd(a, [11])
    a.i('v_mul_f32 v10, v10, v11')
    rnd(a, [10])
    a.i('v_add_f32 v10, v10, v9')
    rnd(a, [10])
    a.i('v_add_f32 v10, v10, v8')
    rnd(a, [10])
    a.i('s_waitcnt lgkmcnt(0)')
    for (x_, y_) in ((0, 1), (2, 3), (4, 5), (6, 7), (0, 2), (4, 6), (0, 4)):
        a.i('v_add_f32 v%d, v%d, v%d' % (P + x_, P + x_, P + y_))
    rnd(a, [P])
    a.i('v_mul_f32 v%d, v16, v%d' % (P, P))
    rnd(a, [P])
    a.i('v_add_f32 v%d, v%d, v11' % (P, P))
    rnd(a, [P])
    a.i('v_add_f32 v%d, v%d, v10' % (P, P))
    a.i('v_cvt_pk_bf16_f32 v%d, v%d, v%d' % (P, P, P))
    a.i('buffer_store_short v%d, v5, s[%d:%d], s10 offen' % (P, S_OUT, S_OUT + 3))
    a.label('k3_end')
    a.i('s_endpgm')


def kd(name, vgpr, sgpr=102):
    acc = (vgpr + 3) // 4 * 4
    return '''.amdhsa_kernel %s
  .amdhsa_next_free_vgpr %d
  .amdhsa_next_free_sgpr %d
  .amdhsa_accum_offset %d
  .amdhsa_group_segment_fixed_size 0
  .amdhsa_kernarg_size 120
  .amdhsa_user_sgpr_count 2
  .amdhsa_user_sgpr_kernarg_segment_ptr 1
  .amdhsa_system_sgpr_workgroup_id_x 1
  .amdhsa_float_denorm_mode_32 3
.end_amdhsa_kernel
''' % (name, vgpr, sgpr, acc)


def main():
    hdr = open('cdna_kernels/%s.s.ref' % NAME).read().split('\n')
    head = [l for l in hdr if l.startswith(';') and '@launch' not in l and 'Override launch' not in l and 'grid=ceil' not in l]
    out = '\n'.join(head) + '\n'
    out += '; @launch kernel=k1_kernel grid=(256,1,1) block=(1024,1,1) lds=%d\n' % K1_LDS
    out += '; @launch kernel=k2_kernel grid=(256,1,1) block=(768,1,1) lds=%d\n' % K2_LDS
    out += '; @launch kernel=k3_kernel grid=(272,1,1) block=(512,1,1) lds=%d\n' % K3_LDS
    out += '.amdgcn_target "amdgcn-amd-amdhsa--gfx950"\n.text\n'
    for nm, fn in (('k1_kernel', gen_k1), ('k2_kernel', gen_k2), ('k3_kernel', gen_k3)):
        a = Asm()
        out += '.globl %s\n.p2align 8\n.type %s,@function\n' % (nm, nm)
        fn(a)
        out += a.text()
        sys.stderr.write('%s: %d lines, %d nop states inserted\n' % (nm, len(a.lines), a.nops_inserted))
    out += '.section .rodata,"a"\n'
    for nm, v in (('k1_kernel', 128), ('k2_kernel', 168), ('k3_kernel', 96)):
        out += '.p2align 6\n' + kd(nm, v)
    dst = sys.argv[1] if len(sys.argv) > 1 else 'cdna_kernels/%s.s' % NAME
    open(dst, 'w').write(out)


if __name__ == '__main__':
    main()
```

```python
import sys, struct, os
sys.path.insert(0, os.path.dirname(__file__))
from asmlib import Asm

NAME = 'parallel_sum__ssm_conv_s4d__moe_arch_mod__prompt'

WS_YT = 0x000000
WS_STATS = 0x400000
WS_KEYS = 0x404000
WS_SEL = 0x405000
WS_YR = 0x406000
WS_XNR = 0x406800
WS_XR = 0x407000
WS_YF = 0x5e0000
WS_PT = 0x408000
WS_KT = 0xE00000
KT_STRIDE = 2048
KT_C3 = 1104
KT_C4 = 1616
KT_ES = 1936
KT_INV = 2032
WS_PART = 0x600000
WS_GUP = 0x5c0000
WS_XN = 0xA00000
WS_SIZE = 0x10000000
NSL = 224


def fbits(x):
    return '0x%08x' % struct.unpack('<I', struct.pack('<f', x))[0]


L2E_HI = struct.unpack('<f', struct.pack('<f', 1.4426950408889634))[0]
L2E_LO = 1.4426950408889634 - L2E_HI
I2PI_HI = struct.unpack('<f', struct.pack('<f', 0.15915494309189535))[0]
I2PI_LO = 0.15915494309189535 - I2PI_HI


DIAG = bool(os.environ.get('DIAG'))
EXP = os.environ.get('EXP', '')
OUTF = os.environ.get('OUTF', '')
PFF = os.environ.get('PFF', 'nt')
SCF = os.environ.get('SCF', 'sc1')
XNLF = os.environ.get('XNLF', '')
K1SF = os.environ.get('K1SF', '')
WS_DIAG = 0x800000


def stamp(a, slot, rt=False):
    if not DIAG:
        return
    a.i('s_waitcnt lgkmcnt(0)')
    a.i('%s s[98:99]' % ('s_memrealtime' if rt else 's_memtime'))
    a.i('s_waitcnt lgkmcnt(0)')
    a.i('s_mov_b32 s%d, s98' % (86 + slot))


def stamp_init(a):
    if not DIAG:
        return
    for k in range(12):
        a.i('s_mov_b32 s%d, 0' % (86 + k))
    stamp(a, 0, True)
    stamp(a, 1)
    a.i('s_getreg_b32 s94, hwreg(HW_REG_XCC_ID)')
    a.i('s_add_u32 s94, s94, 0x100')


def stamp_flush(a, S_WS, kern):
    if not DIAG:
        return
    a.i('s_mov_b64 exec, -1')
    a.i('s_waitcnt vmcnt(0)')
    stamp(a, 10)
    stamp(a, 11, True)
    a.flush()
    a.i('v_mov_b32 v9, 0')
    for k in range(12):
        a.i('v_writelane_b32 v9, s%d, %d' % (86 + k, k))
    a.i('v_lshlrev_b32 v8, 2, v0')
    a.i('s_lshl_b32 s98, s2, 12')
    a.i('s_add_u32 s98, s98, 0x%x' % (WS_DIAG + kern * 0x100000))
    a.i('buffer_store_dword v9, v8, s[%d:%d], s98 offen' % (S_WS, S_WS + 3))


def srd(a, d, lo, size):
    a.i('s_mov_b32 s%d, s%d' % (d, lo))
    a.i('s_and_b32 s%d, s%d, 0xffff' % (d + 1, lo + 1))
    a.i('s_mov_b32 s%d, 0x%x' % (d + 2, size))
    a.i('s_mov_b32 s%d, 0x20000' % (d + 3))


def load_ptrs(a):
    a.i('s_load_dwordx16 s[16:31], s[0:1], 0')
    a.i('s_load_dwordx8 s[32:39], s[0:1], 64')
    a.i('s_load_dwordx4 s[40:43], s[0:1], 96')
    a.i('s_load_dwordx2 s[44:45], s[0:1], 112')
P_X, P_LA, P_AI, P_CR, P_CI, P_DT, P_DK = 16, 18, 20, 22, 24, 26, 28
P_WR, P_WG, P_WU, P_WD, P_OUT, P_DBG, P_WS = 32, 34, 36, 38, 40, 42, 44


def row_allreduce(a, v, op='v_add_f32'):
    for r in (8, 4, 2, 1):
        a.i('%s v%d, v%d, v%d row_ror:%d' % (op, v, v, v, r))


def reduce2(a, va, vb, vt, op='v_add_f32'):
    a.i('v_permlane32_swap_b32 v%d, v%d' % (va, vb))
    a.i('%s v%d, v%d, v%d' % (op, va, va, vb))
    a.i('v_mov_b32 v%d, v%d' % (vt, va))
    a.i('v_permlane16_swap_b32 v%d, v%d' % (va, vt))
    a.i('%s v%d, v%d, v%d' % (op, va, va, vt))
    row_allreduce(a, va, op)


def reduce1(a, va, vt, op='v_add_f32'):
    a.i('v_mov_b32 v%d, v%d' % (vt, va))
    reduce2(a, va, vt, vt, op) if False else None
    a.i('v_permlane32_swap_b32 v%d, v%d' % (va, vt))
    a.i('%s v%d, v%d, v%d' % (op, va, va, vt))
    a.i('v_mov_b32 v%d, v%d' % (vt, va))
    a.i('v_permlane16_swap_b32 v%d, v%d' % (va, vt))
    a.i('%s v%d, v%d, v%d' % (op, va, va, vt))
    row_allreduce(a, va, op)


def exp_acc(a, vs, t0, t1, s_hi, s_lo):
    for v, x, y in zip(vs, t0, t1):
        a.i('v_mul_f32 v%d, s%d, v%d' % (x, s_hi, v))
    for v, x, y in zip(vs, t0, t1):
        a.i('v_rndne_f32 v%d, v%d' % (x, x))
    for v, x, y in zip(vs, t0, t1):
        a.i('v_fma_f32 v%d, v%d, s%d, -v%d' % (y, v, s_hi, x))
    for v, x, y in zip(vs, t0, t1):
        a.i('v_fma_f32 v%d, v%d, s%d, v%d' % (y, v, s_lo, y))
    for v, x, y in zip(vs, t0, t1):
        a.i('v_exp_f32 v%d, v%d' % (y, y))
    for v, x, y in zip(vs, t0, t1):
        a.i('v_cvt_i32_f32 v%d, v%d' % (x, x))
    for v, x, y in zip(vs, t0, t1):
        a.i('v_ldexp_f32 v%d, v%d, v%d' % (v, y, x))


K1_LN_LDS = 18432
K1_KG_ROW = 528
K1_KG_LDS = 53 * K1_KG_ROW
K1_KG0 = K1_LN_LDS
K1_CNT = K1_KG0 + 4 * K1_KG_LDS
K1_LDS = K1_CNT + 32


def gen_k1(a):
    S_X, S_WR, S_WS, S_LA, S_AI, S_CR, S_CI, S_DT, S_WG, S_WU = 48, 52, 56, 60, 64, 68, 72, 76, 80, 4
    a.label('k1_kernel')
    a.i('s_cmp_ge_u32 s2, 256')
    a.i('s_cbranch_scc1 k1_end')
    load_ptrs(a)
    a.i('v_lshrrev_b32 v2, 6, v0')
    a.i('v_and_b32 v1, 63, v0')
    a.i('v_readfirstlane_b32 s3, v2')
    a.i('s_waitcnt lgkmcnt(0)')
    srd(a, S_WS, P_WS, WS_SIZE)
    stamp_init(a)
    a.i('s_cmp_ge_u32 s3, 12')
    a.flush()
    a.i('s_cbranch_scc1 k1_P')
    a.i('s_cmp_ge_u32 s3, 4')
    a.i('s_cbranch_scc1 k1_kgen')

    srd(a, S_X, P_X, 0x400000)
    srd(a, S_WR, P_WR, 2048)
    A, B, W = 8, 16, 24
    a.i('v_lshlrev_b32 v2, 4, v1')
    a.i('s_lshl_b32 s4, s2, 3')
    a.i('s_lshl_b32 s5, s3, 1')
    a.i('s_add_u32 s4, s4, s5')
    a.i('s_lshl_b32 s5, s4, 11')
    a.i('s_add_u32 s6, s5, 2048')
    a.i('buffer_load_dwordx4 v[8:11], v2, s[%d:%d], s5 offen nt' % (S_X, S_X + 3))
    a.i('buffer_load_dwordx4 v[12:15], v2, s[%d:%d], s5 offen offset:1024 nt' % (S_X, S_X + 3))
    a.i('buffer_load_dwordx4 v[16:19], v2, s[%d:%d], s6 offen nt' % (S_X, S_X + 3))
    a.i('buffer_load_dwordx4 v[20:23], v2, s[%d:%d], s6 offen offset:1024 nt' % (S_X, S_X + 3))
    a.i('buffer_load_dwordx4 v[24:27], v2, s[%d:%d], 0 offen' % (S_WR, S_WR + 3))
    a.i('buffer_load_dwordx4 v[28:31], v2, s[%d:%d], 0 offen offset:1024' % (S_WR, S_WR + 3))
    a.i('v_mov_b32 v35, %d' % K1_CNT)
    for r in range(4):
        a.i('v_mov_b32 v%d, 0' % (40 + r))
    a.i('s_mov_b64 exec, 1')
    a.i('ds_write_b128 v35, v[40:43]')
    a.i('ds_write_b128 v35, v[40:43] offset:16')
    a.i('s_mov_b64 exec, -1')
    a.i('s_waitcnt lgkmcnt(0)')
    a.i('s_barrier')
    for r in range(4):
        a.i('v_mov_b32 v%d, -1' % (40 + r))
    a.i('s_lshl_b32 s7, s2, 9')
    a.i('s_lshl_b32 s8, s3, 7')
    a.i('s_add_u32 s7, s7, s8')
    a.i('s_add_u32 s7, s7, 0x%x' % WS_GUP)
    a.i('s_mov_b64 exec, 0xff')
    a.i('buffer_store_dwordx4 v[40:43], v2, s[%d:%d], s7 offen' % (S_WS, S_WS + 3))
    a.i('s_mov_b64 exec, -1')
    a.i('s_lshl_b32 s7, s2, 12')
    a.i('s_lshl_b32 s8, s3, 10')
    a.i('s_add_u32 s7, s7, s8')
    a.i('s_add_u32 s7, s7, 0x%x' % WS_PART)
    a.i('buffer_store_dwordx4 v[40:43], v2, s[%d:%d], s7 offen' % (S_WS, S_WS + 3))
    for r in range(4):
        a.i('v_mov_b32 v%d, 0' % (44 + r))
    a.i('s_lshl_b32 s7, s2, 7')
    a.i('s_lshl_b32 s8, s3, 5')
    a.i('s_add_u32 s7, s7, s8')
    a.i('s_add_u32 s7, s7, 0x%x' % WS_YF)
    a.i('s_mov_b64 exec, 3')
    a.i('buffer_store_dwordx4 v[44:47], v2, s[%d:%d], s7 offen' % (S_WS, S_WS + 3))
    a.i('s_mov_b64 exec, -1')
    a.i('v_mul_u32_u24 v3, 144, v1')
    a.i('s_lshl_b32 s7, s3, 2')
    a.i('v_add_u32 v3, s7, v3')
    a.i('v_add_u32 v4, 9216, v3')
    a.i('v_lshrrev_b32 v5, 3, v0')
    a.i('v_add_u32 v5, v5, v0')
    a.i('v_lshlrev_b32 v5, 4, v5')
    a.i('v_lshrrev_b32 v6, 2, v0')
    a.i('v_lshlrev_b32 v6, 14, v6')
    a.i('v_and_b32 v7, 3, v0')
    a.i('v_lshl_add_u32 v6, v7, 4, v6')
    a.i('s_mov_b32 s8, 0x05040100')
    a.i('s_mov_b32 s9, 0x07060302')
    a.i('v_mov_b32 v32, 0x3f80')
    a.i('v_mov_b32 v33, 0x3f800000')
    a.i('v_mov_b32 v34, 0x3f803f80')
    a.i('v_mov_b32 v7, 1')
    a.i('s_lshl_b32 s10, s2, 6')
    a.i('s_add_u32 s10, s10, 0x%x' % WS_XN)
    a.i('s_waitcnt vmcnt(5)')
    stamp(a, 2)
    a.i('v_dot2_f32_bf16 v36, v%d, v34, 0' % A)
    a.i('v_dot2_f32_bf16 v37, v%d, v34, 0' % B)
    for i in range(1, 8):
        a.i('v_dot2_f32_bf16 v36, v%d, v34, v36' % (A + i))
        a.i('v_dot2_f32_bf16 v37, v%d, v34, v37' % (B + i))
    reduce2(a, 36, 37, 38)
    a.i('v_mul_f32 v36, %s, v36' % fbits(-1.0 / 1024))
    a.i('v_cvt_pk_bf16_f32 v39, 0, v36')
    a.i('v_xor_b32 v38, 0x80000000, v39')
    a.i('v_readlane_b32 s14, v39, 0')
    a.i('v_readlane_b32 s15, v39, 32')
    a.i('v_sub_f32 v36, v39, v36')
    for i in range(8):
        a.i('v_dot2_f32_bf16 v%d, v%d, v32, s14' % (64 + 2 * i, A + i))
        a.i('v_dot2_f32_bf16 v%d, v%d, v33, s14' % (65 + 2 * i, A + i))
    for i in range(8):
        a.i('v_dot2_f32_bf16 v%d, v%d, v32, s15' % (80 + 2 * i, B + i))
        a.i('v_dot2_f32_bf16 v%d, v%d, v33, s15' % (81 + 2 * i, B + i))
    a.i('v_mul_f32 v60, v64, v64')
    a.i('v_mul_f32 v61, v80, v80')
    a.i('v_mul_f32 v62, v65, v65')
    a.i('v_mul_f32 v63, v81, v81')
    for i in range(2, 16, 2):
        a.i('v_fmac_f32 v60, v%d, v%d' % (64 + i, 64 + i))
        a.i('v_fmac_f32 v61, v%d, v%d' % (80 + i, 80 + i))
        a.i('v_fmac_f32 v62, v%d, v%d' % (65 + i, 65 + i))
        a.i('v_fmac_f32 v63, v%d, v%d' % (81 + i, 81 + i))
    a.i('v_add_f32 v60, v60, v62')
    a.i('v_add_f32 v61, v61, v63')
    a.i('v_mul_f32 v36, v36, v36')
    reduce2(a, 60, 61, 62)
    a.i('v_mov_b32 v61, %s' % fbits(1.0 / 1024))
    a.i('v_fma_f32 v60, v60, v61, -v36')
    a.i('v_max_f32 v60, 0, v60')
    a.i('v_cvt_pk_bf16_f32 v60, 0, v60')
    a.i('v_add_f32 v60, %s, v60' % fbits(1e-5))
    a.i('v_cvt_pk_bf16_f32 v60, 0, v60')
    a.i('v_sqrt_f32 v60, v60')
    a.i('v_cvt_pk_bf16_f32 v60, 0, v60')
    a.i('v_rcp_f32 v39, v60')
    for i in range(32):
        a.i('v_cvt_pk_bf16_f32 v%d, 0, v%d' % (64 + i, 64 + i))
    a.i('v_readlane_b32 s14, v39, 0')
    a.i('v_readlane_b32 s15, v39, 32')
    for i in range(32):
        a.i('v_mul_f32 v%d, s%d, v%d' % (64 + i, 14 if i < 16 else 15, 64 + i))
    for i in range(16):
        a.i('v_cvt_pk_bf16_f32 v%d, v%d, v%d' % (96 + i, 64 + 2 * i, 65 + 2 * i))
    a.i('s_waitcnt vmcnt(3)')
    a.i('v_dot2_f32_bf16 v60, v96, v%d, 0' % W)
    a.i('v_dot2_f32_bf16 v61, v104, v%d, 0' % W)
    for i in range(1, 8):
        a.i('v_dot2_f32_bf16 v60, v%d, v%d, v60' % (96 + i, W + i))
        a.i('v_dot2_f32_bf16 v61, v%d, v%d, v61' % (104 + i, W + i))
    for i in range(16):
        a.i('v_lshlrev_b32 v%d, 16, v%d' % (64 + 2 * i, 96 + i))
        a.i('v_and_b32 v%d, 0xffff0000, v%d' % (65 + 2 * i, 96 + i))
    for i in range(8):
        t = 40 + 2 * i
        a.i('v_cvt_pk_f16_f32 v%d, v%d, v%d' % (t, 64 + 2 * i, 80 + 2 * i))
        a.i('v_cvt_pk_f16_f32 v%d, v%d, v%d' % (t + 1, 65 + 2 * i, 81 + 2 * i))
        a.i('ds_write2_b32 v%d, v%d, v%d offset0:%d offset1:%d' % (3 if i < 4 else 4, t, t + 1, 8 * (i % 4), 8 * (i % 4) + 4))
    lds_signal(a, 35, 7, 0)
    stamp(a, 3)
    reduce2(a, 60, 61, 62)
    a.i('v_cvt_pk_bf16_f32 v60, 0, v60')
    a.i('v_ashrrev_i32 v61, 31, v60')
    a.i('v_or_b32 v61, 0x80000000, v61')
    a.i('v_xor_b32 v60, v60, v61')
    a.i('v_and_b32 v60, 0xffff0000, v60')
    a.i('v_lshrrev_b32 v62, 5, v1')
    a.i('s_sub_u32 s14, 2047, s4')
    a.i('v_sub_u32 v61, s14, v62')
    a.i('v_or_b32 v60, v60, v61')
    a.i('v_readlane_b32 s14, v60, 0')
    a.i('v_readlane_b32 s15, v60, 32')
    a.i('v_lshlrev_b32 v62, 3, v62')
    a.i('s_lshl_b32 s5, s4, 3')
    a.i('s_add_u32 s5, s5, 0x%x' % WS_STATS)
    a.i('s_max_u32 s14, s14, s15')
    a.i('s_lshl_b32 s6, s4, 1')
    a.i('s_add_u32 s6, s6, 0x%x' % WS_KEYS)
    a.i('v_mov_b32 v60, s14')
    a.i('s_mov_b32 exec_lo, 1')
    a.i('s_mov_b32 exec_hi, 1')
    a.i('buffer_store_dwordx2 v[38:39], v62, s[%d:%d], s5 offen' % (S_WS, S_WS + 3))
    a.i('s_mov_b32 exec_hi, 0')
    a.i('buffer_store_dword v60, v62, s[%d:%d], s6 offen' % (S_WS, S_WS + 3))
    a.i('s_mov_b64 exec, -1')
    lds_poll(a, 35, 36, 0, 4, 'k1_lnp', 14)
    stamp(a, 4)
    for q in range(4):
        a.i('ds_read_b128 v[%d:%d], v5 offset:%d' % (64 + 4 * q, 67 + 4 * q, q * 4608))
    for q in range(4):
        a.i('s_waitcnt lgkmcnt(%d)' % (3 - q))
        if 'noW' not in EXP:
            a.i('buffer_store_dwordx4 v[%d:%d], v6, s[%d:%d], s10 offen %s' % (64 + 4 * q, 67 + 4 * q, S_WS, S_WS + 3, K1SF))
        if q < 3:
            a.i('s_add_u32 s10, s10, 0x100000')
    stamp(a, 5)
    stamp_flush(a, S_WS, 0)
    a.i('s_endpgm')

    a.label('k1_P')
    a.flush()
    srd(a, S_WG, P_WG, 1024 * 3584 * 2)
    srd(a, S_WU, P_WU, 1024 * 3584 * 2)
    a.i('s_and_b32 s8, s2, 7')
    a.i('s_lshr_b32 s9, s2, 3')
    a.i('s_sub_u32 s3, s3, 12')
    a.i('s_lshl_b32 s12, s9, 5')
    a.i('s_lshl_b32 s13, s3, 3')
    a.i('s_add_u32 s12, s12, s13')
    a.i('s_mul_i32 s12, s12, 7168')
    a.i('s_mul_i32 s13, s8, 896')
    a.i('s_add_u32 s12, s12, s13')
    a.i('v_lshlrev_b32 v3, 4, v1')
    a.i('s_cmp_lg_u32 s2, 0')
    a.i('s_cbranch_scc1 k1_nopt')
    a.i('s_lshr_b32 s14, 0x3412, 0')
    a.i('s_lshl_b32 s15, s3, 2')
    a.i('s_lshr_b32 s14, s14, s15')
    a.i('s_and_b32 s14, s14, 15')
    a.i('s_cmp_eq_u32 s3, 1')
    a.i('s_cselect_b32 s15, -4, -8')
    a.i('s_add_u32 s15, s15, s14')
    a.i('s_lshl_b32 s14, s14, 1')
    a.i('v_lshrrev_b32 v4, 4, v1')
    a.i('v_lshlrev_b32 v4, 3, v4')
    a.i('v_and_b32 v5, 15, v1')
    a.i('v_sub_u32 v4, v4, v5')
    a.i('v_add_u32 v4, s15, v4')
    a.i('v_mov_b32 v6, 0x3c00')
    a.i('v_mov_b32 v7, 0x3c000000')
    for e in range(8):
        a.i('v_add_u32 v8, %d, v4' % e)
        a.i('v_cmp_ge_u32 vcc, s14, v8')
        a.i('v_cndmask_b32 v%d, 0, v%d, vcc' % (16 + e, 6 + (e % 2)))
    for dd in range(4):
        a.i('v_or_b32 v%d, v%d, v%d' % (12 + dd, 16 + 2 * dd, 17 + 2 * dd))
    a.i('s_lshl_b32 s14, s3, 10')
    a.i('s_add_u32 s14, s14, 0x%x' % WS_PT)
    a.i('buffer_store_dwordx4 v[12:15], v3, s[%d:%d], s14 offen' % (S_WS, S_WS + 3))
    a.label('k1_nopt')
    a.flush()
    a.i('s_barrier')
    for r in range(4):
        a.i('v_mov_b32 v%d, -1' % (80 + r))
    a.i('s_lshl_b32 s14, s8, 5')
    a.i('s_add_u32 s14, s14, s9')
    a.i('s_lshl_b32 s14, s14, 2')
    a.i('s_add_u32 s14, s14, s3')
    a.i('s_lshl_b32 s14, s14, 12')
    for k in range(4):
        if 'noW' not in EXP:
            a.i('buffer_store_dwordx4 v[80:83], v3, s[%d:%d], s14 offen offset:%d' % (S_WS, S_WS + 3, 1024 * k))
    a.i('s_mov_b32 exec_hi, 0x00ffffff')
    PF = int(os.environ.get('PF', '6'))
    for i in range(int(os.environ.get('PFN', '6'))):
        if 2 * i >= PF:
            a.i('s_waitcnt vmcnt(%d)' % (PF - 2))
        a.i('buffer_load_dwordx4 v[%d:%d], v3, s[%d:%d], s12 offen %s' % (8 + 8 * i, 11 + 8 * i, S_WG, S_WG + 3, PFF))
        a.i('buffer_load_dwordx4 v[%d:%d], v3, s[%d:%d], s12 offen %s' % (12 + 8 * i, 15 + 8 * i, S_WU, S_WU + 3, PFF))
        if i < 7:
            a.i('s_add_u32 s12, s12, 7168')
    stamp(a, 2)
    stamp_flush(a, S_WS, 0)
    a.i('s_endpgm')

    a.label('k1_kgen')
    a.flush()
    srd(a, S_LA, P_LA, 0x40000)
    srd(a, S_AI, P_AI, 0x40000)
    srd(a, S_CR, P_CR, 0x40000)
    srd(a, S_CI, P_CI, 0x40000)
    srd(a, S_DT, P_DT, 2048)
    a.i('s_and_b32 s13, s3, 3')
    a.i('s_and_b32 s4, s2, 7')
    a.i('s_lshl_b32 s4, s4, 5')
    a.i('s_lshr_b32 s5, s2, 3')
    a.i('s_add_u32 s4, s4, s5')
    a.i('s_lshl_b32 s4, s4, 2')
    a.i('s_add_u32 s4, s4, s13')
    a.i('s_lshl_b32 s5, s4, 8')
    a.i('s_lshl_b32 s6, s4, 1')
    a.i('v_lshlrev_b32 v2, 2, v1')
    a.i('v_mov_b32 v3, 0')
    a.i('buffer_load_ushort v12, v3, s[%d:%d], s6 offen' % (S_DT, S_DT + 3))
    a.i('buffer_load_dword v8, v2, s[%d:%d], s5 offen nt' % (S_LA, S_LA + 3))
    a.i('buffer_load_dword v9, v2, s[%d:%d], s5 offen nt' % (S_AI, S_AI + 3))
    a.i('buffer_load_dword v10, v2, s[%d:%d], s5 offen nt' % (S_CR, S_CR + 3))
    a.i('buffer_load_dword v11, v2, s[%d:%d], s5 offen nt' % (S_CI, S_CI + 3))
    a.i('s_barrier')
    a.i('s_mov_b32 s8, %s' % fbits(L2E_HI))
    a.i('s_mov_b32 s9, %s' % fbits(L2E_LO))
    a.i('s_mov_b32 s10, %s' % fbits(I2PI_HI))
    a.i('s_mov_b32 s11, %s' % fbits(I2PI_LO))
    a.i('s_mul_i32 s7, s13, %d' % K1_KG_LDS)
    a.i('s_add_u32 s7, s7, %d' % K1_KG0)
    a.i('v_lshlrev_b32 v4, 3, v1')
    a.i('v_add_u32 v4, s7, v4')
    a.i('s_lshl_b32 s12, s13, 2')
    a.i('s_add_u32 s12, s12, %d' % (K1_CNT + 4))
    a.i('v_mov_b32 v31, s12')
    a.i('s_mul_i32 s5, s4, %d' % KT_STRIDE)
    a.i('s_add_u32 s5, s5, 0x%x' % WS_KT)
    a.i('s_waitcnt vmcnt(2)')
    stamp(a, 2)
    a.i('v_lshlrev_b32 v12, 16, v12')
    a.i('v_lshlrev_b32 v14, 16, v8')
    a.i('v_and_b32 v15, 0xffff0000, v8')
    exp_acc(a, [12, 14, 15], [22, 23, 24], [25, 26, 27], 8, 9)
    a.i('v_cvt_pk_bf16_f32 v12, 0, v12')
    a.i('v_cvt_pk_bf16_f32 v14, 0, v14')
    a.i('v_cvt_pk_bf16_f32 v15, 0, v15')
    a.i('v_lshlrev_b32 v16, 16, v9')
    a.i('v_and_b32 v17, 0xffff0000, v9')
    for r in range(14, 18):
        a.i('v_mul_f32 v%d, v12, v%d' % (r, r))
    a.i('v_mul_f32 v14, %s, v14' % fbits(-L2E_HI))
    a.i('v_mul_f32 v15, %s, v15' % fbits(-L2E_HI))
    for j in range(2):
        a.i('v_mul_f32 v%d, s10, v%d' % (22 + j, 16 + j))
    for j in range(2):
        a.i('v_fma_f32 v%d, v%d, s10, -v%d' % (24 + j, 16 + j, 22 + j))
    for j in range(2):
        a.i('v_fma_f32 v%d, v%d, s11, v%d' % (24 + j, 16 + j, 24 + j))
    for j in range(2):
        a.i('v_rndne_f32 v%d, v%d' % (26 + j, 22 + j))
    for j in range(2):
        a.i('v_sub_f32 v%d, v%d, v%d' % (22 + j, 22 + j, 26 + j))
    for j in range(2):
        a.i('v_add_f32 v%d, v%d, v%d' % (16 + j, 22 + j, 24 + j))

    def direct(pairs):
        for n, (p, e) in enumerate(pairs):
            pf = fbits(float(p))
            for j in range(2):
                a.i('v_mul_f32 v%d, %s, v%d' % (80 + 4 * n + j, pf, 14 + j))
                a.i('v_mul_f32 v%d, %s, v%d' % (82 + 4 * n + j, pf, 16 + j))
        for n, (p, e) in enumerate(pairs):
            for j in range(2):
                a.i('v_fract_f32 v%d, v%d' % (82 + 4 * n + j, 82 + 4 * n + j))
                a.i('v_exp_f32 v%d, v%d' % (80 + 4 * n + j, 80 + 4 * n + j))
        for n, (p, e) in enumerate(pairs):
            for j in range(2):
                a.i('v_cos_f32 v%d, v%d' % (e + j, 82 + 4 * n + j))
                a.i('v_sin_f32 v%d, v%d' % (e + 2 + j, 82 + 4 * n + j))
        for n, (p, e) in enumerate(pairs):
            a.i('v_pk_mul_f32 v[%d:%d], v[%d:%d], v[%d:%d]' % (e, e + 1, e, e + 1, 80 + 4 * n, 81 + 4 * n))
            a.i('v_pk_mul_f32 v[%d:%d], v[%d:%d], v[%d:%d]' % (e + 2, e + 3, e + 2, e + 3, 80 + 4 * n, 81 + 4 * n))
    E1, E8, E64, E256, E2, E4 = 40, 44, 48, 52, 56, 60
    tmpc = [0]

    def cmuls(lst):
        ts = []
        for _ in lst:
            ts.append(80 + 4 * (tmpc[0] % 4))
            tmpc[0] += 1
        for (d, x, y), t in zip(lst, ts):
            a.i('v_pk_mul_f32 v[%d:%d], v[%d:%d], v[%d:%d]' % (t, t + 1, x, x + 1, y, y + 1))
            a.i('v_pk_mul_f32 v[%d:%d], v[%d:%d], v[%d:%d]' % (t + 2, t + 3, x, x + 1, y + 2, y + 3))
        for (d, x, y), t in zip(lst, ts):
            a.i('v_pk_fma_f32 v[%d:%d], v[%d:%d], v[%d:%d], v[%d:%d] neg_lo:[1,0,0] neg_hi:[1,0,0]' % (d, d + 1, x + 2, x + 3, y + 2, y + 3, t, t + 1))
            a.i('v_pk_fma_f32 v[%d:%d], v[%d:%d], v[%d:%d], v[%d:%d]' % (d + 2, d + 3, x + 2, x + 3, y, y + 1, t + 2, t + 3))
    outc = [0]

    def emit(x, row, neg):
        o = 96 + 2 * (outc[0] % 8)
        outc[0] += 1
        n = '-' if neg else ''
        a.i('v_cvt_pk_f16_f32 v%d, v%d, %sv%d' % (o, x, n, x + 2))
        a.i('v_cvt_pk_f16_f32 v%d, v%d, %sv%d' % (o + 1, x + 1, n, x + 3))
        a.i('ds_write_b64 v4, v[%d:%d] offset:%d' % (o, o + 1, row * K1_KG_ROW))
    a.i('s_cmp_ge_u32 s3, 8')
    a.flush()
    a.i('s_cbranch_scc1 k1_KA')

    for r in range(4):
        a.i('v_mov_b32 v%d, 0' % (100 + r))
    a.i('v_lshlrev_b32 v5, 4, v1')
    a.i('buffer_store_dwordx4 v[100:103], v5, s[%d:%d], s5 offen' % (S_WS, S_WS + 3))
    a.i('s_mov_b32 exec_hi, 0x7fffffff')
    a.i('buffer_store_dwordx4 v[100:103], v5, s[%d:%d], s5 offen offset:1024' % (S_WS, S_WS + 3))
    a.i('s_mov_b64 exec, -1')
    direct([(8, E8), (64, 68)])
    stamp(a, 3)
    F = [64, 68, 72, 76]
    a.i('v_mov_b32 v96, 0x3c00')
    a.i('v_mov_b32 v97, 0x3c00')
    a.i('ds_write_b64 v4, v[96:97] offset:%d' % (21 * K1_KG_ROW))
    outc[0] = 1
    cmuls([(72, 68, 68)])
    emit(E8, 21 + 1, False)
    emit(68, 21 + 8, False)
    cmuls([(76, 72, 68), (64, E8, E8)])
    emit(72, 21 + 16, False)
    cmuls([(68, 68, E8), (72, 72, E8)])
    emit(76, 21 + 24, False)
    emit(64, 21 + 2, False)
    cmuls([(76, 76, E8)])
    emit(68, 21 + 9, False)
    emit(72, 21 + 17, False)
    emit(76, 21 + 25, False)
    for i in range(2, 8):
        if i < 7:
            cmuls([(F[0], F[0], E8), (F[1], F[1], E8), (F[2], F[2], E8), (F[3], F[3], E8)])
            emit(F[0], 21 + i + 1, False)
        else:
            cmuls([(F[1], F[1], E8), (F[2], F[2], E8), (F[3], F[3], E8)])
        for qq in range(1, 4):
            emit(F[qq], 21 + 8 * qq + i, False)
    a.i('v_and_b32 v5, 31, v1')
    a.i('v_lshrrev_b32 v6, 5, v1')
    a.i('v_min_u32 v7, 20, v5')
    a.i('v_mul_u32_u24 v7, %d, v7' % K1_KG_ROW)
    a.i('v_lshl_add_u32 v7, v6, 4, v7')
    a.i('v_add_u32 v7, s7, v7')
    a.i('v_mul_u32_u24 v13, %d, v5' % K1_KG_ROW)
    a.i('v_lshl_add_u32 v13, v6, 4, v13')
    a.i('s_add_u32 s12, s7, %d' % (21 * K1_KG_ROW))
    a.i('v_add_u32 v13, s12, v13')
    a.i('s_waitcnt lgkmcnt(0)')
    stamp(a, 4)
    ACC = 112
    FB, FA = 16, 80
    a.i('v_mov_b32 v14, v31')
    for s in range(16):
        a.i('ds_read_b128 v[%d:%d], v13 offset:%d' % (FB + 4 * s, FB + 4 * s + 3, 32 * s))
    a.i('v_lshlrev_b32 v8, 4, v5')
    a.i('v_lshl_add_u32 v9, v6, 3, v8')
    a.i('v_sub_u32 v9, 1080, v9')
    a.i('v_sub_u32 v10, 560, v8')
    a.i('v_sub_u32 v11, 48, v8')
    a.i('v_lshlrev_b32 v12, 2, v5')
    a.i('v_lshlrev_b32 v13, 1, v5')
    lds_poll(a, 14, 15, 0, 1, 'k1_kap', 14)
    stamp(a, 5)
    for s in range(8):
        a.i('ds_read_b128 v[%d:%d], v7 offset:%d' % (FA + 4 * s, FA + 4 * s + 3, 32 * s))
    for s in range(16):
        a.i('s_waitcnt lgkmcnt(%d)' % (7 if s < 8 else 15 - s))
        f = FA + 4 * (s % 8)
        a.i('v_mfma_f32_32x32x16_f16 v[%d:%d], v[%d:%d], v[%d:%d], %s' % (ACC, ACC + 15, f, f + 3, FB + 4 * s, FB + 4 * s + 3, '0' if s == 0 else 'v[%d:%d]' % (ACC, ACC + 15)))
        if s < 8:
            a.i('ds_read_b128 v[%d:%d], v7 offset:%d' % (f, f + 3, 32 * (s + 8)))
    stamp(a, 6)
    D = ACC
    a.i('v_mov_b32 v17, 0')
    a.i('v_cmp_ne_u32 vcc, 33, v1')
    a.i('v_mov_b32 v17, v%d wave_shl:1' % (D + 4))
    a.i('v_cvt_pk_f16_f32 v40, v%d, v%d' % (D + 3, D + 2))
    a.i('v_cvt_pk_f16_f32 v41, v%d, v%d' % (D + 1, D + 0))
    a.i('buffer_store_dwordx2 v[40:41], v9, s[%d:%d], s5 offen' % (S_WS, S_WS + 3))
    a.i('v_cvt_pk_f16_f32 v44, v17, v%d' % (D + 7))
    a.i('v_cvt_pk_f16_f32 v45, v%d, v%d' % (D + 6, D + 6))
    a.i('v_cvt_pk_f16_f32 v46, v%d, v%d' % (D + 6, D + 5))
    a.i('v_cvt_pk_f16_f32 v47, v%d, v%d' % (D + 4, D + 4))
    a.i('v_cvt_pk_f16_f32 v48, v17, v17')
    a.i('v_cvt_pk_f16_f32 v49, v%d, v%d' % (D + 5, D + 5))
    a.i('v_cvt_pk_f16_f32 v50, v%d, v%d' % (D + 5, D + 4))
    a.i('v_mov_b32 v51, v47')
    a.i('v_cndmask_b32 v48, 0, v48, vcc')
    a.i('v_cvt_pk_f16_f32 v52, v%d, v%d' % (D + 4, D + 5))
    a.i('v_cvt_pk_f16_f32 v53, v%d, v%d' % (D + 6, D + 7))
    a.i('v_cvt_pk_f16_f32 v54, v%d, v%d' % (D + 8, D + 9))
    a.i('v_cvt_pk_f16_f32 v55, v%d, v%d' % (D + 10, D + 11))
    W_ = (S_WS, S_WS + 3)
    a.i('s_mov_b32 exec_hi, 0')
    a.i('buffer_store_dwordx4 v[44:47], v10, s[%d:%d], s5 offen' % W_)
    a.i('buffer_store_short_d16_hi v54, v13, s[%d:%d], s5 offen offset:%d' % (W_ + (KT_C4 + 2 * (29 + 32),)))
    a.i('buffer_store_short v55, v13, s[%d:%d], s5 offen offset:%d' % (W_ + (KT_C4 + 2 * (29 + 64),)))
    a.i('buffer_store_short_d16_hi v55, v13, s[%d:%d], s5 offen offset:%d' % (W_ + (KT_C4 + 2 * (29 + 96),)))
    a.i('s_mov_b32 exec_lo, -2')
    a.i('buffer_store_short v54, v13, s[%d:%d], s5 offen offset:%d' % (W_ + (KT_C4 + 2 * 29,)))
    a.i('s_mov_b32 exec_lo, 1')
    a.i('buffer_store_short v54, v3, s[%d:%d], s5 offen offset:%d' % (W_ + (KT_C3 + 2 * 184,)))
    a.i('buffer_store_short v54, v3, s[%d:%d], s5 offen offset:%d' % (W_ + (KT_ES + 54,)))
    a.i('buffer_store_short v54, v3, s[%d:%d], s5 offen offset:%d' % (W_ + (KT_ES + 56,)))
    a.i('s_mov_b32 exec_lo, 0')
    a.i('s_mov_b32 exec_hi, -1')
    a.i('buffer_store_dword v53, v12, s[%d:%d], s5 offen offset:%d' % (W_ + (KT_C3 + 240,)))
    a.i('s_mov_b32 exec_hi, -4')
    a.i('buffer_store_dword v52, v12, s[%d:%d], s5 offen offset:%d' % (W_ + (KT_C3 + 112,)))
    a.i('s_mov_b32 exec_hi, 3')
    a.i('buffer_store_dwordx4 v[48:51], v11, s[%d:%d], s5 offen' % W_)
    a.i('s_mov_b32 exec_hi, 1')
    a.i('buffer_store_short v54, v3, s[%d:%d], s5 offen offset:%d' % (W_ + (KT_C4 + 2 * 157,)))
    stamp(a, 7)
    stamp_flush(a, S_WS, 0)
    a.i('s_endpgm')

    a.label('k1_KA')
    a.flush()
    a.i('s_waitcnt vmcnt(0)')
    a.i('v_lshlrev_b32 v18, 16, v10')
    a.i('v_and_b32 v19, 0xffff0000, v10')
    a.i('v_lshlrev_b32 v20, 16, v11')
    a.i('v_and_b32 v21, 0xffff0000, v11')
    for r in range(18, 22):
        a.i('v_mul_f32 v%d, v12, v%d' % (r, r))
    a.i('v_add_f32 v28, abs(v18), abs(v19)')
    a.i('v_add_f32 v29, abs(v20), abs(v21)')
    a.i('v_add_f32 v28, v28, v29')
    direct([(1, E1), (256, E256)])
    reduce1(a, 28, 29)
    cmuls([(E2, E1, E1)])
    a.i('v_lshrrev_b32 v28, 23, v28')
    a.i('v_add_u32 v28, 1, v28')
    a.i('v_max_u32 v28, 20, v28')
    a.i('v_min_u32 v28, 255, v28')
    a.i('v_sub_u32 v29, 268, v28')
    a.i('v_lshlrev_b32 v29, 23, v29')
    a.i('v_subrev_u32 v30, 13, v28')
    a.i('v_lshlrev_b32 v30, 23, v30')
    cmuls([(E4, E2, E2)])
    stamp(a, 3)
    G, H, T1, T2 = 64, 68, 72, 76
    a.i('v_mul_f32 v64, v29, v18')
    a.i('v_mul_f32 v65, v29, v19')
    a.i('v_mul_f32 v66, v29, v20')
    a.i('v_mul_f32 v67, v29, v21')
    G2 = 44
    emit(G, 0, True)
    cmuls([(H, G, E1), (G2, G, E256)])
    emit(H, 1, True)
    emit(G2, 8, True)
    cmuls([(H, H, E1), (T1, G2, E2), (G, G2, E256)])
    emit(H, 2, True)
    emit(T1, 9, True)
    emit(G, 12, True)
    cmuls([(H, H, E1), (T1, T1, E2), (T2, G, E4), (G2, G, E256)])
    emit(H, 3, True)
    emit(T1, 10, True)
    emit(T2, 13, True)
    emit(G2, 14, True)
    cmuls([(H, H, E1), (T1, T1, E2), (T2, G2, E4), (G, G2, E256)])
    emit(H, 4, True)
    emit(T1, 11, True)
    emit(T2, 15, True)
    emit(G, 16, True)
    for k in range(3):
        cmuls([(H, H, E1), (G, G, E256)])
        emit(H, 5 + k, True)
        emit(G, 17 + k, True)
    cmuls([(G, G, E256)])
    emit(G, 20, True)
    a.i('v_mov_b32 v29, 1')
    lds_signal(a, 31, 29, 0)
    a.i('s_mov_b64 exec, 1')
    a.i('buffer_store_dword v30, v3, s[%d:%d], s5 offen offset:%d' % (S_WS, S_WS + 3, KT_INV))
    stamp(a, 4)
    stamp_flush(a, S_WS, 0)
    a.label('k1_end')
    a.i('s_endpgm')


CH_XN = 0
CH_KN = 4608
KN_COPY = 1088
CH_STRIDE = CH_KN + 8 * KN_COPY + 16
AUX_W = (4 * CH_STRIDE + 127) // 128 * 128
AUX_YT = AUX_W + 65536
AUX_RD = AUX_YT + 16384
AUX_XS = AUX_RD + 512
AUX_Z = AUX_XS + 512
AUX_HS = AUX_Z + 512
AUX_CNT = AUX_HS + 64
K2_LDS = AUX_CNT + 32
WD_RS = 544


class LdsQ:
    def __init__(self, a):
        self.a = a
        self.n = 0
        self.done = 0

    def issue(self, text):
        self.a.i(text)
        self.n += 1
        return self.n

    def wait(self, seq):
        if seq <= self.done:
            return
        out = self.n - seq
        if out > 15:
            out = 15
        self.a.i('s_waitcnt lgkmcnt(%d)' % out)
        self.done = self.n - out


class Sched:
    def __init__(self, a):
        self.a = a
        self.ops = []

    @staticmethod
    def R(base, n=4):
        return set(range(base, base + n))

    def mfma(self, text, reads, writes):
        self.ops.append(dict(k='m', t=[text], r=set(reads), w=set(writes)))

    def lds_read(self, text, reads, writes, lead):
        self.ops.append(dict(k='l', t=[text], r=set(reads), w=set(writes), lead=lead))

    def lds_write(self, texts, reads, lead=0):
        self.ops.append(dict(k='w', t=list(texts), r=set(reads), w=set(), lead=lead))

    def valu(self, text, reads, writes, lead):
        self.ops.append(dict(k='v', t=[text], r=set(reads), w=set(writes), lead=lead))

    def run(self, cap=2, mdist=6):
        a = self.a
        nm = sum(1 for o in self.ops if o['k'] == 'm')
        buckets = {i: [] for i in range(-1, nm)}
        vcount = {i: 0 for i in range(-1, nm)}
        placed = []
        mpos = 0
        mlist = []
        lastw_pos = -1
        for o in self.ops:
            if o['k'] == 'm':
                o['pos'] = mpos
                mlist.append(o)
                placed.append(o)
                mpos += 1
                continue
            lb = -1
            for p in placed:
                raw = p['w'] & o['r']
                if raw or (p['r'] & o['w']) or (p['w'] & o['w']):
                    pp = p['pos']
                    if p['k'] == 'm' and (raw or (p['w'] & o['w'])):
                        pp += mdist
                    if p['k'] == 'l' and raw:
                        pp += 8
                    lb = max(lb, pp)
            if o['k'] == 'w':
                lb = max(lb, lastw_pos)
            dl = mpos - 1
            if o['k'] in ('v', 'w') and o.get('lead', 0) < 0:
                dl = nm - 1
            t = min(max(lb, mpos - 1 - max(o['lead'], 0)), max(dl, min(lb, nm - 1))) if o['lead'] >= 0 else min(lb, nm - 1)
            if o['k'] == 'v':
                while vcount[t] >= cap and t < dl:
                    t += 1
                vcount[t] += 1
            if t > dl:
                t = dl
            for p in placed:
                if (p['w'] & o['r']) or (p['r'] & o['w']) or (p['w'] & o['w']):
                    assert p['pos'] <= t, (p, o, t)
            o['pos'] = t
            if o['k'] == 'w':
                lastw_pos = t
            buckets[t].append(o)
            placed.append(o)
        q = LdsQ(a)
        pend = {}

        def emit(o):
            need = 0
            for r in (o['r'] | o['w']):
                if r in pend:
                    need = max(need, pend[r])
            if need:
                q.wait(need)
            if o['k'] == 'l':
                sq = q.issue(o['t'][0])
                for r in o['w']:
                    pend[r] = sq
            elif o['k'] == 'w':
                for t in o['t']:
                    if t.startswith('ds_'):
                        q.issue(t)
                    else:
                        a.i(t)
            else:
                a.i(o['t'][0])
        for o in buckets[-1]:
            emit(o)
        for i, m in enumerate(mlist):
            emit(m)
            for o in buckets[i]:
                emit(o)


def argmax_keys(a, K, t):
    a.i('v_max3_u32 v%d, v%d, v%d, v%d' % (K, K, K + 1, K + 2))
    a.i('v_max3_u32 v%d, v%d, v%d, v%d' % (K + 3, K + 3, K + 4, K + 5))
    a.i('v_max3_u32 v%d, v%d, v%d, v%d' % (K + 6, K + 6, K + 7, K + 8))
    a.i('v_max3_u32 v%d, v%d, v%d, v%d' % (K + 9, K + 9, K + 10, K + 11))
    a.i('v_max3_u32 v%d, v%d, v%d, v%d' % (K + 12, K + 12, K + 13, K + 14))
    a.i('v_max3_u32 v%d, v%d, v%d, v%d' % (K, K, K + 3, K + 6))
    a.i('v_max3_u32 v%d, v%d, v%d, v%d' % (K + 9, K + 9, K + 12, K + 15))
    a.i('v_max_u32 v%d, v%d, v%d' % (K, K, K + 9))
    reduce1(a, K, t, 'v_max_u32')


def lds_signal(a, vaddr, vone, off):
    a.i('s_waitcnt lgkmcnt(0)')
    a.i('s_mov_b64 exec, 1')
    a.i('ds_add_u32 v%d, v%d offset:%d' % (vaddr, vone, off))
    a.i('s_mov_b64 exec, -1')


def lds_poll(a, vaddr, vt, off, target, lab, stmp):
    a.flush()
    a.label(lab)
    a.i('ds_read_b32 v%d, v%d offset:%d' % (vt, vaddr, off))
    a.i('s_waitcnt lgkmcnt(0)')
    a.i('v_readfirstlane_b32 s%d, v%d' % (stmp, vt))
    a.i('s_cmp_ge_u32 s%d, %d' % (stmp, target))
    a.i('s_cbranch_scc1 %s_done' % lab)
    a.i('s_sleep 1')
    a.i('s_branch %s' % lab)
    a.label(lab + '_done')
    a.flush()


def lds_poll_s(a, vaddr, vt, off, starget, lab, stmp, sleep=2):
    a.flush()
    a.label(lab)
    a.i('ds_read_b32 v%d, v%d offset:%d' % (vt, vaddr, off))
    a.i('s_waitcnt lgkmcnt(0)')
    a.i('v_readfirstlane_b32 s%d, v%d' % (stmp, vt))
    a.i('s_cmp_ge_u32 s%d, s%d' % (stmp, starget))
    a.i('s_cbranch_scc1 %s_done' % lab)
    a.i('s_sleep %d' % sleep)
    a.i('s_branch %s' % lab)
    a.label(lab + '_done')
    a.flush()


def unpack2(a, dlo, dhi, src):
    a.i('v_lshlrev_b32 v%d, 16, v%d' % (dlo, src))
    a.i('v_and_b32 v%d, 0xffff0000, v%d' % (dhi, src))


def gen_k2(a):
    S_X, S_WS, S_DK, S_WG, S_WU, S_WD, S_OUT, S_DBG = 48, 52, 56, 60, 64, 68, 72, 76
    a.label('k2_kernel')
    a.i('s_cmp_ge_u32 s2, 256')
    a.i('s_cbranch_scc1 k2_end')
    load_ptrs(a)
    a.i('v_lshrrev_b32 v2, 6, v0')
    a.i('v_and_b32 v1, 63, v0')
    a.i('v_readfirstlane_b32 s3, v2')
    a.i('s_and_b32 s4, s2, 7')
    a.i('s_lshr_b32 s5, s2, 3')
    a.i('s_lshl_b32 s6, s4, 5')
    a.i('s_add_u32 s6, s6, s5')
    a.i('s_mul_i32 s7, s4, 7')
    a.i('s_lshr_b32 s8, s5, 2')
    a.i('s_add_u32 s7, s7, s8')
    a.i('s_and_b32 s8, s5, 3')
    a.i('s_waitcnt lgkmcnt(0)')
    srd(a, S_X, P_X, 0x400000)
    srd(a, S_WS, P_WS, WS_SIZE)
    srd(a, S_DK, P_DK, 2048)
    srd(a, S_WG, P_WG, 1024 * 3584 * 2)
    srd(a, S_WU, P_WU, 1024 * 3584 * 2)
    srd(a, S_WD, P_WD, 1024 * 3584 * 2)
    srd(a, S_OUT, P_OUT, 0x400000)
    srd(a, S_DBG, P_DBG, 256)
    stamp_init(a)
    a.i('s_cmp_ge_u32 s3, 8')
    a.flush()
    a.i('s_cbranch_scc1 k2_E')
    a.i('s_cmp_ge_u32 s3, 4')
    a.i('s_cbranch_scc1 k2_G')

    VB, VY, VA, QT = 2, 3, 4, 6
    ACC = 8
    P3 = (40, 44)
    P4 = (48, 52)
    C3 = {(2, 0): 56, (2, 1): 60, (3, 0): 64, (3, 1): 68, (4, 0): 72, (4, 1): 76}
    C4 = {4: 80, 5: 84, 6: 88, 7: 92}
    D3, D4 = 96, 112
    FR = [(120, 124, 128), (132, 136, 140)]
    WN = {-8: 144, -16: 148, 0: 152}
    F16, FS = 160, 164
    free_order = [92, 88, 84, 156, 48, 52, 152, 112, 116, 80, 72, 76, 128, 140, 64, 68]
    need_order = [7, 15, 6, 14, 5, 13, 4, 12, 3, 11, 2, 10, 1, 9, 0, 8]
    AR = {cp: r for cp, r in zip(need_order, free_order)}
    AR[16] = F16
    RING = [40, 44, 144, 148, 96, 100, 104, 108]
    a.i('s_lshl_b32 s9, s6, 2')
    a.i('s_add_u32 s9, s9, s3')
    a.i('s_lshl_b32 s10, s9, 11')
    a.i('s_add_u32 s10, s10, 0x%x' % WS_KT)
    a.i('s_lshl_b32 s15, s9, 12')
    a.i('s_lshr_b32 s16, s9, 7')
    a.i('s_lshl_b32 s16, s16, 12')
    a.i('s_and_b32 s17, s9, 127')
    a.i('s_lshl_b32 s17, s17, 2')
    a.i('s_add_u32 s16, s16, s17')
    a.i('s_add_u32 s16, s16, 0x%x' % WS_YF)
    a.i('s_mul_i32 s9, s3, %d' % CH_STRIDE)
    a.i('v_lshlrev_b32 v24, 4, v1')
    a.i('v_sub_u32 v25, 1072, v24')
    a.i('v_and_b32 v36, 15, v1')
    a.i('v_lshrrev_b32 v37, 4, v1')
    a.i('v_lshlrev_b32 v38, 3, v37')
    a.i('v_sub_u32 v38, v38, v36')
    a.i('v_lshlrev_b32 v26, 1, v38')
    a.i('v_add_u32 v26, 30, v26')
    a.i('v_lshlrev_b32 v39, 2, v37')
    a.i('v_sub_u32 v39, v36, v39')
    a.i('v_add_u32 v39, 12, v39')
    a.i('v_lshlrev_b32 v27, 3, v39')
    a.i('v_lshlrev_b32 v23, 2, v39')
    a.i('v_mov_b32 v28, 0')
    a.i('s_mov_b32 s13, 0x%x' % WS_PT)
    R1 = 96
    W_ = (S_WS, S_WS + 3)
    a.i('buffer_load_dwordx4 v[%d:%d], v25, s[%d:%d], s10 offen' % ((R1, R1 + 3) + W_))
    a.i('buffer_load_dwordx4 v[%d:%d], v25, s[%d:%d], s10 offen offset:16' % ((R1 + 4, R1 + 7) + W_))
    for r in range(4):
        a.i('v_mov_b32 v%d, 0' % (32 + r))
    a.i('v_add_u32 v29, s9, v24')
    a.i('v_mul_u32_u24 v30, %d, v1' % KN_COPY)
    a.i('v_add_u32 v30, s9, v30')
    a.i('v_mov_b32 v31, %d' % AUX_CNT)
    a.i('s_mov_b32 exec_lo, 1')
    a.i('s_mov_b32 exec_hi, 0')
    a.i('ds_write_b128 v31, v[32:35]')
    a.i('ds_write_b128 v31, v[32:35] offset:16')
    a.i('s_waitcnt lgkmcnt(0)')
    a.i('s_barrier')
    if 'onlyG' in EXP:
        a.i('s_endpgm')
    a.i('s_mov_b32 exec_lo, -1')
    a.i('ds_write_b128 v29, v[32:35] offset:%d' % CH_XN)
    a.i('s_mov_b32 exec_lo, 0xff')
    a.i('ds_write_b128 v30, v[32:35] offset:%d' % CH_KN)
    a.i('s_mov_b64 exec, -1')
    for n_, reg in enumerate((P3[0], P3[1], P4[0], P4[1])):
        a.i('buffer_load_dwordx4 v[%d:%d], v24, s[%d:%d], s13 offen offset:%d' % ((reg, reg + 3) + W_ + (1024 * n_,)))
    for (dl, hh), reg in C3.items():
        a.i('buffer_load_dwordx4 v[%d:%d], v27, s[%d:%d], s10 offen offset:%d' % ((reg, reg + 3) + W_ + (KT_C3 + 8 * (16 * dl - 2 * hh - 12) - 144,)))
    for dl, reg in C4.items():
        a.i('buffer_load_dwordx4 v[%d:%d], v23, s[%d:%d], s10 offen offset:%d' % ((reg, reg + 3) + W_ + (KT_C4 + 4 * (16 * dl - 2 - 12) - 200,)))
    a.i('buffer_load_dword v7, v28, s[%d:%d], s10 offen offset:%d' % (W_ + (KT_INV,)))
    a.i('buffer_load_dwordx4 v[%d:%d], v26, s[%d:%d], s10 offen' % ((F16, F16 + 3) + W_))
    a.i('buffer_load_dwordx4 v[%d:%d], v26, s[%d:%d], s10 offen offset:%d' % ((FS, FS + 3) + W_ + (KT_ES,)))
    a.i('v_and_b32 v%d, 7, v36' % VA)
    a.i('v_mul_u32_u24 v%d, %d, v%d' % (VA, KN_COPY, VA))
    a.i('v_lshrrev_b32 v39, 3, v36')
    a.i('v_sub_u32 v39, v39, v37')
    a.i('v_add_u32 v39, 3, v39')
    a.i('v_lshl_add_u32 v%d, v39, 4, v%d' % (VA, VA))
    a.i('s_add_u32 s12, s9, %d' % CH_KN)
    a.i('v_add_u32 v%d, s12, v%d' % (VA, VA))
    a.i('v_lshlrev_b32 v%d, 5, v36' % VB)
    a.i('v_lshl_add_u32 v%d, v37, 4, v%d' % (VB, VB))
    a.i('s_add_u32 s12, s9, %d' % (CH_XN + 32))
    a.i('v_add_u32 v%d, s12, v%d' % (VB, VB))
    a.i('v_lshlrev_b32 v%d, 5, v36' % VY)
    a.i('v_lshl_add_u32 v%d, v37, 3, v%d' % (VY, VY))
    a.i('s_add_u32 s12, s9, %d' % (CH_KN + 16))
    a.i('v_add_u32 v30, s12, v24')
    a.i('v_mov_b32 v%d, %d' % (QT, AUX_CNT))
    a.i('s_waitcnt vmcnt(17)')
    stamp(a, 2)
    S_, Rp, Sp = 104, 112, 120
    for i in range(7):
        a.i('v_alignbit_b32 v%d, v%d, v%d, 16' % (S_ + i, R1 + i + 1, R1 + i))
    for i in range(1, 7):
        a.i('v_mov_b32 v%d, v%d' % (Rp + i - 1, R1 + i))
    for i in range(1, 7):
        a.i('v_alignbit_b32 v%d, v%d, v%d, 16' % (Sp + i - 1, R1 + i + 1, R1 + i))
    for c, src in ((7, R1), (5, Rp), (3, R1 + 2), (1, Rp + 2), (6, S_), (4, Sp), (2, S_ + 2), (0, Sp + 2)):
        a.i('ds_write_b128 v30, v[%d:%d] offset:%d' % (src, src + 3, c * KN_COPY))
    a.i('s_waitcnt vmcnt(0) lgkmcnt(0)')
    a.i('v_readfirstlane_b32 s11, v7')
    stamp(a, 3)
    lds_poll(a, QT, QT + 1, 0, 4, 'k2_cst', 14)
    stamp(a, 4)

    sc = Sched(a)
    R = Sched.R
    started = set()

    def mm(dst, A_, B_, accum=True):
        first = (dst not in started) or not accum
        started.add(dst)
        sc.mfma('v_mfma_f32_16x16x32_f16 v[%d:%d], v[%d:%d], v[%d:%d], %s' % (dst, dst + 3, A_, A_ + 3, B_, B_ + 3, '0' if first else 'v[%d:%d]' % (dst, dst + 3)),
                R(A_) | R(B_) | (set() if first else R(dst)), R(dst))

    def stA(beta):
        for w in ((-8, -16, 0) if beta < 4 else (-8, -16)):
            sc.lds_read('ds_read_b128 v[%d:%d], v%d offset:%d' % (WN[w], WN[w] + 3, VB, 2 * (256 * beta + w) + 448), {VB}, R(WN[w]), 14)
        for phi in range(4):
            mm(D3 + 4 * phi, WN[-8 if phi < 2 else -16], P3[phi % 2], accum=False)
        if beta < 4:
            mm(D4, WN[-8], P4[0], accum=False)
            mm(D4 + 4, WN[0], P4[1], accum=False)

    def cvt(d, x, y):
        sc.valu('v_cvt_pk_f16_f32 v%d, v%d, v%d' % (d, x, y), {x, y}, {d}, 40)

    def stB(beta):
        f = FR[beta % 2]
        for hh in range(2):
            r0, r1 = 2 * hh, 2 * hh + 1
            cvt(f[hh] + 0, D3 + r1, D3 + 4 + r1)
            cvt(f[hh] + 1, D3 + 8 + r1, D3 + 12 + r1)
            cvt(f[hh] + 2, D3 + r0, D3 + 4 + r0)
            cvt(f[hh] + 3, D3 + 8 + r0, D3 + 12 + r0)
        if beta < 4:
            for dd in range(4):
                cvt(f[2] + dd, D4 + 4 + 3 - dd, D4 + 3 - dd)

    def stC(beta):
        f = FR[beta % 2]
        for dl in (2, 3, 4):
            if beta + dl <= 7:
                for hh in range(2):
                    mm(ACC + 4 * (beta + dl), f[hh], C3[(dl, hh)])
        if beta < 4:
            for dl in (7, 6, 5, 4):
                if beta + dl <= 7:
                    mm(ACC + 4 * (beta + dl), f[2], C4[dl])
    stA(0)
    stB(0)
    for beta in range(6):
        if beta + 1 < 6:
            stA(beta + 1)
        stC(beta)
        if beta + 1 < 6:
            stB(beta + 1)
    loadedA = {16}
    for bi, b in enumerate(range(-7, 57)):
        br = RING[bi % len(RING)]
        sc.lds_read('ds_read_b128 v[%d:%d], v%d offset:%d' % (br, br + 3, VB, 64 * (b + 7)), {VB}, R(br), 14)
        uses = [(I, 8 * I - b) for I in range(8) if 0 <= 8 * I - b <= 16]
        for I, cp in uses:
            if cp not in loadedA:
                loadedA.add(cp)
                sc.lds_read('ds_read_b128 v[%d:%d], v%d offset:%d' % (AR[cp], AR[cp] + 3, VA, 64 * cp), {VA}, R(AR[cp]), 60)
        if b in (0, 8, 16, 24):
            mm(ACC + 4 * (b // 8 + 4), FS, br)
        for I, cp in reversed(uses):
            mm(ACC + 4 * I, AR[cp], br)
            if cp == 0:
                r = ACC + 4 * I
                for k in range(4):
                    sc.valu('v_mul_f32 v%d, s11, v%d' % (r + k, r + k), {r + k}, {r + k}, -1)
                sc.valu('v_cvt_pk_bf16_f32 v%d, v%d, v%d' % (r, r, r + 1), {r, r + 1}, {r}, -1)
                sc.valu('v_cvt_pk_bf16_f32 v%d, v%d, v%d' % (r + 1, r + 2, r + 3), {r + 2, r + 3}, {r + 1}, -1)
                sc.valu('v_mov_b32 v%d, v%d' % (r + 2, r), {r}, {r + 2}, -1)
                sc.valu('v_mov_b32 v%d, v%d' % (r + 3, r + 1), {r + 1}, {r + 3}, -1)
                sc.valu('v_permlane16_swap_b32 v%d, v%d' % (r, r + 2), {r, r + 2}, {r, r + 2}, -1)
                sc.valu('v_permlane16_swap_b32 v%d, v%d' % (r + 1, r + 3), {r + 1, r + 3}, {r + 1, r + 3}, -1)
                t = ['s_mov_b64 exec, s[20:21]',
                     'buffer_store_dwordx4 v[%d:%d], v%d, s[%d:%d], s15 offen offset:%d %s' % (r, r + 3, VY, S_WS, S_WS + 3, 512 * I, SCF), 's_mov_b64 exec, -1']
                t += ['s_mov_b64 exec, 1', 'ds_add_u32 v%d, v%d offset:28' % (QT, QT + 1), 's_mov_b64 exec, -1']
                sc.lds_write(t, {r, r + 1, r + 2, r + 3}, -1)
    a.i('v_mov_b32 v%d, 1' % (QT + 1))
    a.i('s_mov_b32 s20, 0xffff')
    a.i('s_mov_b32 s21, 0xffff')
    sc.run()
    stamp(a, 5)
    stamp_flush(a, S_WS, 1)
    a.i('s_endpgm')

    a.label('k2_G')
    a.flush()
    if 'noG' in EXP:
        a.i('s_endpgm')
    a.i('s_sub_u32 s3, s3, 4')
    a.i('s_cmp_ge_u32 s5, 28')
    a.i('s_cbranch_scc1 k2_R')
    WD = 64
    a.i('v_lshrrev_b32 v2, 3, v1')
    a.i('v_and_b32 v4, 7, v1')
    a.i('v_and_b32 v5, 2, v2')
    a.i('v_xor_b32 v4, v4, v5')
    a.i('v_xor_b32 v5, 4, v4')
    a.i('s_lshl_b32 s9, s8, 8')
    a.i('s_lshl_b32 s10, s3, 6')
    a.i('s_add_u32 s9, s9, s10')
    a.i('v_add_u32 v3, s9, v2')
    a.i('v_mul_u32_u24 v3, 7168, v3')
    a.i('v_lshl_add_u32 v4, v4, 4, v3')
    a.i('v_lshl_add_u32 v5, v5, 4, v3')
    a.i('s_lshl_b32 s11, s7, 7')
    a.i('s_lshl_b32 s12, s3, 13')
    a.i('s_add_u32 s12, s12, %d' % AUX_W)
    a.i('s_lshl_b32 s16, s7, 6')
    a.i('s_lshl_b32 s13, s8, 4')
    a.i('s_add_u32 s16, s16, s13')
    a.i('s_lshl_b32 s16, s16, 11')
    a.i('s_lshl_b32 s13, s3, 9')
    a.i('s_add_u32 s16, s16, s13')
    a.i('v_lshrrev_b32 v8, 5, v1')
    a.i('v_and_b32 v9, 31, v1')
    a.i('v_lshlrev_b32 v10, 11, v8')
    a.i('v_lshl_add_u32 v10, v9, 4, v10')
    a.i('v_mul_u32_u24 v11, %d, v8' % WD_RS)
    a.i('v_lshl_add_u32 v11, v9, 4, v11')
    a.i('s_mul_i32 s13, s3, %d' % (16 * WD_RS))
    a.i('s_add_u32 s13, s13, %d' % AUX_W)
    a.i('v_add_u32 v11, s13, v11')
    a.i('v_mov_b32 v6, %d' % AUX_CNT)
    a.i('v_mov_b32 v7, 1')
    for r in range(4):
        a.i('v_mov_b32 v%d, 0' % (12 + r))
    a.i('v_lshlrev_b32 v16, 4, v1')
    a.i('v_add_u32 v16, %d, v16' % AUX_Z)
    a.i('s_mov_b32 exec_hi, 15')
    a.i('ds_write_b128 v16, v[12:15]')
    a.i('s_mov_b64 exec, -1')
    a.i('s_waitcnt lgkmcnt(0)')
    a.i('s_barrier')
    GD = os.environ.get('GD', '')
    if GD == 'staged':
        lds_poll(a, 6, 8, 0, 4, 'k2_gst', 14)
    if GD == 'row':
        lds_poll(a, 6, 8, 20, 1, 'k2_gst', 14)
    for i in range(8):
        for mtx, S_ in ((0, S_WG), (1, S_WU)):
            a.i('s_add_u32 m0, s12, %d' % (mtx * 32768 + 1024 * i))
            a.i('s_nop 0')
            a.i('buffer_load_dwordx4 v%d, s[%d:%d], s11 offen nt lds' % (4 + (i % 2), S_, S_ + 3))
        if i < 7:
            a.i('s_add_u32 s11, s11, %d' % (8 * 7168))
    stamp(a, 2)
    if 'noprio' not in EXP:
        a.i('s_setprio 2')
    a.i('v_lshrrev_b32 v16, 4, v1')
    a.i('v_bfe_u32 v17, v1, 2, 2')
    a.i('v_and_b32 v18, 3, v1')
    a.i('v_lshrrev_b32 v19, 1, v17')
    a.i('v_and_b32 v20, 1, v16')
    a.i('v_lshl_or_b32 v19, v20, 1, v19')
    a.i('v_xor_b32 v19, s3, v19')
    a.i('v_lshl_add_u32 v20, v16, 3, v17')
    a.i('v_lshlrev_b32 v20, 7, v20')
    a.i('v_lshl_add_u32 v20, v19, 5, v20')
    a.i('v_lshl_add_u32 v20, v18, 3, v20')
    a.i('v_add_u32 v20, %d, v20' % AUX_W)
    a.i('v_lshlrev_b32 v21, 4, v16')
    a.i('v_add_u32 v22, %d, v21' % AUX_XS)
    a.i('v_add_u32 v23, %d, v21' % AUX_Z)
    a.i('v_cmp_eq_u32 vcc, 0, v17')
    a.i('v_cndmask_b32 v24, v23, v22, vcc')
    a.i('v_cmp_eq_u32 vcc, 1, v17')
    a.i('v_cndmask_b32 v25, v23, v22, vcc')
    a.i('v_lshl_add_u32 v26, v16, 2, v17')
    a.i('v_mul_u32_u24 v26, %d, v26' % WD_RS)
    a.i('v_lshl_add_u32 v26, v18, 3, v26')
    a.i('v_add_u32 v26, s13, v26')
    a.i('v_lshlrev_b32 v21, 3, v16')
    a.i('v_add_u32 v22, %d, v21' % AUX_HS)
    a.i('v_add_u32 v23, %d, v21' % (AUX_HS + 32))
    for gm in range(4):
        a.i('v_cmp_eq_u32 vcc, %d, v17' % gm)
        a.i('v_cndmask_b32 v%d, v23, v22, vcc' % (28 + gm))
    a.i('s_lshl_b32 s12, s7, 11')
    a.i('s_add_u32 s12, s12, 0x%x' % WS_GUP)
    a.i('s_lshl_b32 s15, s8, 9')
    a.i('s_add_u32 s15, s15, s12')
    a.i('s_lshl_b32 s14, s3, 7')
    a.i('s_add_u32 s15, s15, s14')
    a.i('v_lshlrev_b32 v27, 2, v1')
    lds_poll(a, 6, 8, 20, 1, 'k2_gst2', 14)
    for i in range(8):
        a.i('buffer_load_dwordx4 v[%d:%d], v10, s[%d:%d], s16 offen nt' % (WD + 4 * i, WD + 4 * i + 3, S_WD, S_WD + 3))
        if i < 7:
            a.i('s_add_u32 s16, s16, 4096')
    a.i('s_waitcnt vmcnt(8)')
    lds_signal(a, 6, 7, 8)
    lds_poll(a, 6, 8, 4, 1, 'k2_gx', 14)
    XA = 96
    for st in range(8):
        a.i('ds_read_b128 v[%d:%d], v24 offset:%d' % (XA + 8 * st, XA + 8 * st + 3, 64 * st))
        a.i('ds_read_b128 v[%d:%d], v25 offset:%d' % (XA + 8 * st + 4, XA + 8 * st + 7, 64 * st))
    lds_poll(a, 6, 8, 8, 4, 'k2_gw', 14)
    stamp(a, 3)
    BR = 32
    q = LdsQ(a)
    seqs = {}

    def rd(n):
        st, mtx = n // 2, n % 2
        r = BR + 4 * (n % 8)
        q.issue('ds_read_b64_tr_b16 v[%d:%d], v20 offset:%d' % (r, r + 1, mtx * 32768 + st * 4096))
        seqs[n] = q.issue('ds_read_b64_tr_b16 v[%d:%d], v20 offset:%d' % (r + 2, r + 3, mtx * 32768 + st * 4096 + 512))
    for n in range(7):
        rd(n)
    for n in range(16):
        st, mtx = n // 2, n % 2
        r = BR + 4 * (n % 8)
        q.wait(seqs[n])
        a.i('v_mfma_f32_16x16x32_bf16 v[12:15], v[%d:%d], v[%d:%d], %s' % (XA + 8 * st + 4 * mtx, XA + 8 * st + 4 * mtx + 3, r, r + 3, '0' if n == 0 else 'v[12:15]'))
        if n + 7 < 16:
            rd(n + 7)
    lds_signal(a, 6, 7, 12)
    for k in range(1, 4):
        a.i('v_mov_b32 v%d, v12 quad_perm:[%d,%d,%d,%d]' % (12 + k, k, k, k, k))
    a.i('s_mov_b32 exec_lo, 0x11111111')
    a.i('s_mov_b32 exec_hi, 0')
    a.i('buffer_store_dwordx4 v[12:15], v27, s[%d:%d], s15 offen %s' % (S_WS, S_WS + 3, SCF))
    a.i('s_mov_b64 exec, -1')
    stamp(a, 4)
    lds_poll(a, 6, 8, 12, 4, 'k2_gc', 14)
    a.i('s_waitcnt vmcnt(1)')
    for i in range(8):
        a.i('ds_write_b128 v11, v[%d:%d] offset:%d' % (WD + 4 * i, WD + 4 * i + 3, 2 * i * WD_RS))
    for t in range(16):
        a.i('ds_read_b64_tr_b16 v[%d:%d], v26 offset:%d' % (XA + 2 * t, XA + 2 * t + 1, 32 * t))
    a.i('s_cmp_lg_u32 s3, 0')
    a.flush()
    a.i('s_cbranch_scc1 k2_g_nopub')
    a.i('v_and_b32 v33, 12, v1')
    a.i('v_lshlrev_b32 v33, 7, v33')
    a.i('v_and_b32 v35, 16, v1')
    a.i('v_lshl_add_u32 v33, v35, 2, v33')
    a.i('v_lshl_add_u32 v33, v18, 4, v33')
    a.i('s_lshl_b32 s13, s8, 7')
    a.i('s_add_u32 s13, s13, s12')
    stamp(a, 5)
    a.flush()
    a.label('k2_gpoll')
    a.i('buffer_load_dwordx4 v[40:43], v33, s[%d:%d], s13 offen sc1' % (S_WS, S_WS + 3))
    a.i('s_waitcnt vmcnt(0)')
    a.i('v_max3_u32 v44, v40, v41, v42')
    a.i('v_max_u32 v44, v44, v43')
    a.i('v_cmp_ne_u32 vcc, -1, v44')
    a.i('s_cmp_eq_u64 vcc, -1')
    a.i('s_cbranch_scc1 k2_gpoll_done')
    a.i('s_sleep 2')
    a.i('s_branch k2_gpoll')
    a.label('k2_gpoll_done')
    a.flush()
    stamp(a, 6)
    for r in (4, 8):
        for k in range(4):
            a.i('v_add_f32 v%d, v%d, v%d row_ror:%d' % (40 + k, 40 + k, 40 + k, r))
    for k in range(4):
        a.i('v_cvt_pk_bf16_f32 v%d, 0, v%d' % (40 + k, 40 + k))
    for k in range(4):
        a.i('v_mov_b32 v%d, v%d' % (44 + k, 40 + k))
    for k in range(4):
        a.i('v_permlane16_swap_b32 v%d, v%d' % (40 + k, 44 + k))
    for k in range(4):
        a.i('v_mul_f32 v%d, %s, v%d' % (36 + k, fbits(-L2E_HI), 40 + k))
    for k in range(4):
        a.i('v_exp_f32 v%d, v%d' % (36 + k, 36 + k))
    for k in range(4):
        a.i('v_add_f32 v%d, 1.0, v%d' % (36 + k, 36 + k))
    for k in range(4):
        a.i('v_rcp_f32 v%d, v%d' % (36 + k, 36 + k))
    for k in range(4):
        a.i('v_mul_f32 v%d, v%d, v%d' % (40 + k, 40 + k, 36 + k))
    for k in range(4):
        a.i('v_cvt_pk_bf16_f32 v%d, 0, v%d' % (40 + k, 40 + k))
    for k in range(4):
        a.i('v_mul_f32 v%d, v%d, v%d' % (40 + k, 40 + k, 44 + k))
    a.i('v_cvt_pk_bf16_f32 v40, v40, v41')
    a.i('v_cvt_pk_bf16_f32 v41, v42, v43')
    a.i('v_lshlrev_b32 v32, 3, v1')
    a.i('v_add_u32 v32, %d, v32' % AUX_HS)
    a.i('s_mov_b64 exec, 15')
    a.i('ds_write_b64 v32, v[40:41]')
    a.i('s_mov_b64 exec, -1')
    lds_signal(a, 6, 7, 16)
    a.label('k2_g_nopub')
    a.flush()
    a.i('s_lshl_b32 s13, s7, 2')
    a.i('s_add_u32 s13, s13, s8')
    a.i('s_lshl_b32 s13, s13, 12')
    a.i('s_add_u32 s13, s13, 0x%x' % WS_PART)
    a.i('s_lshl_b32 s14, s3, 10')
    a.i('s_add_u32 s13, s13, s14')
    lds_poll(a, 6, 8, 16, 1, 'k2_ph', 14)
    stamp(a, 7)
    for gm in range(4):
        a.i('ds_read_b64 v[%d:%d], v%d' % (32 + 2 * gm, 33 + 2 * gm, 28 + gm))
    a.i('s_waitcnt lgkmcnt(0)')
    for u in range(4):
        for gm in range(4):
            t = 4 * u + gm
            a.i('v_mfma_f32_16x16x16_bf16 v[%d:%d], v[%d:%d], v[%d:%d], %s' % (48 + 4 * u, 51 + 4 * u, 32 + 2 * gm, 33 + 2 * gm, XA + 2 * t, XA + 2 * t + 1,
                                                                             '0' if gm == 0 else 'v[%d:%d]' % (48 + 4 * u, 51 + 4 * u)))
    for u in range(4):
        for k in range(1, 4):
            a.i('v_mov_b32 v%d, v%d quad_perm:[%d,%d,%d,%d]' % (48 + 4 * u + k, 48 + 4 * u, k, k, k, k))
    a.i('s_mov_b32 exec_lo, 0x11111111')
    a.i('s_mov_b32 exec_hi, 0x11111111')
    for u in range(4):
        a.i('buffer_store_dwordx4 v[%d:%d], v27, s[%d:%d], s13 offen offset:%d %s' % (48 + 4 * u, 51 + 4 * u, S_WS, S_WS + 3, 256 * u, SCF))
    stamp(a, 9)
    stamp_flush(a, S_WS, 1)
    a.i('s_endpgm')

    a.label('k2_R')
    a.flush()
    if 'onlyG' in EXP:
        a.i('s_endpgm')
    a.i('s_barrier')
    a.i('s_lshl_b32 s9, s4, 2')
    a.i('s_add_u32 s9, s9, s5')
    a.i('s_sub_u32 s9, s9, 28')
    a.i('v_lshrrev_b32 v2, 3, v1')
    a.i('v_and_b32 v3, 7, v1')
    a.i('v_lshlrev_b32 v4, 12, v2')
    a.i('v_lshl_add_u32 v4, v3, 4, v4')
    a.i('s_mul_i32 s10, s3, %d' % (56 * 4096))
    a.i('s_lshl_b32 s11, s9, 7')
    a.i('s_add_u32 s10, s10, s11')
    a.i('s_add_u32 s10, s10, 0x%x' % WS_PART)
    a.i('v_mov_b32 v6, %d' % AUX_CNT)
    a.i('v_mov_b32 v7, 1')
    a.i('v_and_b32 v5, 31, v1')
    a.i('v_lshlrev_b32 v8, 1, v5')
    a.i('v_lshlrev_b32 v9, 12, v5')
    a.i('v_lshlrev_b32 v10, 2, v5')
    a.i('v_mov_b32 v11, 0')
    a.i('s_cmp_lg_u32 s3, 0')
    a.flush()
    a.i('s_cbranch_scc1 k2_r_poll')
    lds_poll(a, 6, 12, 4, 1, 'k2_rk', 14)
    a.i('ds_read_b32 v16, v6 offset:24')
    a.i('s_waitcnt lgkmcnt(0)')
    a.i('v_readfirstlane_b32 s14, v16')
    a.i('s_and_b32 s15, s14, 0x7ff')
    a.i('s_sub_u32 s15, 2047, s15')
    a.i('s_lshl_b32 s12, s9, 6')
    a.i('s_lshl_b32 s13, s15, 11')
    a.i('s_add_u32 s13, s13, s12')
    a.i('s_lshl_b32 s16, s15, 3')
    a.i('s_add_u32 s16, s16, 0x%x' % WS_STATS)
    a.i('buffer_load_ushort v20, v8, s[%d:%d], s13 offen' % (S_X, S_X + 3))
    a.i('buffer_load_ushort v21, v8, s[%d:%d], s12 offen' % (S_DK, S_DK + 3))
    a.i('buffer_load_dwordx2 v[22:23], v11, s[%d:%d], s16 offen' % (S_WS, S_WS + 3))
    a.i('v_and_b32 v16, 0xffff0000, v16')
    a.i('v_ashrrev_i32 v17, 31, v16')
    a.i('v_not_b32 v17, v17')
    a.i('v_or_b32 v17, 0x80000000, v17')
    a.i('v_xor_b32 v16, v16, v17')
    a.i('v_and_b32 v16, 0xffff0000, v16')
    a.i('v_mul_f32 v16, %s, v16' % fbits(-L2E_HI))
    a.i('v_exp_f32 v16, v16')
    a.i('v_add_f32 v16, 1.0, v16')
    a.i('v_rcp_f32 v16, v16')
    rnd(a, [16])
    a.i('s_lshr_b32 s16, s9, 2')
    a.i('s_lshl_b32 s16, s16, 12')
    a.i('s_lshr_b32 s17, s15, 8')
    a.i('s_lshl_b32 s17, s17, 9')
    a.i('s_add_u32 s16, s16, s17')
    a.i('s_and_b32 s17, s9, 3')
    a.i('s_lshl_b32 s17, s17, 7')
    a.i('s_add_u32 s16, s16, s17')
    a.i('s_add_u32 s16, s16, 0x%x' % WS_YF)
    a.i('s_lshl_b32 s17, s9, 17')
    a.i('s_lshl_b32 s18, s15, 1')
    a.i('s_add_u32 s17, s17, s18')
    a.i('s_waitcnt vmcnt(0)')
    a.i('v_lshlrev_b32 v20, 16, v20')
    a.i('v_lshlrev_b32 v21, 16, v21')
    a.i('v_sub_f32 v24, v20, v22')
    rnd(a, [24])
    a.i('v_mul_f32 v24, v24, v23')
    rnd(a, [24])
    a.i('v_mul_f32 v21, v21, v24')
    rnd(a, [21])
    a.i('s_lshr_b32 s19, s15, 8')
    a.i('s_add_u32 s19, s19, 3')
    a.i('s_min_u32 s19, s19, 8')
    a.i('s_lshl_b32 s19, s19, 2')
    lds_poll_s(a, 6, 12, 28, 19, 'k2_rg', 20)
    a.i('v_mov_b32 v26, 0xffff')
    a.flush()
    a.label('k2_ryp')
    a.i('buffer_load_ushort v25, v9, s[%d:%d], s17 offen sc1' % (S_WS, S_WS + 3))
    a.i('s_waitcnt vmcnt(0)')
    a.i('v_cmp_ne_u32 vcc, v26, v25')
    a.i('s_cmp_eq_u64 vcc, -1')
    a.i('s_cbranch_scc1 k2_ryp_done')
    a.i('s_sleep 8')
    a.i('s_branch k2_ryp')
    a.label('k2_ryp_done')
    a.flush()
    a.i('v_lshlrev_b32 v25, 16, v25')
    a.i('v_add_f32 v21, v21, v25')
    rnd(a, [21])
    a.i('v_add_f32 v21, v21, v20')
    rnd(a, [21])
    a.label('k2_r_poll')
    a.flush()
    a.i('s_mov_b32 s19, %d' % (4 * int(os.environ.get('RGATE', '8'))))
    lds_poll_s(a, 6, 12, 28, 19, 'k2_rg2', 20)
    stamp(a, 2)
    P = 32
    a.label('k2_rp')
    a.i('s_mov_b32 s18, s10')
    for i in range(7):
        a.i('buffer_load_dwordx4 v[%d:%d], v4, s[%d:%d], s18 offen sc1' % (P + 4 * i, P + 4 * i + 3, S_WS, S_WS + 3))
        if i < 6:
            a.i('s_add_u32 s18, s18, 0x8000')
    a.i('s_waitcnt vmcnt(0)')
    a.i('v_max3_u32 v60, v32, v33, v34')
    for k in range(35, 59, 2):
        a.i('v_max3_u32 v60, v60, v%d, v%d' % (k, k + 1))
    a.i('v_max_u32 v60, v60, v59')
    a.i('v_cmp_ne_u32 vcc, -1, v60')
    a.i('s_cmp_eq_u64 vcc, -1')
    a.i('s_cbranch_scc1 k2_rp_done')
    a.i('s_sleep 8')
    a.i('s_branch k2_rp')
    a.label('k2_rp_done')
    a.flush()
    stamp(a, 3)
    for (x_, y_) in ((0, 1), (2, 3), (4, 5), (0, 2), (4, 6), (0, 4)):
        for k in range(4):
            a.i('v_add_f32 v%d, v%d, v%d' % (P + 4 * x_ + k, P + 4 * x_ + k, P + 4 * y_ + k))
    for k in range(4):
        a.i('v_mov_b32 v%d, v%d' % (P + 4 + k, P + k))
    for k in range(4):
        a.i('v_permlane32_swap_b32 v%d, v%d' % (P + k, P + 4 + k))
    for k in range(4):
        a.i('v_add_f32 v%d, v%d, v%d' % (P + k, P + k, P + 4 + k))
    for k in range(4):
        a.i('v_mov_b32 v%d, v%d' % (P + 4 + k, P + k))
    for k in range(4):
        a.i('v_permlane16_swap_b32 v%d, v%d' % (P + k, P + 4 + k))
    for k in range(4):
        a.i('v_add_f32 v%d, v%d, v%d' % (P + k, P + k, P + 4 + k))
    for k in range(4):
        a.i('v_add_f32 v%d, v%d, v%d row_ror:8' % (P + k, P + k, P + k))
    a.i('s_lshl_b32 s18, s3, 7')
    a.i('s_add_u32 s18, s18, %d' % AUX_RD)
    a.i('v_lshlrev_b32 v12, 4, v3')
    a.i('v_add_u32 v12, s18, v12')
    a.i('s_mov_b64 exec, 0xff')
    a.i('ds_write_b128 v12, v[%d:%d]' % (P, P + 3))
    a.i('s_mov_b64 exec, -1')
    lds_signal(a, 6, 7, 8)
    a.i('s_cmp_lg_u32 s3, 0')
    a.flush()
    a.i('s_cbranch_scc1 k2_r_fin')
    lds_poll(a, 6, 12, 8, 4, 'k2_rs', 14)
    a.i('v_add_u32 v12, %d, v10' % AUX_RD)
    for w in range(4):
        a.i('ds_read_b32 v%d, v12 offset:%d' % (P + w, 128 * w))
    a.i('s_waitcnt lgkmcnt(0)')
    a.i('v_add_f32 v32, v32, v33')
    a.i('v_add_f32 v34, v34, v35')
    a.i('v_add_f32 v32, v32, v34')
    rnd(a, [32])
    a.i('v_mul_f32 v32, v16, v32')
    rnd(a, [32])
    a.i('v_add_f32 v32, v32, v24')
    rnd(a, [32])
    a.i('v_add_f32 v32, v32, v21')
    a.i('v_cvt_pk_bf16_f32 v32, v32, v32')
    a.i('s_mov_b32 exec_hi, 0')
    a.i('buffer_store_short v32, v8, s[%d:%d], s13 offen' % (S_OUT, S_OUT + 3))
    a.label('k2_r_fin')
    a.flush()
    stamp(a, 9)
    stamp_flush(a, S_WS, 1)
    a.i('s_endpgm')

    a.label('k2_E')
    a.flush()
    a.i('s_sub_u32 s3, s3, 8')
    a.i('v_lshlrev_b32 v5, 4, v1')
    a.i('v_mov_b32 v6, 0')
    a.i('s_lshl_b32 s9, s6, 14')
    a.i('s_lshl_b32 s10, s3, 12')
    a.i('s_add_u32 s9, s9, s10')
    a.i('s_add_u32 s10, s9, 0x%x' % WS_XN)
    a.i('s_mov_b32 s11, 0x%x' % WS_KEYS)
    XN, KEY = 24, 40
    a.i('s_cmp_lg_u32 s3, 0')
    a.i('s_cbranch_scc1 k2_e_nokey')
    for qq in range(4):
        a.i('buffer_load_dwordx4 v[%d:%d], v5, s[%d:%d], s11 offen offset:%d' % (KEY + 4 * qq, KEY + 4 * qq + 3, S_WS, S_WS + 3, 1024 * qq))
    a.label('k2_e_nokey')
    for c in range(4):
        a.i('buffer_load_dwordx4 v[%d:%d], v5, s[%d:%d], s10 offen offset:%d %s' % (XN + 4 * c, XN + 4 * c + 3, S_WS, S_WS + 3, 1024 * c, XNLF))
    a.i('s_barrier')
    a.i('v_mov_b32 v60, %d' % AUX_CNT)
    a.i('v_mov_b32 v61, 1')
    a.i('v_lshlrev_b32 v7, 3, v1')
    a.i('s_lshl_b32 s10, s8, 9')
    a.i('v_and_b32 v62, 3, v1')
    a.i('v_mul_u32_u24 v62, %d, v62' % CH_STRIDE)
    a.i('v_and_b32 v63, 60, v1')
    a.i('v_lshl_add_u32 v62, v63, 2, v62')
    a.i('s_lshl_b32 s13, s3, 10')
    a.i('v_add_u32 v62, s13, v62')
    a.i('s_cmp_lg_u32 s3, 0')
    a.flush()
    a.i('s_cbranch_scc1 k2_e_rest')
    a.i('s_waitcnt vmcnt(4)')
    stamp(a, 2)
    argmax_keys(a, KEY, KEY + 16)
    a.i('v_readfirstlane_b32 s14, v%d' % KEY)
    a.i('s_and_b32 s15, s14, 0x7ff')
    a.i('s_sub_u32 s15, 2047, s15')
    a.i('s_lshl_b32 s13, s15, 11')
    a.i('s_add_u32 s13, s13, s10')
    a.i('s_lshl_b32 s9, s15, 3')
    a.i('s_add_u32 s9, s9, 0x%x' % WS_STATS)
    a.i('buffer_load_dwordx2 v[40:41], v7, s[%d:%d], s13 offen' % (S_X, S_X + 3))
    a.i('buffer_load_dwordx2 v[42:43], v6, s[%d:%d], s9 offen' % (S_WS, S_WS + 3))
    lds_signal(a, 60, 61, 20)
    a.i('s_waitcnt vmcnt(2)')
    for qq in range(4):
        a.i('ds_write_b128 v62, v[%d:%d] offset:%d' % (XN + 4 * qq, XN + 4 * qq + 3, CH_XN + 512 + 256 * qq))
    lds_signal(a, 60, 61, 0)
    stamp(a, 3)
    a.i('s_waitcnt vmcnt(0)')
    unpack2(a, 44, 45, 40)
    unpack2(a, 46, 47, 41)
    for k in range(4):
        a.i('v_sub_f32 v%d, v%d, v42' % (44 + k, 44 + k))
    for k in range(4):
        a.i('v_cvt_pk_bf16_f32 v%d, 0, v%d' % (44 + k, 44 + k))
    for k in range(4):
        a.i('v_mul_f32 v%d, v43, v%d' % (44 + k, 44 + k))
    a.i('v_cvt_pk_bf16_f32 v48, v44, v45')
    a.i('v_cvt_pk_bf16_f32 v49, v46, v47')
    a.i('v_add_u32 v50, %d, v7' % AUX_XS)
    a.i('ds_write_b64 v50, v[48:49]')
    a.i('v_mov_b32 v51, s14')
    a.i('ds_write_b32 v60, v51 offset:24')
    lds_signal(a, 60, 61, 4)
    a.i('s_branch k2_e_fin')
    a.label('k2_e_rest')
    a.flush()
    a.i('s_waitcnt vmcnt(0)')
    for qq in range(4):
        a.i('ds_write_b128 v62, v[%d:%d] offset:%d' % (XN + 4 * qq, XN + 4 * qq + 3, CH_XN + 512 + 256 * qq))
    lds_signal(a, 60, 61, 0)
    lds_poll(a, 60, 52, 20, 1, 'k2_erow', 14)
    a.label('k2_e_fin')
    a.flush()
    stamp(a, 4)
    if 'onlyG' in EXP:
        stamp_flush(a, S_WS, 1)
        a.i('s_endpgm')
    a.i('v_and_b32 v6, 15, v1')
    a.i('v_lshrrev_b32 v7, 4, v1')
    a.i('v_lshlrev_b32 v8, 11, v6')
    a.i('v_lshl_add_u32 v8, v7, 4, v8')
    a.i('s_lshl_b32 s11, s5, 6')
    a.i('s_lshl_b32 s12, s11, 11')
    a.i('s_lshl_b32 s13, s4, 8')
    a.i('s_lshl_b32 s15, s3, 6')
    a.i('s_add_u32 s13, s13, s15')
    a.i('s_add_u32 s12, s12, s13')
    XR, ST_, DKP = 16, 32, 40
    a.i('s_mov_b32 s16, s12')
    for u in range(4):
        a.i('buffer_load_dwordx4 v[%d:%d], v8, s[%d:%d], s16 offen nt' % (XR + 4 * u, XR + 4 * u + 3, S_X, S_X + 3))
        if u < 3:
            a.i('s_add_u32 s16, s16, 0x8000')
    a.i('v_lshlrev_b32 v9, 3, v6')
    a.i('s_lshl_b32 s15, s11, 3')
    a.i('s_add_u32 s15, s15, 0x%x' % WS_STATS)
    for u in range(4):
        a.i('buffer_load_dwordx2 v[%d:%d], v9, s[%d:%d], s15 offen offset:%d' % (ST_ + 2 * u, ST_ + 2 * u + 1, S_WS, S_WS + 3, 128 * u))
    a.i('v_lshlrev_b32 v9, 4, v7')
    a.i('buffer_load_dwordx4 v[%d:%d], v9, s[%d:%d], s13 offen' % (DKP, DKP + 3, S_DK, S_DK + 3))
    a.i('v_lshrrev_b32 v2, 3, v1')
    a.i('v_and_b32 v3, 7, v1')
    a.i('v_lshlrev_b32 v4, 12, v2')
    a.i('v_lshl_add_u32 v4, v3, 4, v4')
    a.i('v_and_b32 v5, 2, v2')
    a.i('v_xor_b32 v3, v3, v5')
    a.i('v_lshlrev_b32 v5, 7, v2')
    a.i('v_lshl_add_u32 v5, v3, 4, v5')
    a.i('s_lshl_b32 s15, s3, 12')
    a.i('s_add_u32 s15, s15, %d' % AUX_YT)
    a.i('v_add_u32 v5, s15, v5')
    a.i('v_xor_b32 v3, 64, v5')
    a.i('s_lshl_b32 s17, s4, 7')
    a.i('s_lshl_b32 s18, s3, 5')
    a.i('s_add_u32 s17, s17, s18')
    a.i('s_lshl_b32 s17, s17, 12')
    a.i('s_lshl_b32 s18, s5, 7')
    a.i('s_add_u32 s17, s17, s18')
    a.i('s_lshl_b32 s18, s4, 12')
    a.i('s_lshr_b32 s19, s5, 2')
    a.i('s_lshl_b32 s19, s19, 9')
    a.i('s_add_u32 s18, s18, s19')
    a.i('s_lshl_b32 s19, s3, 7')
    a.i('s_add_u32 s18, s18, s19')
    a.i('s_add_u32 s18, s18, 0x%x' % WS_YF)
    a.i('v_and_b32 v2, 31, v1')
    a.i('v_lshlrev_b32 v2, 2, v2')
    a.i('v_bfe_u32 v10, v1, 2, 2')
    a.i('v_and_b32 v11, 3, v1')
    a.i('v_lshrrev_b32 v12, 1, v10')
    a.i('v_and_b32 v13, 1, v7')
    a.i('v_lshl_or_b32 v12, v13, 1, v12')
    a.i('v_lshl_add_u32 v14, v7, 3, v10')
    a.i('v_lshlrev_b32 v14, 7, v14')
    a.i('v_lshl_add_u32 v14, v11, 3, v14')
    a.i('v_add_u32 v14, s15, v14')
    a.i('v_lshl_add_u32 v12, v12, 5, v14')
    a.i('v_xor_b32 v13, 32, v12')
    a.i('v_xor_b32 v14, 64, v12')
    a.i('v_xor_b32 v15, 96, v12')
    a.i('v_add_u32 v6, s11, v6')
    XX, XF, TA, DK = 64, 96, 128, 44
    a.i('s_waitcnt vmcnt(0)')
    stamp(a, 5)
    for k in range(16):
        unpack2(a, XX + 2 * k, XX + 2 * k + 1, XR + k)
    for k in range(4):
        unpack2(a, DK + 2 * k, DK + 2 * k + 1, DKP + k)
    for k in range(32):
        a.i('v_sub_f32 v%d, v%d, v%d' % (XF + k, XX + k, ST_ + 2 * (k // 8)))
    rnd(a, range(XF, XF + 32))
    for k in range(32):
        a.i('v_mul_f32 v%d, v%d, v%d' % (XF + k, XF + k, ST_ + 2 * (k // 8) + 1))
    rnd(a, range(XF, XF + 32))
    for k in range(32):
        a.i('v_mul_f32 v%d, v%d, v%d' % (TA + k, XF + k, DK + (k % 8)))
    rnd(a, range(TA, TA + 32))
    lds_poll(a, 60, 52, 4, 1, 'k2_ek', 14)
    a.i('ds_read_b32 v52, v60 offset:24')
    a.i('s_waitcnt lgkmcnt(0)')
    a.i('v_readfirstlane_b32 s14, v52')
    a.i('s_and_b32 s14, s14, 0x7ff')
    a.i('s_sub_u32 s14, 2047, s14')
    a.i('s_lshr_b32 s19, s5, 2')
    a.i('s_add_u32 s19, s19, %d' % int(os.environ.get('GATE', '2')))
    a.i('s_min_u32 s19, s19, 8')
    a.i('s_lshl_b32 s19, s19, 2')
    lds_poll_s(a, 60, 52, 28, 19, 'k2_eg', 20)
    stamp(a, 6)
    a.flush()
    a.label('k2_eyp')
    a.i('s_mov_b32 s18, s17')
    for i in range(4):
        a.i('buffer_load_dwordx4 v[%d:%d], v4, s[%d:%d], s18 offen sc1' % (XR + 4 * i, XR + 4 * i + 3, S_WS, S_WS + 3))
        if i < 3:
            a.i('s_add_u32 s18, s18, 0x8000')
    a.i('s_waitcnt vmcnt(0)')
    a.i('v_max3_u32 v52, v16, v17, v18')
    for k in range(19, 31, 2):
        a.i('v_max3_u32 v52, v52, v%d, v%d' % (k, k + 1))
    a.i('v_max_u32 v52, v52, v31')
    a.i('v_cmp_ne_u32 vcc, -1, v52')
    a.i('s_cmp_eq_u64 vcc, -1')
    a.i('s_cbranch_scc1 k2_eyp_done')
    a.i('s_sleep 4')
    a.i('s_branch k2_eyp')
    a.label('k2_eyp_done')
    a.flush()
    stamp(a, 7)
    for i in range(4):
        a.i('ds_write_b128 v%d, v[%d:%d] offset:%d' % (5 if i % 2 == 0 else 3, XR + 4 * i, XR + 4 * i + 3, 1024 * i))
    for u in range(4):
        a.i('ds_read_b64_tr_b16 v[%d:%d], v%d' % (32 + 4 * u, 33 + 4 * u, 12 + u))
        a.i('ds_read_b64_tr_b16 v[%d:%d], v%d offset:512' % (34 + 4 * u, 35 + 4 * u, 12 + u))
    stamp(a, 8)
    for u in range(4):
        a.i('s_waitcnt lgkmcnt(%d)' % (6 - 2 * u))
        for k in range(4):
            unpack2(a, 48 + 2 * k, 49 + 2 * k, 32 + 4 * u + k)
        for k in range(8):
            a.i('v_add_f32 v%d, v%d, v%d' % (48 + k, 48 + k, TA + 8 * u + k))
        rnd(a, range(48, 56))
        for k in range(8):
            a.i('v_add_f32 v%d, v%d, v%d' % (48 + k, 48 + k, XX + 8 * u + k))
        rnd(a, range(48, 56))
        for k in range(8):
            a.i('v_add_f32 v%d, v%d, v%d' % (48 + k, 48 + k, XF + 8 * u + k))
        for k in range(4):
            a.i('v_cvt_pk_bf16_f32 v%d, v%d, v%d' % (16 + 4 * u + k, 48 + 2 * k, 49 + 2 * k))
        a.i('v_cmp_ne_u32 vcc, s14, v6')
        a.i('s_mov_b64 exec, vcc')
        a.i('buffer_store_dwordx4 v[%d:%d], v8, s[%d:%d], s12 offen' % (16 + 4 * u, 19 + 4 * u, S_OUT, S_OUT + 3))
        a.i('s_mov_b64 exec, -1')
        if u < 3:
            a.i('s_add_u32 s12, s12, 0x8000')
            a.i('s_sub_u32 s14, s14, 16')
    stamp(a, 9)
    stamp_flush(a, S_WS, 1)
    a.label('k2_end')
    a.i('s_endpgm')


K3_LDS = 16384 + 2048 + 64


def rnd(a, regs):
    for r in regs:
        a.i('v_cvt_pk_bf16_f32 v%d, 0, v%d' % (r, r))


def gen_k3(a):
    S_X, S_WS, S_DK, S_OUT = 48, 52, 56, 60
    a.label('k3_kernel')
    a.i('s_cmp_ge_u32 s2, 272')
    a.i('s_cbranch_scc1 k3_end')
    load_ptrs(a)
    a.i('v_lshrrev_b32 v2, 6, v0')
    a.i('v_and_b32 v1, 63, v0')
    a.i('v_readfirstlane_b32 s3, v2')
    a.i('s_waitcnt lgkmcnt(0)')
    a.i('s_mov_b32 s15, 0x%x' % WS_SEL)
    a.i('s_load_dword s14, s[%d:%d], s15' % (P_WS, P_WS + 1))
    srd(a, S_X, P_X, 0x400000)
    srd(a, S_WS, P_WS, WS_SIZE)
    srd(a, S_DK, P_DK, 2048)
    srd(a, S_OUT, P_OUT, 0x400000)
    stamp_init(a)
    a.i('s_cmp_ge_u32 s2, 256')
    a.flush()
    a.i('s_cbranch_scc1 k3_row')
    a.i('s_and_b32 s4, s2, 7')
    a.i('s_lshr_b32 s5, s2, 3')
    a.i('v_lshrrev_b32 v2, 3, v1')
    a.i('v_and_b32 v4, 7, v1')
    a.i('v_and_b32 v5, 2, v2')
    a.i('v_xor_b32 v4, v4, v5')
    a.i('v_xor_b32 v5, 4, v4')
    a.i('v_lshlrev_b32 v3, 12, v2')
    a.i('v_lshl_add_u32 v4, v4, 4, v3')
    a.i('v_lshl_add_u32 v5, v5, 4, v3')
    a.i('s_lshl_b32 s6, s4, 7')
    a.i('s_lshl_b32 s7, s3, 4')
    a.i('s_add_u32 s6, s6, s7')
    a.i('s_lshl_b32 s6, s6, 12')
    a.i('s_lshl_b32 s7, s5, 7')
    a.i('s_add_u32 s6, s6, s7')
    a.i('s_lshl_b32 s7, s3, 11')
    a.i('s_mov_b32 m0, s7')
    a.i('s_add_u32 s8, s6, 0x8000')
    a.i('buffer_load_dwordx4 v4, s[%d:%d], s6 offen lds' % (S_WS, S_WS + 3))
    a.i('s_add_u32 m0, s7, 1024')
    a.i('s_nop 0')
    a.i('buffer_load_dwordx4 v5, s[%d:%d], s8 offen lds' % (S_WS, S_WS + 3))
    a.i('s_and_b32 s9, s3, 3')
    a.i('s_lshr_b32 s10, s3, 2')
    a.i('v_and_b32 v6, 15, v1')
    a.i('v_lshrrev_b32 v7, 4, v1')
    a.i('v_lshlrev_b32 v8, 11, v6')
    a.i('v_lshl_add_u32 v8, v7, 4, v8')
    a.i('s_lshl_b32 s11, s5, 6')
    a.i('s_lshl_b32 s12, s10, 4')
    a.i('s_add_u32 s11, s11, s12')
    a.i('s_lshl_b32 s12, s11, 11')
    a.i('s_lshl_b32 s13, s4, 8')
    a.i('s_lshl_b32 s15, s9, 6')
    a.i('s_add_u32 s13, s13, s15')
    a.i('s_add_u32 s12, s12, s13')
    a.i('s_add_u32 s16, s12, 0x10000')
    a.i('buffer_load_dwordx4 v[16:19], v8, s[%d:%d], s12 offen nt' % (S_X, S_X + 3))
    a.i('buffer_load_dwordx4 v[20:23], v8, s[%d:%d], s16 offen nt' % (S_X, S_X + 3))
    a.i('v_lshlrev_b32 v9, 3, v6')
    a.i('s_lshl_b32 s15, s11, 3')
    a.i('s_add_u32 s15, s15, 0x%x' % WS_STATS)
    a.i('buffer_load_dwordx2 v[24:25], v9, s[%d:%d], s15 offen' % (S_WS, S_WS + 3))
    a.i('buffer_load_dwordx2 v[26:27], v9, s[%d:%d], s15 offen offset:256' % (S_WS, S_WS + 3))
    a.i('v_lshlrev_b32 v9, 4, v7')
    a.i('buffer_load_dwordx4 v[28:31], v9, s[%d:%d], s13 offen' % (S_DK, S_DK + 3))
    a.i('v_bfe_u32 v10, v1, 2, 2')
    a.i('v_and_b32 v11, 3, v1')
    a.i('v_lshrrev_b32 v12, 1, v10')
    a.i('v_and_b32 v13, 1, v7')
    a.i('v_lshl_or_b32 v12, v13, 1, v12')
    a.i('v_xor_b32 v12, s10, v12')
    a.i('v_xor_b32 v13, 2, v12')
    a.i('v_lshl_add_u32 v14, v7, 3, v10')
    a.i('v_lshlrev_b32 v14, 7, v14')
    a.i('v_lshl_add_u32 v14, v11, 3, v14')
    a.i('s_lshl_b32 s15, s9, 12')
    a.i('v_add_u32 v14, s15, v14')
    a.i('v_lshl_add_u32 v12, v12, 5, v14')
    a.i('v_lshl_add_u32 v13, v13, 5, v14')
    a.i('v_add_u32 v6, s11, v6')
    XX, XF, TA, DK = 32, 48, 64, 80
    a.i('s_waitcnt vmcnt(0) lgkmcnt(0)')
    stamp(a, 2)
    a.i('s_barrier')
    a.i('ds_read_b64_tr_b16 v[88:89], v12')
    a.i('ds_read_b64_tr_b16 v[90:91], v12 offset:512')
    a.i('ds_read_b64_tr_b16 v[92:93], v13')
    a.i('ds_read_b64_tr_b16 v[94:95], v13 offset:512')
    a.i('s_and_b32 s14, s14, 0x7ff')
    a.i('s_sub_u32 s14, 2047, s14')
    a.i('s_sub_u32 s15, s14, 32')
    for k in range(8):
        unpack2(a, XX + 2 * k, XX + 2 * k + 1, 16 + k)
    for k in range(4):
        unpack2(a, DK + 2 * k, DK + 2 * k + 1, 28 + k)
    for k in range(16):
        a.i('v_sub_f32 v%d, v%d, v%d' % (XF + k, XX + k, 24 if k < 8 else 26))
    rnd(a, range(XF, XF + 16))
    for k in range(16):
        a.i('v_mul_f32 v%d, v%d, v%d' % (XF + k, XF + k, 25 if k < 8 else 27))
    rnd(a, range(XF, XF + 16))
    for k in range(16):
        a.i('v_mul_f32 v%d, v%d, v%d' % (TA + k, XF + k, DK + (k % 8)))
    rnd(a, range(TA, TA + 16))
    a.i('s_waitcnt lgkmcnt(0)')
    for k in range(8):
        unpack2(a, 16 + 2 * k, 17 + 2 * k, 88 + k)
    for k in range(16):
        a.i('v_add_f32 v%d, v%d, v%d' % (TA + k, TA + k, 16 + k))
    rnd(a, range(TA, TA + 16))
    for k in range(16):
        a.i('v_add_f32 v%d, v%d, v%d' % (TA + k, TA + k, XX + k))
    rnd(a, range(TA, TA + 16))
    for k in range(16):
        a.i('v_add_f32 v%d, v%d, v%d' % (TA + k, TA + k, XF + k))
    for k in range(8):
        a.i('v_cvt_pk_bf16_f32 v%d, v%d, v%d' % (16 + k, TA + 2 * k, TA + 2 * k + 1))
    a.i('v_cmp_ne_u32 vcc, s14, v6')
    a.i('s_mov_b64 exec, vcc')
    a.i('buffer_store_dwordx4 v[16:19], v8, s[%d:%d], s12 offen' % (S_OUT, S_OUT + 3))
    a.i('s_mov_b64 exec, -1')
    a.i('v_cmp_ne_u32 vcc, s15, v6')
    a.i('s_mov_b64 exec, vcc')
    a.i('buffer_store_dwordx4 v[20:23], v8, s[%d:%d], s16 offen' % (S_OUT, S_OUT + 3))
    stamp(a, 3)
    stamp_flush(a, S_WS, 2)
    a.i('s_endpgm')

    a.label('k3_row')
    a.flush()
    a.i('s_sub_u32 s4, s2, 256')
    a.i('v_lshrrev_b32 v2, 4, v1')
    a.i('v_and_b32 v3, 15, v1')
    a.i('v_lshlrev_b32 v4, 12, v2')
    a.i('v_lshl_add_u32 v4, v3, 4, v4')
    a.i('s_mul_i32 s5, s3, %d' % (28 * 4096))
    a.i('s_lshl_b32 s6, s4, 8')
    a.i('s_add_u32 s5, s5, s6')
    a.i('s_add_u32 s5, s5, 0x%x' % WS_PART)
    P = 32
    for i in range(7):
        a.i('buffer_load_dwordx4 v[%d:%d], v4, s[%d:%d], s5 offen' % (P + 4 * i, P + 4 * i + 3, S_WS, S_WS + 3))
        if i < 6:
            a.i('s_add_u32 s5, s5, 0x4000')
    a.i('s_waitcnt lgkmcnt(0)')
    a.i('s_and_b32 s9, s14, 0x7ff')
    a.i('s_sub_u32 s9, 2047, s9')
    a.i('v_lshlrev_b32 v5, 1, v1')
    a.i('v_lshlrev_b32 v6, 12, v1')
    a.i('v_mov_b32 v7, 0')
    a.i('s_lshl_b32 s7, s4, 7')
    a.i('s_lshl_b32 s10, s9, 11')
    a.i('s_add_u32 s10, s10, s7')
    a.i('s_lshl_b32 s11, s4, 18')
    a.i('s_lshl_b32 s12, s9, 1')
    a.i('s_add_u32 s11, s11, s12')
    a.i('s_lshl_b32 s12, s9, 3')
    a.i('s_add_u32 s12, s12, 0x%x' % WS_STATS)
    a.i('buffer_load_ushort v8, v5, s[%d:%d], s10 offen' % (S_X, S_X + 3))
    a.i('buffer_load_ushort v9, v6, s[%d:%d], s11 offen' % (S_WS, S_WS + 3))
    a.i('buffer_load_ushort v10, v5, s[%d:%d], s7 offen' % (S_DK, S_DK + 3))
    a.i('buffer_load_dwordx2 v[12:13], v7, s[%d:%d], s12 offen' % (S_WS, S_WS + 3))
    a.i('s_waitcnt vmcnt(4)')
    for (x_, y_) in ((0, 1), (2, 3), (4, 5), (0, 2), (4, 6), (0, 4)):
        for k in range(4):
            a.i('v_add_f32 v%d, v%d, v%d' % (P + 4 * x_ + k, P + 4 * x_ + k, P + 4 * y_ + k))
    for k in range(4):
        a.i('v_mov_b32 v%d, v%d' % (P + 4 + k, P + k))
    for k in range(4):
        a.i('v_permlane32_swap_b32 v%d, v%d' % (P + k, P + 4 + k))
    for k in range(4):
        a.i('v_add_f32 v%d, v%d, v%d' % (P + k, P + k, P + 4 + k))
    for k in range(4):
        a.i('v_mov_b32 v%d, v%d' % (P + 4 + k, P + k))
    for k in range(4):
        a.i('v_permlane16_swap_b32 v%d, v%d' % (P + k, P + 4 + k))
    for k in range(4):
        a.i('v_add_f32 v%d, v%d, v%d' % (P + k, P + k, P + 4 + k))
    a.i('s_lshl_b32 s13, s3, 8')
    a.i('v_lshlrev_b32 v14, 4, v3')
    a.i('v_add_u32 v14, s13, v14')
    a.i('s_mov_b64 exec, 0xffff')
    a.i('ds_write_b128 v14, v[%d:%d]' % (P, P + 3))
    a.i('s_mov_b64 exec, -1')
    a.i('s_waitcnt lgkmcnt(0)')
    a.i('s_barrier')
    a.i('s_cmp_lg_u32 s3, 0')
    a.i('s_cbranch_scc1 k3_end')
    a.i('v_lshlrev_b32 v14, 2, v1')
    for w in range(8):
        a.i('ds_read_b32 v%d, v14 offset:%d' % (P + w, 256 * w))
    a.i('v_mov_b32 v16, s14')
    a.i('v_and_b32 v16, 0xffff0000, v16')
    a.i('v_ashrrev_i32 v17, 31, v16')
    a.i('v_not_b32 v17, v17')
    a.i('v_or_b32 v17, 0x80000000, v17')
    a.i('v_xor_b32 v16, v16, v17')
    a.i('v_and_b32 v16, 0xffff0000, v16')
    a.i('v_mul_f32 v16, %s, v16' % fbits(-L2E_HI))
    a.i('v_exp_f32 v16, v16')
    a.i('v_add_f32 v16, 1.0, v16')
    a.i('v_rcp_f32 v16, v16')
    rnd(a, [16])
    a.i('s_waitcnt vmcnt(0)')
    for r in (8, 9, 10):
        a.i('v_lshlrev_b32 v%d, 16, v%d' % (r, r))
    a.i('v_sub_f32 v11, v8, v12')
    rnd(a, [11])
    a.i('v_mul_f32 v11, v11, v13')
    rnd(a, [11])
    a.i('v_mul_f32 v10, v10, v11')
    rnd(a, [10])
    a.i('v_add_f32 v10, v10, v9')
    rnd(a, [10])
    a.i('v_add_f32 v10, v10, v8')
    rnd(a, [10])
    a.i('s_waitcnt lgkmcnt(0)')
    for (x_, y_) in ((0, 1), (2, 3), (4, 5), (6, 7), (0, 2), (4, 6), (0, 4)):
        a.i('v_add_f32 v%d, v%d, v%d' % (P + x_, P + x_, P + y_))
    rnd(a, [P])
    a.i('v_mul_f32 v%d, v16, v%d' % (P, P))
    rnd(a, [P])
    a.i('v_add_f32 v%d, v%d, v11' % (P, P))
    rnd(a, [P])
    a.i('v_add_f32 v%d, v%d, v10' % (P, P))
    a.i('v_cvt_pk_bf16_f32 v%d, v%d, v%d' % (P, P, P))
    a.i('buffer_store_short v%d, v5, s[%d:%d], s10 offen' % (P, S_OUT, S_OUT + 3))
    a.label('k3_end')
    a.i('s_endpgm')


def kd(name, vgpr, sgpr=102):
    acc = (vgpr + 3) // 4 * 4
    return '''.amdhsa_kernel %s
  .amdhsa_next_free_vgpr %d
  .amdhsa_next_free_sgpr %d
  .amdhsa_accum_offset %d
  .amdhsa_group_segment_fixed_size 0
  .amdhsa_kernarg_size 120
  .amdhsa_user_sgpr_count 2
  .amdhsa_user_sgpr_kernarg_segment_ptr 1
  .amdhsa_system_sgpr_workgroup_id_x 1
  .amdhsa_float_denorm_mode_32 3
.end_amdhsa_kernel
''' % (name, vgpr, sgpr, acc)


def main():
    hdr = open('cdna_kernels/%s.s.ref' % NAME).read().split('\n')
    head = [l for l in hdr if l.startswith(';') and '@launch' not in l and 'Override launch' not in l and 'grid=ceil' not in l]
    out = '\n'.join(head) + '\n'
    out += '; @launch kernel=k1_kernel grid=(256,1,1) block=(1024,1,1) lds=%d\n' % K1_LDS
    out += '; @launch kernel=k2_kernel grid=(256,1,1) block=(768,1,1) lds=%d\n' % K2_LDS
    out += '.amdgcn_target "amdgcn-amd-amdhsa--gfx950"\n.text\n'
    for nm, fn in (('k1_kernel', gen_k1), ('k2_kernel', gen_k2)):
        a = Asm()
        out += '.globl %s\n.p2align 8\n.type %s,@function\n' % (nm, nm)
        fn(a)
        out += a.text()
        sys.stderr.write('%s: %d lines, %d nop states inserted\n' % (nm, len(a.lines), a.nops_inserted))
    out += '.section .rodata,"a"\n'
    for nm, v in (('k1_kernel', 128), ('k2_kernel', 168)):
        out += '.p2align 6\n' + kd(nm, v)
    dst = sys.argv[1] if len(sys.argv) > 1 else 'cdna_kernels/%s.s' % NAME
    open(dst, 'w').write(out)


if __name__ == '__main__':
    main()
```

```python
import sys, struct, os
sys.path.insert(0, os.path.dirname(__file__))
from asmlib import Asm

NAME = 'parallel_sum__ssm_conv_s4d__moe_arch_mod__prompt'

WS_YT = 0x000000
WS_STATS = 0x400000
WS_KEYS = 0x404000
WS_SEL = 0x405000
WS_YR = 0x406000
WS_XNR = 0x406800
WS_XR = 0x407000
WS_YF = 0x5e0000
WS_PT = 0x408000
WS_KT = 0xE00000
KT_STRIDE = 2048
KT_C3 = 1104
KT_C4 = 1616
KT_ES = 1936
KT_INV = 2032
WS_PART = 0x600000
WS_GUP = 0x5c0000
WS_XN = 0xA00000
WS_SIZE = 0x10000000
NSL = 224


def fbits(x):
    return '0x%08x' % struct.unpack('<I', struct.pack('<f', x))[0]


L2E_HI = struct.unpack('<f', struct.pack('<f', 1.4426950408889634))[0]
L2E_LO = 1.4426950408889634 - L2E_HI
I2PI_HI = struct.unpack('<f', struct.pack('<f', 0.15915494309189535))[0]
I2PI_LO = 0.15915494309189535 - I2PI_HI


DIAG = bool(os.environ.get('DIAG'))
EXP = os.environ.get('EXP', '')
OUTF = os.environ.get('OUTF', '')
PFF = os.environ.get('PFF', 'nt')
SCF = os.environ.get('SCF', 'sc1')
XNLF = os.environ.get('XNLF', '')
K1SF = os.environ.get('K1SF', '')
WS_DIAG = 0x800000


def stamp(a, slot, rt=False):
    if not DIAG:
        return
    a.i('s_waitcnt lgkmcnt(0)')
    a.i('%s s[98:99]' % ('s_memrealtime' if rt else 's_memtime'))
    a.i('s_waitcnt lgkmcnt(0)')
    a.i('s_mov_b32 s%d, s98' % (86 + slot))


def stamp_init(a):
    if not DIAG:
        return
    for k in range(12):
        a.i('s_mov_b32 s%d, 0' % (86 + k))
    stamp(a, 0, True)
    stamp(a, 1)
    a.i('s_getreg_b32 s94, hwreg(HW_REG_XCC_ID)')
    a.i('s_add_u32 s94, s94, 0x100')


def stamp_flush(a, S_WS, kern):
    if not DIAG:
        return
    a.i('s_mov_b64 exec, -1')
    a.i('s_waitcnt vmcnt(0)')
    stamp(a, 10)
    stamp(a, 11, True)
    a.flush()
    a.i('v_mov_b32 v9, 0')
    for k in range(12):
        a.i('v_writelane_b32 v9, s%d, %d' % (86 + k, k))
    a.i('v_lshlrev_b32 v8, 2, v0')
    a.i('s_lshl_b32 s98, s2, 12')
    a.i('s_add_u32 s98, s98, 0x%x' % (WS_DIAG + kern * 0x100000))
    a.i('buffer_store_dword v9, v8, s[%d:%d], s98 offen' % (S_WS, S_WS + 3))


def srd(a, d, lo, size):
    a.i('s_mov_b32 s%d, s%d' % (d, lo))
    a.i('s_and_b32 s%d, s%d, 0xffff' % (d + 1, lo + 1))
    a.i('s_mov_b32 s%d, 0x%x' % (d + 2, size))
    a.i('s_mov_b32 s%d, 0x20000' % (d + 3))


def load_ptrs(a):
    a.i('s_load_dwordx16 s[16:31], s[0:1], 0')
    a.i('s_load_dwordx8 s[32:39], s[0:1], 64')
    a.i('s_load_dwordx4 s[40:43], s[0:1], 96')
    a.i('s_load_dwordx2 s[44:45], s[0:1], 112')
P_X, P_LA, P_AI, P_CR, P_CI, P_DT, P_DK = 16, 18, 20, 22, 24, 26, 28
P_WR, P_WG, P_WU, P_WD, P_OUT, P_DBG, P_WS = 32, 34, 36, 38, 40, 42, 44


def row_allreduce(a, v, op='v_add_f32'):
    for r in (8, 4, 2, 1):
        a.i('%s v%d, v%d, v%d row_ror:%d' % (op, v, v, v, r))


def reduce2(a, va, vb, vt, op='v_add_f32'):
    a.i('v_permlane32_swap_b32 v%d, v%d' % (va, vb))
    a.i('%s v%d, v%d, v%d' % (op, va, va, vb))
    a.i('v_mov_b32 v%d, v%d' % (vt, va))
    a.i('v_permlane16_swap_b32 v%d, v%d' % (va, vt))
    a.i('%s v%d, v%d, v%d' % (op, va, va, vt))
    row_allreduce(a, va, op)


def reduce1(a, va, vt, op='v_add_f32'):
    a.i('v_mov_b32 v%d, v%d' % (vt, va))
    reduce2(a, va, vt, vt, op) if False else None
    a.i('v_permlane32_swap_b32 v%d, v%d' % (va, vt))
    a.i('%s v%d, v%d, v%d' % (op, va, va, vt))
    a.i('v_mov_b32 v%d, v%d' % (vt, va))
    a.i('v_permlane16_swap_b32 v%d, v%d' % (va, vt))
    a.i('%s v%d, v%d, v%d' % (op, va, va, vt))
    row_allreduce(a, va, op)


def exp_acc(a, vs, t0, t1, s_hi, s_lo):
    for v, x, y in zip(vs, t0, t1):
        a.i('v_mul_f32 v%d, s%d, v%d' % (x, s_hi, v))
    for v, x, y in zip(vs, t0, t1):
        a.i('v_rndne_f32 v%d, v%d' % (x, x))
    for v, x, y in zip(vs, t0, t1):
        a.i('v_fma_f32 v%d, v%d, s%d, -v%d' % (y, v, s_hi, x))
    for v, x, y in zip(vs, t0, t1):
        a.i('v_fma_f32 v%d, v%d, s%d, v%d' % (y, v, s_lo, y))
    for v, x, y in zip(vs, t0, t1):
        a.i('v_exp_f32 v%d, v%d' % (y, y))
    for v, x, y in zip(vs, t0, t1):
        a.i('v_cvt_i32_f32 v%d, v%d' % (x, x))
    for v, x, y in zip(vs, t0, t1):
        a.i('v_ldexp_f32 v%d, v%d, v%d' % (v, y, x))


K1_LN_LDS = 18432
K1_KG_ROW = 528
K1_KG_LDS = 53 * K1_KG_ROW
K1_KG0 = K1_LN_LDS
K1_CNT = K1_KG0 + 4 * K1_KG_LDS
K1_LDS = K1_CNT + 32


def gen_k1(a):
    S_X, S_WR, S_WS, S_LA, S_AI, S_CR, S_CI, S_DT, S_WG, S_WU = 48, 52, 56, 60, 64, 68, 72, 76, 80, 4
    a.label('k1_kernel')
    a.i('s_cmp_ge_u32 s2, 256')
    a.i('s_cbranch_scc1 k1_end')
    load_ptrs(a)
    a.i('v_lshrrev_b32 v2, 6, v0')
    a.i('v_and_b32 v1, 63, v0')
    a.i('v_readfirstlane_b32 s3, v2')
    a.i('s_waitcnt lgkmcnt(0)')
    srd(a, S_WS, P_WS, WS_SIZE)
    stamp_init(a)
    a.i('s_cmp_ge_u32 s3, 12')
    a.flush()
    a.i('s_cbranch_scc1 k1_P')
    a.i('s_cmp_ge_u32 s3, 4')
    a.i('s_cbranch_scc1 k1_kgen')

    srd(a, S_X, P_X, 0x400000)
    srd(a, S_WR, P_WR, 2048)
    A, B, W = 8, 16, 24
    a.i('v_lshlrev_b32 v2, 4, v1')
    a.i('s_lshl_b32 s4, s2, 3')
    a.i('s_lshl_b32 s5, s3, 1')
    a.i('s_add_u32 s4, s4, s5')
    a.i('s_lshl_b32 s5, s4, 11')
    a.i('s_add_u32 s6, s5, 2048')
    a.i('buffer_load_dwordx4 v[8:11], v2, s[%d:%d], s5 offen nt' % (S_X, S_X + 3))
    a.i('buffer_load_dwordx4 v[12:15], v2, s[%d:%d], s5 offen offset:1024 nt' % (S_X, S_X + 3))
    a.i('buffer_load_dwordx4 v[16:19], v2, s[%d:%d], s6 offen nt' % (S_X, S_X + 3))
    a.i('buffer_load_dwordx4 v[20:23], v2, s[%d:%d], s6 offen offset:1024 nt' % (S_X, S_X + 3))
    a.i('buffer_load_dwordx4 v[24:27], v2, s[%d:%d], 0 offen' % (S_WR, S_WR + 3))
    a.i('buffer_load_dwordx4 v[28:31], v2, s[%d:%d], 0 offen offset:1024' % (S_WR, S_WR + 3))
    a.i('v_mov_b32 v35, %d' % K1_CNT)
    for r in range(4):
        a.i('v_mov_b32 v%d, 0' % (40 + r))
    a.i('s_mov_b64 exec, 1')
    a.i('ds_write_b128 v35, v[40:43]')
    a.i('ds_write_b128 v35, v[40:43] offset:16')
    a.i('s_mov_b64 exec, -1')
    a.i('s_waitcnt lgkmcnt(0)')
    a.i('s_barrier')
    for r in range(4):
        a.i('v_mov_b32 v%d, -1' % (40 + r))
    a.i('s_lshl_b32 s7, s2, 9')
    a.i('s_lshl_b32 s8, s3, 7')
    a.i('s_add_u32 s7, s7, s8')
    a.i('s_add_u32 s7, s7, 0x%x' % WS_GUP)
    a.i('s_mov_b64 exec, 0xff')
    a.i('buffer_store_dwordx4 v[40:43], v2, s[%d:%d], s7 offen' % (S_WS, S_WS + 3))
    a.i('s_mov_b64 exec, -1')
    a.i('s_lshl_b32 s7, s2, 12')
    a.i('s_lshl_b32 s8, s3, 10')
    a.i('s_add_u32 s7, s7, s8')
    a.i('s_add_u32 s7, s7, 0x%x' % WS_PART)
    a.i('buffer_store_dwordx4 v[40:43], v2, s[%d:%d], s7 offen' % (S_WS, S_WS + 3))
    for r in range(4):
        a.i('v_mov_b32 v%d, 0' % (44 + r))
    a.i('s_lshl_b32 s7, s2, 7')
    a.i('s_lshl_b32 s8, s3, 5')
    a.i('s_add_u32 s7, s7, s8')
    a.i('s_add_u32 s7, s7, 0x%x' % WS_YF)
    a.i('s_mov_b64 exec, 3')
    a.i('buffer_store_dwordx4 v[44:47], v2, s[%d:%d], s7 offen' % (S_WS, S_WS + 3))
    a.i('s_mov_b64 exec, -1')
    a.i('v_mul_u32_u24 v3, 144, v1')
    a.i('s_lshl_b32 s7, s3, 2')
    a.i('v_add_u32 v3, s7, v3')
    a.i('v_add_u32 v4, 9216, v3')
    a.i('v_lshrrev_b32 v5, 3, v0')
    a.i('v_add_u32 v5, v5, v0')
    a.i('v_lshlrev_b32 v5, 4, v5')
    a.i('v_lshrrev_b32 v6, 2, v0')
    a.i('v_lshlrev_b32 v6, 14, v6')
    a.i('v_and_b32 v7, 3, v0')
    a.i('v_lshl_add_u32 v6, v7, 4, v6')
    a.i('s_mov_b32 s8, 0x05040100')
    a.i('s_mov_b32 s9, 0x07060302')
    a.i('v_mov_b32 v32, 0x3f80')
    a.i('v_mov_b32 v33, 0x3f800000')
    a.i('v_mov_b32 v34, 0x3f803f80')
    a.i('v_mov_b32 v7, 1')
    a.i('s_lshl_b32 s10, s2, 6')
    a.i('s_add_u32 s10, s10, 0x%x' % WS_XN)
    a.i('s_waitcnt vmcnt(5)')
    stamp(a, 2)
    a.i('v_dot2_f32_bf16 v36, v%d, v34, 0' % A)
    a.i('v_dot2_f32_bf16 v37, v%d, v34, 0' % B)
    for i in range(1, 8):
        a.i('v_dot2_f32_bf16 v36, v%d, v34, v36' % (A + i))
        a.i('v_dot2_f32_bf16 v37, v%d, v34, v37' % (B + i))
    reduce2(a, 36, 37, 38)
    a.i('v_mul_f32 v36, %s, v36' % fbits(-1.0 / 1024))
    a.i('v_cvt_pk_bf16_f32 v39, 0, v36')
    a.i('v_xor_b32 v38, 0x80000000, v39')
    a.i('v_readlane_b32 s14, v39, 0')
    a.i('v_readlane_b32 s15, v39, 32')
    a.i('v_sub_f32 v36, v39, v36')
    for i in range(8):
        a.i('v_dot2_f32_bf16 v%d, v%d, v32, s14' % (64 + 2 * i, A + i))
        a.i('v_dot2_f32_bf16 v%d, v%d, v33, s14' % (65 + 2 * i, A + i))
    for i in range(8):
        a.i('v_dot2_f32_bf16 v%d, v%d, v32, s15' % (80 + 2 * i, B + i))
        a.i('v_dot2_f32_bf16 v%d, v%d, v33, s15' % (81 + 2 * i, B + i))
    a.i('v_mul_f32 v60, v64, v64')
    a.i('v_mul_f32 v61, v80, v80')
    a.i('v_mul_f32 v62, v65, v65')
    a.i('v_mul_f32 v63, v81, v81')
    for i in range(2, 16, 2):
        a.i('v_fmac_f32 v60, v%d, v%d' % (64 + i, 64 + i))
        a.i('v_fmac_f32 v61, v%d, v%d' % (80 + i, 80 + i))
        a.i('v_fmac_f32 v62, v%d, v%d' % (65 + i, 65 + i))
        a.i('v_fmac_f32 v63, v%d, v%d' % (81 + i, 81 + i))
    a.i('v_add_f32 v60, v60, v62')
    a.i('v_add_f32 v61, v61, v63')
    a.i('v_mul_f32 v36, v36, v36')
    reduce2(a, 60, 61, 62)
    a.i('v_mov_b32 v61, %s' % fbits(1.0 / 1024))
    a.i('v_fma_f32 v60, v60, v61, -v36')
    a.i('v_max_f32 v60, 0, v60')
    a.i('v_cvt_pk_bf16_f32 v60, 0, v60')
    a.i('v_add_f32 v60, %s, v60' % fbits(1e-5))
    a.i('v_cvt_pk_bf16_f32 v60, 0, v60')
    a.i('v_sqrt_f32 v60, v60')
    a.i('v_cvt_pk_bf16_f32 v60, 0, v60')
    a.i('v_rcp_f32 v39, v60')
    for i in range(32):
        a.i('v_cvt_pk_bf16_f32 v%d, 0, v%d' % (64 + i, 64 + i))
    a.i('v_readlane_b32 s14, v39, 0')
    a.i('v_readlane_b32 s15, v39, 32')
    for i in range(32):
        a.i('v_mul_f32 v%d, s%d, v%d' % (64 + i, 14 if i < 16 else 15, 64 + i))
    for i in range(16):
        a.i('v_cvt_pk_bf16_f32 v%d, v%d, v%d' % (96 + i, 64 + 2 * i, 65 + 2 * i))
    a.i('s_waitcnt vmcnt(3)')
    a.i('v_dot2_f32_bf16 v60, v96, v%d, 0' % W)
    a.i('v_dot2_f32_bf16 v61, v104, v%d, 0' % W)
    for i in range(1, 8):
        a.i('v_dot2_f32_bf16 v60, v%d, v%d, v60' % (96 + i, W + i))
        a.i('v_dot2_f32_bf16 v61, v%d, v%d, v61' % (104 + i, W + i))
    for i in range(16):
        a.i('v_lshlrev_b32 v%d, 16, v%d' % (64 + 2 * i, 96 + i))
        a.i('v_and_b32 v%d, 0xffff0000, v%d' % (65 + 2 * i, 96 + i))
    for i in range(8):
        t = 40 + 2 * i
        a.i('v_cvt_pk_f16_f32 v%d, v%d, v%d' % (t, 64 + 2 * i, 80 + 2 * i))
        a.i('v_cvt_pk_f16_f32 v%d, v%d, v%d' % (t + 1, 65 + 2 * i, 81 + 2 * i))
        a.i('ds_write2_b32 v%d, v%d, v%d offset0:%d offset1:%d' % (3 if i < 4 else 4, t, t + 1, 8 * (i % 4), 8 * (i % 4) + 4))
    lds_signal(a, 35, 7, 0)
    stamp(a, 3)
    reduce2(a, 60, 61, 62)
    a.i('v_cvt_pk_bf16_f32 v60, 0, v60')
    a.i('v_ashrrev_i32 v61, 31, v60')
    a.i('v_or_b32 v61, 0x80000000, v61')
    a.i('v_xor_b32 v60, v60, v61')
    a.i('v_and_b32 v60, 0xffff0000, v60')
    a.i('v_lshrrev_b32 v62, 5, v1')
    a.i('s_sub_u32 s14, 2047, s4')
    a.i('v_sub_u32 v61, s14, v62')
    a.i('v_or_b32 v60, v60, v61')
    a.i('v_readlane_b32 s14, v60, 0')
    a.i('v_readlane_b32 s15, v60, 32')
    a.i('v_lshlrev_b32 v62, 3, v62')
    a.i('s_lshl_b32 s5, s4, 3')
    a.i('s_add_u32 s5, s5, 0x%x' % WS_STATS)
    a.i('s_max_u32 s14, s14, s15')
    a.i('s_lshl_b32 s6, s4, 1')
    a.i('s_add_u32 s6, s6, 0x%x' % WS_KEYS)
    a.i('v_mov_b32 v60, s14')
    a.i('s_mov_b32 exec_lo, 1')
    a.i('s_mov_b32 exec_hi, 1')
    a.i('buffer_store_dwordx2 v[38:39], v62, s[%d:%d], s5 offen' % (S_WS, S_WS + 3))
    a.i('s_mov_b32 exec_hi, 0')
    a.i('buffer_store_dword v60, v62, s[%d:%d], s6 offen' % (S_WS, S_WS + 3))
    a.i('s_mov_b64 exec, -1')
    lds_poll(a, 35, 36, 0, 4, 'k1_lnp', 14)
    stamp(a, 4)
    for q in range(4):
        a.i('ds_read_b128 v[%d:%d], v5 offset:%d' % (64 + 4 * q, 67 + 4 * q, q * 4608))
    for q in range(4):
        a.i('s_waitcnt lgkmcnt(%d)' % (3 - q))
        if 'noW' not in EXP:
            a.i('buffer_store_dwordx4 v[%d:%d], v6, s[%d:%d], s10 offen %s' % (64 + 4 * q, 67 + 4 * q, S_WS, S_WS + 3, K1SF))
        if q < 3:
            a.i('s_add_u32 s10, s10, 0x100000')
    stamp(a, 5)
    stamp_flush(a, S_WS, 0)
    a.i('s_endpgm')

    a.label('k1_P')
    a.flush()
    srd(a, S_WG, P_WG, 1024 * 3584 * 2)
    srd(a, S_WU, P_WU, 1024 * 3584 * 2)
    a.i('s_and_b32 s8, s2, 7')
    a.i('s_lshr_b32 s9, s2, 3')
    a.i('s_sub_u32 s3, s3, 12')
    a.i('s_lshl_b32 s12, s9, 5')
    a.i('s_lshl_b32 s13, s3, 3')
    a.i('s_add_u32 s12, s12, s13')
    a.i('s_mul_i32 s12, s12, 7168')
    a.i('s_mul_i32 s13, s8, 896')
    a.i('s_add_u32 s12, s12, s13')
    a.i('v_lshlrev_b32 v3, 4, v1')
    a.i('s_cmp_lg_u32 s2, 0')
    a.i('s_cbranch_scc1 k1_nopt')
    a.i('s_lshr_b32 s14, 0x3412, 0')
    a.i('s_lshl_b32 s15, s3, 2')
    a.i('s_lshr_b32 s14, s14, s15')
    a.i('s_and_b32 s14, s14, 15')
    a.i('s_cmp_eq_u32 s3, 1')
    a.i('s_cselect_b32 s15, -4, -8')
    a.i('s_add_u32 s15, s15, s14')
    a.i('s_lshl_b32 s14, s14, 1')
    a.i('v_lshrrev_b32 v4, 4, v1')
    a.i('v_lshlrev_b32 v4, 3, v4')
    a.i('v_and_b32 v5, 15, v1')
    a.i('v_sub_u32 v4, v4, v5')
    a.i('v_add_u32 v4, s15, v4')
    a.i('v_mov_b32 v6, 0x3c00')
    a.i('v_mov_b32 v7, 0x3c000000')
    for e in range(8):
        a.i('v_add_u32 v8, %d, v4' % e)
        a.i('v_cmp_ge_u32 vcc, s14, v8')
        a.i('v_cndmask_b32 v%d, 0, v%d, vcc' % (16 + e, 6 + (e % 2)))
    for dd in range(4):
        a.i('v_or_b32 v%d, v%d, v%d' % (12 + dd, 16 + 2 * dd, 17 + 2 * dd))
    a.i('s_lshl_b32 s14, s3, 10')
    a.i('s_add_u32 s14, s14, 0x%x' % WS_PT)
    a.i('buffer_store_dwordx4 v[12:15], v3, s[%d:%d], s14 offen' % (S_WS, S_WS + 3))
    a.label('k1_nopt')
    a.flush()
    a.i('s_barrier')
    for r in range(4):
        a.i('v_mov_b32 v%d, -1' % (80 + r))
    a.i('s_lshl_b32 s14, s8, 5')
    a.i('s_add_u32 s14, s14, s9')
    a.i('s_lshl_b32 s14, s14, 2')
    a.i('s_add_u32 s14, s14, s3')
    a.i('s_lshl_b32 s14, s14, 12')
    for k in range(4):
        if 'noW' not in EXP:
            a.i('buffer_store_dwordx4 v[80:83], v3, s[%d:%d], s14 offen offset:%d' % (S_WS, S_WS + 3, 1024 * k))
    if os.environ.get('PFLATE'):
        a.i('v_mov_b32 v84, %d' % K1_CNT)
        lds_poll(a, 84, 85, 0, 4, 'k1_plate', 14)
    a.i('s_mov_b32 exec_hi, 0x00ffffff')
    PF = int(os.environ.get('PF', '6'))
    for i in range(int(os.environ.get('PFN', '6'))):
        if 2 * i >= PF:
            a.i('s_waitcnt vmcnt(%d)' % (PF - 2))
        a.i('buffer_load_dwordx4 v[%d:%d], v3, s[%d:%d], s12 offen %s' % (8 + 8 * i, 11 + 8 * i, S_WG, S_WG + 3, PFF))
        a.i('buffer_load_dwordx4 v[%d:%d], v3, s[%d:%d], s12 offen %s' % (12 + 8 * i, 15 + 8 * i, S_WU, S_WU + 3, PFF))
        if i < 7:
            a.i('s_add_u32 s12, s12, 7168')
    stamp(a, 2)
    stamp_flush(a, S_WS, 0)
    a.i('s_endpgm')

    a.label('k1_kgen')
    a.flush()
    srd(a, S_LA, P_LA, 0x40000)
    srd(a, S_AI, P_AI, 0x40000)
    srd(a, S_CR, P_CR, 0x40000)
    srd(a, S_CI, P_CI, 0x40000)
    srd(a, S_DT, P_DT, 2048)
    a.i('s_and_b32 s13, s3, 3')
    a.i('s_and_b32 s4, s2, 7')
    a.i('s_lshl_b32 s4, s4, 5')
    a.i('s_lshr_b32 s5, s2, 3')
    a.i('s_add_u32 s4, s4, s5')
    a.i('s_lshl_b32 s4, s4, 2')
    a.i('s_add_u32 s4, s4, s13')
    a.i('s_lshl_b32 s5, s4, 8')
    a.i('s_lshl_b32 s6, s4, 1')
    a.i('v_lshlrev_b32 v2, 2, v1')
    a.i('v_mov_b32 v3, 0')
    a.i('buffer_load_ushort v12, v3, s[%d:%d], s6 offen' % (S_DT, S_DT + 3))
    a.i('buffer_load_dword v8, v2, s[%d:%d], s5 offen nt' % (S_LA, S_LA + 3))
    a.i('buffer_load_dword v9, v2, s[%d:%d], s5 offen nt' % (S_AI, S_AI + 3))
    a.i('buffer_load_dword v10, v2, s[%d:%d], s5 offen nt' % (S_CR, S_CR + 3))
    a.i('buffer_load_dword v11, v2, s[%d:%d], s5 offen nt' % (S_CI, S_CI + 3))
    a.i('s_barrier')
    a.i('s_mov_b32 s8, %s' % fbits(L2E_HI))
    a.i('s_mov_b32 s9, %s' % fbits(L2E_LO))
    a.i('s_mov_b32 s10, %s' % fbits(I2PI_HI))
    a.i('s_mov_b32 s11, %s' % fbits(I2PI_LO))
    a.i('s_mul_i32 s7, s13, %d' % K1_KG_LDS)
    a.i('s_add_u32 s7, s7, %d' % K1_KG0)
    a.i('v_lshlrev_b32 v4, 3, v1')
    a.i('v_add_u32 v4, s7, v4')
    a.i('s_lshl_b32 s12, s13, 2')
    a.i('s_add_u32 s12, s12, %d' % (K1_CNT + 4))
    a.i('v_mov_b32 v31, s12')
    a.i('s_mul_i32 s5, s4, %d' % KT_STRIDE)
    a.i('s_add_u32 s5, s5, 0x%x' % WS_KT)
    a.i('s_waitcnt vmcnt(2)')
    stamp(a, 2)
    a.i('v_lshlrev_b32 v12, 16, v12')
    a.i('v_lshlrev_b32 v14, 16, v8')
    a.i('v_and_b32 v15, 0xffff0000, v8')
    exp_acc(a, [12, 14, 15], [22, 23, 24], [25, 26, 27], 8, 9)
    a.i('v_cvt_pk_bf16_f32 v12, 0, v12')
    a.i('v_cvt_pk_bf16_f32 v14, 0, v14')
    a.i('v_cvt_pk_bf16_f32 v15, 0, v15')
    a.i('v_lshlrev_b32 v16, 16, v9')
    a.i('v_and_b32 v17, 0xffff0000, v9')
    for r in range(14, 18):
        a.i('v_mul_f32 v%d, v12, v%d' % (r, r))
    a.i('v_mul_f32 v14, %s, v14' % fbits(-L2E_HI))
    a.i('v_mul_f32 v15, %s, v15' % fbits(-L2E_HI))
    for j in range(2):
        a.i('v_mul_f32 v%d, s10, v%d' % (22 + j, 16 + j))
    for j in range(2):
        a.i('v_fma_f32 v%d, v%d, s10, -v%d' % (24 + j, 16 + j, 22 + j))
    for j in range(2):
        a.i('v_fma_f32 v%d, v%d, s11, v%d' % (24 + j, 16 + j, 24 + j))
    for j in range(2):
        a.i('v_rndne_f32 v%d, v%d' % (26 + j, 22 + j))
    for j in range(2):
        a.i('v_sub_f32 v%d, v%d, v%d' % (22 + j, 22 + j, 26 + j))
    for j in range(2):
        a.i('v_add_f32 v%d, v%d, v%d' % (16 + j, 22 + j, 24 + j))

    def direct(pairs):
        for n, (p, e) in enumerate(pairs):
            pf = fbits(float(p))
            for j in range(2):
                a.i('v_mul_f32 v%d, %s, v%d' % (80 + 4 * n + j, pf, 14 + j))
                a.i('v_mul_f32 v%d, %s, v%d' % (82 + 4 * n + j, pf, 16 + j))
        for n, (p, e) in enumerate(pairs):
            for j in range(2):
                a.i('v_fract_f32 v%d, v%d' % (82 + 4 * n + j, 82 + 4 * n + j))
                a.i('v_exp_f32 v%d, v%d' % (80 + 4 * n + j, 80 + 4 * n + j))
        for n, (p, e) in enumerate(pairs):
            for j in range(2):
                a.i('v_cos_f32 v%d, v%d' % (e + j, 82 + 4 * n + j))
                a.i('v_sin_f32 v%d, v%d' % (e + 2 + j, 82 + 4 * n + j))
        for n, (p, e) in enumerate(pairs):
            a.i('v_pk_mul_f32 v[%d:%d], v[%d:%d], v[%d:%d]' % (e, e + 1, e, e + 1, 80 + 4 * n, 81 + 4 * n))
            a.i('v_pk_mul_f32 v[%d:%d], v[%d:%d], v[%d:%d]' % (e + 2, e + 3, e + 2, e + 3, 80 + 4 * n, 81 + 4 * n))
    E1, E8, E64, E256, E2, E4 = 40, 44, 48, 52, 56, 60
    tmpc = [0]

    def cmuls(lst):
        ts = []
        for _ in lst:
            ts.append(80 + 4 * (tmpc[0] % 4))
            tmpc[0] += 1
        for (d, x, y), t in zip(lst, ts):
            a.i('v_pk_mul_f32 v[%d:%d], v[%d:%d], v[%d:%d]' % (t, t + 1, x, x + 1, y, y + 1))
            a.i('v_pk_mul_f32 v[%d:%d], v[%d:%d], v[%d:%d]' % (t + 2, t + 3, x, x + 1, y + 2, y + 3))
        for (d, x, y), t in zip(lst, ts):
            a.i('v_pk_fma_f32 v[%d:%d], v[%d:%d], v[%d:%d], v[%d:%d] neg_lo:[1,0,0] neg_hi:[1,0,0]' % (d, d + 1, x + 2, x + 3, y + 2, y + 3, t, t + 1))
            a.i('v_pk_fma_f32 v[%d:%d], v[%d:%d], v[%d:%d], v[%d:%d]' % (d + 2, d + 3, x + 2, x + 3, y, y + 1, t + 2, t + 3))
    outc = [0]

    def emit(x, row, neg):
        o = 96 + 2 * (outc[0] % 8)
        outc[0] += 1
        n = '-' if neg else ''
        a.i('v_cvt_pk_f16_f32 v%d, v%d, %sv%d' % (o, x, n, x + 2))
        a.i('v_cvt_pk_f16_f32 v%d, v%d, %sv%d' % (o + 1, x + 1, n, x + 3))
        a.i('ds_write_b64 v4, v[%d:%d] offset:%d' % (o, o + 1, row * K1_KG_ROW))
    a.i('s_cmp_ge_u32 s3, 8')
    a.flush()
    a.i('s_cbranch_scc1 k1_KA')

    for r in range(4):
        a.i('v_mov_b32 v%d, 0' % (100 + r))
    a.i('v_lshlrev_b32 v5, 4, v1')
    a.i('buffer_store_dwordx4 v[100:103], v5, s[%d:%d], s5 offen' % (S_WS, S_WS + 3))
    a.i('s_mov_b32 exec_hi, 0x7fffffff')
    a.i('buffer_store_dwordx4 v[100:103], v5, s[%d:%d], s5 offen offset:1024' % (S_WS, S_WS + 3))
    a.i('s_mov_b64 exec, -1')
    direct([(8, E8), (64, 68)])
    stamp(a, 3)
    F = [64, 68, 72, 76]
    a.i('v_mov_b32 v96, 0x3c00')
    a.i('v_mov_b32 v97, 0x3c00')
    a.i('ds_write_b64 v4, v[96:97] offset:%d' % (21 * K1_KG_ROW))
    outc[0] = 1
    cmuls([(72, 68, 68)])
    emit(E8, 21 + 1, False)
    emit(68, 21 + 8, False)
    cmuls([(76, 72, 68), (64, E8, E8)])
    emit(72, 21 + 16, False)
    cmuls([(68, 68, E8), (72, 72, E8)])
    emit(76, 21 + 24, False)
    emit(64, 21 + 2, False)
    cmuls([(76, 76, E8)])
    emit(68, 21 + 9, False)
    emit(72, 21 + 17, False)
    emit(76, 21 + 25, False)
    for i in range(2, 8):
        if i < 7:
            cmuls([(F[0], F[0], E8), (F[1], F[1], E8), (F[2], F[2], E8), (F[3], F[3], E8)])
            emit(F[0], 21 + i + 1, False)
        else:
            cmuls([(F[1], F[1], E8), (F[2], F[2], E8), (F[3], F[3], E8)])
        for qq in range(1, 4):
            emit(F[qq], 21 + 8 * qq + i, False)
    a.i('v_and_b32 v5, 31, v1')
    a.i('v_lshrrev_b32 v6, 5, v1')
    a.i('v_min_u32 v7, 20, v5')
    a.i('v_mul_u32_u24 v7, %d, v7' % K1_KG_ROW)
    a.i('v_lshl_add_u32 v7, v6, 4, v7')
    a.i('v_add_u32 v7, s7, v7')
    a.i('v_mul_u32_u24 v13, %d, v5' % K1_KG_ROW)
    a.i('v_lshl_add_u32 v13, v6, 4, v13')
    a.i('s_add_u32 s12, s7, %d' % (21 * K1_KG_ROW))
    a.i('v_add_u32 v13, s12, v13')
    a.i('s_waitcnt lgkmcnt(0)')
    stamp(a, 4)
    ACC = 112
    FB, FA = 16, 80
    a.i('v_mov_b32 v14, v31')
    for s in range(16):
        a.i('ds_read_b128 v[%d:%d], v13 offset:%d' % (FB + 4 * s, FB + 4 * s + 3, 32 * s))
    a.i('s_waitcnt vmcnt(2)')
    a.i('v_lshlrev_b32 v8, 4, v5')
    a.i('v_lshl_add_u32 v9, v6, 3, v8')
    a.i('v_sub_u32 v9, 1080, v9')
    a.i('v_sub_u32 v10, 560, v8')
    a.i('v_sub_u32 v11, 48, v8')
    a.i('v_lshlrev_b32 v12, 2, v5')
    a.i('v_lshlrev_b32 v13, 1, v5')
    lds_poll(a, 14, 15, 0, 1, 'k1_kap', 14)
    stamp(a, 5)
    for s in range(8):
        a.i('ds_read_b128 v[%d:%d], v7 offset:%d' % (FA + 4 * s, FA + 4 * s + 3, 32 * s))
    for s in range(16):
        a.i('s_waitcnt lgkmcnt(%d)' % (7 if s < 8 else 15 - s))
        f = FA + 4 * (s % 8)
        a.i('v_mfma_f32_32x32x16_f16 v[%d:%d], v[%d:%d], v[%d:%d], %s' % (ACC, ACC + 15, f, f + 3, FB + 4 * s, FB + 4 * s + 3, '0' if s == 0 else 'v[%d:%d]' % (ACC, ACC + 15)))
        if s < 8:
            a.i('ds_read_b128 v[%d:%d], v7 offset:%d' % (f, f + 3, 32 * (s + 8)))
    stamp(a, 6)
    D = ACC
    a.i('v_mov_b32 v17, 0')
    a.i('v_cmp_ne_u32 vcc, 33, v1')
    a.i('v_mov_b32 v17, v%d wave_shl:1' % (D + 4))
    a.i('v_cvt_pk_f16_f32 v40, v%d, v%d' % (D + 3, D + 2))
    a.i('v_cvt_pk_f16_f32 v41, v%d, v%d' % (D + 1, D + 0))
    a.i('buffer_store_dwordx2 v[40:41], v9, s[%d:%d], s5 offen' % (S_WS, S_WS + 3))
    a.i('v_cvt_pk_f16_f32 v44, v17, v%d' % (D + 7))
    a.i('v_cvt_pk_f16_f32 v45, v%d, v%d' % (D + 6, D + 6))
    a.i('v_cvt_pk_f16_f32 v46, v%d, v%d' % (D + 6, D + 5))
    a.i('v_cvt_pk_f16_f32 v47, v%d, v%d' % (D + 4, D + 4))
    a.i('v_cvt_pk_f16_f32 v48, v17, v17')
    a.i('v_cvt_pk_f16_f32 v49, v%d, v%d' % (D + 5, D + 5))
    a.i('v_cvt_pk_f16_f32 v50, v%d, v%d' % (D + 5, D + 4))
    a.i('v_mov_b32 v51, v47')
    a.i('v_cndmask_b32 v48, 0, v48, vcc')
    a.i('v_cvt_pk_f16_f32 v52, v%d, v%d' % (D + 4, D + 5))
    a.i('v_cvt_pk_f16_f32 v53, v%d, v%d' % (D + 6, D + 7))
    a.i('v_cvt_pk_f16_f32 v54, v%d, v%d' % (D + 8, D + 9))
    a.i('v_cvt_pk_f16_f32 v55, v%d, v%d' % (D + 10, D + 11))
    W_ = (S_WS, S_WS + 3)
    a.i('s_mov_b32 exec_hi, 0')
    a.i('buffer_store_dwordx4 v[44:47], v10, s[%d:%d], s5 offen' % W_)
    a.i('buffer_store_short_d16_hi v54, v13, s[%d:%d], s5 offen offset:%d' % (W_ + (KT_C4 + 2 * (29 + 32),)))
    a.i('buffer_store_short v55, v13, s[%d:%d], s5 offen offset:%d' % (W_ + (KT_C4 + 2 * (29 + 64),)))
    a.i('buffer_store_short_d16_hi v55, v13, s[%d:%d], s5 offen offset:%d' % (W_ + (KT_C4 + 2 * (29 + 96),)))
    a.i('s_mov_b32 exec_lo, -2')
    a.i('buffer_store_short v54, v13, s[%d:%d], s5 offen offset:%d' % (W_ + (KT_C4 + 2 * 29,)))
    a.i('s_mov_b32 exec_lo, 1')
    a.i('buffer_store_short v54, v3, s[%d:%d], s5 offen offset:%d' % (W_ + (KT_C3 + 2 * 184,)))
    a.i('buffer_store_short v54, v3, s[%d:%d], s5 offen offset:%d' % (W_ + (KT_ES + 54,)))
    a.i('buffer_store_short v54, v3, s[%d:%d], s5 offen offset:%d' % (W_ + (KT_ES + 56,)))
    a.i('s_mov_b32 exec_lo, 0')
    a.i('s_mov_b32 exec_hi, -1')
    a.i('buffer_store_dword v53, v12, s[%d:%d], s5 offen offset:%d' % (W_ + (KT_C3 + 240,)))
    a.i('s_mov_b32 exec_hi, -4')
    a.i('buffer_store_dword v52, v12, s[%d:%d], s5 offen offset:%d' % (W_ + (KT_C3 + 112,)))
    a.i('s_mov_b32 exec_hi, 3')
    a.i('buffer_store_dwordx4 v[48:51], v11, s[%d:%d], s5 offen' % W_)
    a.i('s_mov_b32 exec_hi, 1')
    a.i('buffer_store_short v54, v3, s[%d:%d], s5 offen offset:%d' % (W_ + (KT_C4 + 2 * 157,)))
    stamp(a, 7)
    stamp_flush(a, S_WS, 0)
    a.i('s_endpgm')

    a.label('k1_KA')
    a.flush()
    a.i('s_waitcnt vmcnt(0)')
    a.i('v_lshlrev_b32 v18, 16, v10')
    a.i('v_and_b32 v19, 0xffff0000, v10')
    a.i('v_lshlrev_b32 v20, 16, v11')
    a.i('v_and_b32 v21, 0xffff0000, v11')
    for r in range(18, 22):
        a.i('v_mul_f32 v%d, v12, v%d' % (r, r))
    a.i('v_add_f32 v28, abs(v18), abs(v19)')
    a.i('v_add_f32 v29, abs(v20), abs(v21)')
    a.i('v_add_f32 v28, v28, v29')
    direct([(1, E1), (256, E256)])
    reduce1(a, 28, 29)
    cmuls([(E2, E1, E1)])
    a.i('v_lshrrev_b32 v28, 23, v28')
    a.i('v_add_u32 v28, 1, v28')
    a.i('v_max_u32 v28, 20, v28')
    a.i('v_min_u32 v28, 255, v28')
    a.i('v_sub_u32 v29, 268, v28')
    a.i('v_lshlrev_b32 v29, 23, v29')
    a.i('v_subrev_u32 v30, 13, v28')
    a.i('v_lshlrev_b32 v30, 23, v30')
    cmuls([(E4, E2, E2)])
    stamp(a, 3)
    G, H, T1, T2 = 64, 68, 72, 76
    a.i('v_mul_f32 v64, v29, v18')
    a.i('v_mul_f32 v65, v29, v19')
    a.i('v_mul_f32 v66, v29, v20')
    a.i('v_mul_f32 v67, v29, v21')
    G2 = 44
    emit(G, 0, True)
    cmuls([(H, G, E1), (G2, G, E256)])
    emit(H, 1, True)
    emit(G2, 8, True)
    cmuls([(H, H, E1), (T1, G2, E2), (G, G2, E256)])
    emit(H, 2, True)
    emit(T1, 9, True)
    emit(G, 12, True)
    cmuls([(H, H, E1), (T1, T1, E2), (T2, G, E4), (G2, G, E256)])
    emit(H, 3, True)
    emit(T1, 10, True)
    emit(T2, 13, True)
    emit(G2, 14, True)
    cmuls([(H, H, E1), (T1, T1, E2), (T2, G2, E4), (G, G2, E256)])
    emit(H, 4, True)
    emit(T1, 11, True)
    emit(T2, 15, True)
    emit(G, 16, True)
    for k in range(3):
        cmuls([(H, H, E1), (G, G, E256)])
        emit(H, 5 + k, True)
        emit(G, 17 + k, True)
    cmuls([(G, G, E256)])
    emit(G, 20, True)
    a.i('v_mov_b32 v29, 1')
    lds_signal(a, 31, 29, 0)
    a.i('s_mov_b64 exec, 1')
    a.i('buffer_store_dword v30, v3, s[%d:%d], s5 offen offset:%d' % (S_WS, S_WS + 3, KT_INV))
    stamp(a, 4)
    stamp_flush(a, S_WS, 0)
    a.label('k1_end')
    a.i('s_endpgm')


CH_XN = 0
CH_KN = 4608
KN_COPY = 1088
CH_STRIDE = CH_KN + 8 * KN_COPY + 16
AUX_W = (4 * CH_STRIDE + 127) // 128 * 128
AUX_YT = AUX_W + 65536
AUX_RD = AUX_YT + 16384
AUX_XS = AUX_RD + 512
AUX_Z = AUX_XS + 512
AUX_HS = AUX_Z + 512
AUX_CNT = AUX_HS + 64
K2_LDS = AUX_CNT + 32
WD_RS = 544


class LdsQ:
    def __init__(self, a):
        self.a = a
        self.n = 0
        self.done = 0

    def issue(self, text):
        self.a.i(text)
        self.n += 1
        return self.n

    def wait(self, seq):
        if seq <= self.done:
            return
        out = self.n - seq
        if out > 15:
            out = 15
        self.a.i('s_waitcnt lgkmcnt(%d)' % out)
        self.done = self.n - out


class Sched:
    def __init__(self, a):
        self.a = a
        self.ops = []

    @staticmethod
    def R(base, n=4):
        return set(range(base, base + n))

    def mfma(self, text, reads, writes):
        self.ops.append(dict(k='m', t=[text], r=set(reads), w=set(writes)))

    def lds_read(self, text, reads, writes, lead):
        self.ops.append(dict(k='l', t=[text], r=set(reads), w=set(writes), lead=lead))

    def lds_write(self, texts, reads, lead=0):
        self.ops.append(dict(k='w', t=list(texts), r=set(reads), w=set(), lead=lead))

    def valu(self, text, reads, writes, lead):
        self.ops.append(dict(k='v', t=[text], r=set(reads), w=set(writes), lead=lead))

    def run(self, cap=2, mdist=6):
        a = self.a
        nm = sum(1 for o in self.ops if o['k'] == 'm')
        buckets = {i: [] for i in range(-1, nm)}
        vcount = {i: 0 for i in range(-1, nm)}
        placed = []
        mpos = 0
        mlist = []
        lastw_pos = -1
        for o in self.ops:
            if o['k'] == 'm':
                o['pos'] = mpos
                mlist.append(o)
                placed.append(o)
                mpos += 1
                continue
            lb = -1
            for p in placed:
                raw = p['w'] & o['r']
                if raw or (p['r'] & o['w']) or (p['w'] & o['w']):
                    pp = p['pos']
                    if p['k'] == 'm' and (raw or (p['w'] & o['w'])):
                        pp += mdist
                    if p['k'] == 'l' and raw:
                        pp += 8
                    lb = max(lb, pp)
            if o['k'] == 'w':
                lb = max(lb, lastw_pos)
            dl = mpos - 1
            if o['k'] in ('v', 'w') and o.get('lead', 0) < 0:
                dl = nm - 1
            t = min(max(lb, mpos - 1 - max(o['lead'], 0)), max(dl, min(lb, nm - 1))) if o['lead'] >= 0 else min(lb, nm - 1)
            if o['k'] == 'v':
                while vcount[t] >= cap and t < dl:
                    t += 1
                vcount[t] += 1
            if t > dl:
                t = dl
            for p in placed:
                if (p['w'] & o['r']) or (p['r'] & o['w']) or (p['w'] & o['w']):
                    assert p['pos'] <= t, (p, o, t)
            o['pos'] = t
            if o['k'] == 'w':
                lastw_pos = t
            buckets[t].append(o)
            placed.append(o)
        q = LdsQ(a)
        pend = {}

        def emit(o):
            need = 0
            for r in (o['r'] | o['w']):
                if r in pend:
                    need = max(need, pend[r])
            if need:
                q.wait(need)
            if o['k'] == 'l':
                sq = q.issue(o['t'][0])
                for r in o['w']:
                    pend[r] = sq
            elif o['k'] == 'w':
                for t in o['t']:
                    if t.startswith('ds_'):
                        q.issue(t)
                    else:
                        a.i(t)
            else:
                a.i(o['t'][0])
        for o in buckets[-1]:
            emit(o)
        for i, m in enumerate(mlist):
            emit(m)
            for o in buckets[i]:
                emit(o)


def argmax_keys(a, K, t):
    a.i('v_max3_u32 v%d, v%d, v%d, v%d' % (K, K, K + 1, K + 2))
    a.i('v_max3_u32 v%d, v%d, v%d, v%d' % (K + 3, K + 3, K + 4, K + 5))
    a.i('v_max3_u32 v%d, v%d, v%d, v%d' % (K + 6, K + 6, K + 7, K + 8))
    a.i('v_max3_u32 v%d, v%d, v%d, v%d' % (K + 9, K + 9, K + 10, K + 11))
    a.i('v_max3_u32 v%d, v%d, v%d, v%d' % (K + 12, K + 12, K + 13, K + 14))
    a.i('v_max3_u32 v%d, v%d, v%d, v%d' % (K, K, K + 3, K + 6))
    a.i('v_max3_u32 v%d, v%d, v%d, v%d' % (K + 9, K + 9, K + 12, K + 15))
    a.i('v_max_u32 v%d, v%d, v%d' % (K, K, K + 9))
    reduce1(a, K, t, 'v_max_u32')


def lds_signal(a, vaddr, vone, off):
    a.i('s_waitcnt lgkmcnt(0)')
    a.i('s_mov_b64 exec, 1')
    a.i('ds_add_u32 v%d, v%d offset:%d' % (vaddr, vone, off))
    a.i('s_mov_b64 exec, -1')


def lds_poll(a, vaddr, vt, off, target, lab, stmp):
    a.flush()
    a.label(lab)
    a.i('ds_read_b32 v%d, v%d offset:%d' % (vt, vaddr, off))
    a.i('s_waitcnt lgkmcnt(0)')
    a.i('v_readfirstlane_b32 s%d, v%d' % (stmp, vt))
    a.i('s_cmp_ge_u32 s%d, %d' % (stmp, target))
    a.i('s_cbranch_scc1 %s_done' % lab)
    a.i('s_sleep 1')
    a.i('s_branch %s' % lab)
    a.label(lab + '_done')
    a.flush()


def lds_poll_s(a, vaddr, vt, off, starget, lab, stmp, sleep=2):
    a.flush()
    a.label(lab)
    a.i('ds_read_b32 v%d, v%d offset:%d' % (vt, vaddr, off))
    a.i('s_waitcnt lgkmcnt(0)')
    a.i('v_readfirstlane_b32 s%d, v%d' % (stmp, vt))
    a.i('s_cmp_ge_u32 s%d, s%d' % (stmp, starget))
    a.i('s_cbranch_scc1 %s_done' % lab)
    a.i('s_sleep %d' % sleep)
    a.i('s_branch %s' % lab)
    a.label(lab + '_done')
    a.flush()


def unpack2(a, dlo, dhi, src):
    a.i('v_lshlrev_b32 v%d, 16, v%d' % (dlo, src))
    a.i('v_and_b32 v%d, 0xffff0000, v%d' % (dhi, src))


def gen_k2(a):
    S_X, S_WS, S_DK, S_WG, S_WU, S_WD, S_OUT, S_DBG = 48, 52, 56, 60, 64, 68, 72, 76
    a.label('k2_kernel')
    a.i('s_cmp_ge_u32 s2, 256')
    a.i('s_cbranch_scc1 k2_end')
    load_ptrs(a)
    a.i('v_lshrrev_b32 v2, 6, v0')
    a.i('v_and_b32 v1, 63, v0')
    a.i('v_readfirstlane_b32 s3, v2')
    a.i('s_and_b32 s4, s2, 7')
    a.i('s_lshr_b32 s5, s2, 3')
    a.i('s_lshl_b32 s6, s4, 5')
    a.i('s_add_u32 s6, s6, s5')
    a.i('s_mul_i32 s7, s4, 7')
    a.i('s_lshr_b32 s8, s5, 2')
    a.i('s_add_u32 s7, s7, s8')
    a.i('s_and_b32 s8, s5, 3')
    a.i('s_waitcnt lgkmcnt(0)')
    srd(a, S_X, P_X, 0x400000)
    srd(a, S_WS, P_WS, WS_SIZE)
    srd(a, S_DK, P_DK, 2048)
    srd(a, S_WG, P_WG, 1024 * 3584 * 2)
    srd(a, S_WU, P_WU, 1024 * 3584 * 2)
    srd(a, S_WD, P_WD, 1024 * 3584 * 2)
    srd(a, S_OUT, P_OUT, 0x400000)
    srd(a, S_DBG, P_DBG, 256)
    stamp_init(a)
    a.i('s_cmp_ge_u32 s3, 8')
    a.flush()
    a.i('s_cbranch_scc1 k2_E')
    a.i('s_cmp_ge_u32 s3, 4')
    a.i('s_cbranch_scc1 k2_G')

    VB, VY, VA, QT = 2, 3, 4, 6
    ACC = 8
    P3 = (40, 44)
    P4 = (48, 52)
    C3 = {(2, 0): 56, (2, 1): 60, (3, 0): 64, (3, 1): 68, (4, 0): 72, (4, 1): 76}
    C4 = {4: 80, 5: 84, 6: 88, 7: 92}
    D3, D4 = 96, 112
    FR = [(120, 124, 128), (132, 136, 140)]
    WN = {-8: 144, -16: 148, 0: 152}
    F16, FS = 160, 164
    free_order = [92, 88, 84, 156, 48, 52, 152, 112, 116, 80, 72, 76, 128, 140, 64, 68]
    need_order = [7, 15, 6, 14, 5, 13, 4, 12, 3, 11, 2, 10, 1, 9, 0, 8]
    AR = {cp: r for cp, r in zip(need_order, free_order)}
    AR[16] = F16
    RING = [40, 44, 144, 148, 96, 100, 104, 108]
    a.i('s_lshl_b32 s9, s6, 2')
    a.i('s_add_u32 s9, s9, s3')
    a.i('s_lshl_b32 s10, s9, 11')
    a.i('s_add_u32 s10, s10, 0x%x' % WS_KT)
    a.i('s_lshl_b32 s15, s9, 12')
    a.i('s_lshr_b32 s16, s9, 7')
    a.i('s_lshl_b32 s16, s16, 12')
    a.i('s_and_b32 s17, s9, 127')
    a.i('s_lshl_b32 s17, s17, 2')
    a.i('s_add_u32 s16, s16, s17')
    a.i('s_add_u32 s16, s16, 0x%x' % WS_YF)
    a.i('s_mul_i32 s9, s3, %d' % CH_STRIDE)
    a.i('v_lshlrev_b32 v24, 4, v1')
    a.i('v_sub_u32 v25, 1072, v24')
    a.i('v_and_b32 v36, 15, v1')
    a.i('v_lshrrev_b32 v37, 4, v1')
    a.i('v_lshlrev_b32 v38, 3, v37')
    a.i('v_sub_u32 v38, v38, v36')
    a.i('v_lshlrev_b32 v26, 1, v38')
    a.i('v_add_u32 v26, 30, v26')
    a.i('v_lshlrev_b32 v39, 2, v37')
    a.i('v_sub_u32 v39, v36, v39')
    a.i('v_add_u32 v39, 12, v39')
    a.i('v_lshlrev_b32 v27, 3, v39')
    a.i('v_lshlrev_b32 v23, 2, v39')
    a.i('v_mov_b32 v28, 0')
    a.i('s_mov_b32 s13, 0x%x' % WS_PT)
    R1 = 96
    W_ = (S_WS, S_WS + 3)
    a.i('buffer_load_dwordx4 v[%d:%d], v25, s[%d:%d], s10 offen' % ((R1, R1 + 3) + W_))
    a.i('buffer_load_dwordx4 v[%d:%d], v25, s[%d:%d], s10 offen offset:16' % ((R1 + 4, R1 + 7) + W_))
    for r in range(4):
        a.i('v_mov_b32 v%d, 0' % (32 + r))
    a.i('v_add_u32 v29, s9, v24')
    a.i('v_mul_u32_u24 v30, %d, v1' % KN_COPY)
    a.i('v_add_u32 v30, s9, v30')
    a.i('v_mov_b32 v31, %d' % AUX_CNT)
    a.i('s_mov_b32 exec_lo, 1')
    a.i('s_mov_b32 exec_hi, 0')
    a.i('ds_write_b128 v31, v[32:35]')
    a.i('ds_write_b128 v31, v[32:35] offset:16')
    a.i('s_waitcnt lgkmcnt(0)')
    a.i('s_barrier')
    if 'onlyG' in EXP:
        a.i('s_endpgm')
    a.i('s_mov_b32 exec_lo, -1')
    a.i('ds_write_b128 v29, v[32:35] offset:%d' % CH_XN)
    a.i('s_mov_b32 exec_lo, 0xff')
    a.i('ds_write_b128 v30, v[32:35] offset:%d' % CH_KN)
    a.i('s_mov_b64 exec, -1')
    for n_, reg in enumerate((P3[0], P3[1], P4[0], P4[1])):
        a.i('buffer_load_dwordx4 v[%d:%d], v24, s[%d:%d], s13 offen offset:%d' % ((reg, reg + 3) + W_ + (1024 * n_,)))
    for (dl, hh), reg in C3.items():
        a.i('buffer_load_dwordx4 v[%d:%d], v27, s[%d:%d], s10 offen offset:%d' % ((reg, reg + 3) + W_ + (KT_C3 + 8 * (16 * dl - 2 * hh - 12) - 144,)))
    for dl, reg in C4.items():
        a.i('buffer_load_dwordx4 v[%d:%d], v23, s[%d:%d], s10 offen offset:%d' % ((reg, reg + 3) + W_ + (KT_C4 + 4 * (16 * dl - 2 - 12) - 200,)))
    a.i('buffer_load_dword v7, v28, s[%d:%d], s10 offen offset:%d' % (W_ + (KT_INV,)))
    a.i('buffer_load_dwordx4 v[%d:%d], v26, s[%d:%d], s10 offen' % ((F16, F16 + 3) + W_))
    a.i('buffer_load_dwordx4 v[%d:%d], v26, s[%d:%d], s10 offen offset:%d' % ((FS, FS + 3) + W_ + (KT_ES,)))
    a.i('v_and_b32 v%d, 7, v36' % VA)
    a.i('v_mul_u32_u24 v%d, %d, v%d' % (VA, KN_COPY, VA))
    a.i('v_lshrrev_b32 v39, 3, v36')
    a.i('v_sub_u32 v39, v39, v37')
    a.i('v_add_u32 v39, 3, v39')
    a.i('v_lshl_add_u32 v%d, v39, 4, v%d' % (VA, VA))
    a.i('s_add_u32 s12, s9, %d' % CH_KN)
    a.i('v_add_u32 v%d, s12, v%d' % (VA, VA))
    a.i('v_lshlrev_b32 v%d, 5, v36' % VB)
    a.i('v_lshl_add_u32 v%d, v37, 4, v%d' % (VB, VB))
    a.i('s_add_u32 s12, s9, %d' % (CH_XN + 32))
    a.i('v_add_u32 v%d, s12, v%d' % (VB, VB))
    a.i('v_lshlrev_b32 v%d, 5, v36' % VY)
    a.i('v_lshl_add_u32 v%d, v37, 3, v%d' % (VY, VY))
    a.i('s_add_u32 s12, s9, %d' % (CH_KN + 16))
    a.i('v_add_u32 v30, s12, v24')
    a.i('v_mov_b32 v%d, %d' % (QT, AUX_CNT))
    a.i('s_waitcnt vmcnt(17)')
    stamp(a, 2)
    S_, Rp, Sp = 104, 112, 120
    for i in range(7):
        a.i('v_alignbit_b32 v%d, v%d, v%d, 16' % (S_ + i, R1 + i + 1, R1 + i))
    for i in range(1, 7):
        a.i('v_mov_b32 v%d, v%d' % (Rp + i - 1, R1 + i))
    for i in range(1, 7):
        a.i('v_alignbit_b32 v%d, v%d, v%d, 16' % (Sp + i - 1, R1 + i + 1, R1 + i))
    for c, src in ((7, R1), (5, Rp), (3, R1 + 2), (1, Rp + 2), (6, S_), (4, Sp), (2, S_ + 2), (0, Sp + 2)):
        a.i('ds_write_b128 v30, v[%d:%d] offset:%d' % (src, src + 3, c * KN_COPY))
    a.i('s_waitcnt vmcnt(0) lgkmcnt(0)')
    a.i('v_readfirstlane_b32 s11, v7')
    stamp(a, 3)
    lds_poll(a, QT, QT + 1, 0, 4, 'k2_cst', 14)
    stamp(a, 4)

    sc = Sched(a)
    R = Sched.R
    started = set()

    def mm(dst, A_, B_, accum=True):
        first = (dst not in started) or not accum
        started.add(dst)
        sc.mfma('v_mfma_f32_16x16x32_f16 v[%d:%d], v[%d:%d], v[%d:%d], %s' % (dst, dst + 3, A_, A_ + 3, B_, B_ + 3, '0' if first else 'v[%d:%d]' % (dst, dst + 3)),
                R(A_) | R(B_) | (set() if first else R(dst)), R(dst))

    def stA(beta):
        for w in ((-8, -16, 0) if beta < 4 else (-8, -16)):
            sc.lds_read('ds_read_b128 v[%d:%d], v%d offset:%d' % (WN[w], WN[w] + 3, VB, 2 * (256 * beta + w) + 448), {VB}, R(WN[w]), 14)
        for phi in range(4):
            mm(D3 + 4 * phi, WN[-8 if phi < 2 else -16], P3[phi % 2], accum=False)
        if beta < 4:
            mm(D4, WN[-8], P4[0], accum=False)
            mm(D4 + 4, WN[0], P4[1], accum=False)

    def cvt(d, x, y):
        sc.valu('v_cvt_pk_f16_f32 v%d, v%d, v%d' % (d, x, y), {x, y}, {d}, 40)

    def stB(beta):
        f = FR[beta % 2]
        for hh in range(2):
            r0, r1 = 2 * hh, 2 * hh + 1
            cvt(f[hh] + 0, D3 + r1, D3 + 4 + r1)
            cvt(f[hh] + 1, D3 + 8 + r1, D3 + 12 + r1)
            cvt(f[hh] + 2, D3 + r0, D3 + 4 + r0)
            cvt(f[hh] + 3, D3 + 8 + r0, D3 + 12 + r0)
        if beta < 4:
            for dd in range(4):
                cvt(f[2] + dd, D4 + 4 + 3 - dd, D4 + 3 - dd)

    def stC(beta):
        f = FR[beta % 2]
        for dl in (2, 3, 4):
            if beta + dl <= 7:
                for hh in range(2):
                    mm(ACC + 4 * (beta + dl), f[hh], C3[(dl, hh)])
        if beta < 4:
            for dl in (7, 6, 5, 4):
                if beta + dl <= 7:
                    mm(ACC + 4 * (beta + dl), f[2], C4[dl])
    stA(0)
    stB(0)
    for beta in range(6):
        if beta + 1 < 6:
            stA(beta + 1)
        stC(beta)
        if beta + 1 < 6:
            stB(beta + 1)
    loadedA = {16}
    for bi, b in enumerate(range(-7, 57)):
        br = RING[bi % len(RING)]
        sc.lds_read('ds_read_b128 v[%d:%d], v%d offset:%d' % (br, br + 3, VB, 64 * (b + 7)), {VB}, R(br), 14)
        uses = [(I, 8 * I - b) for I in range(8) if 0 <= 8 * I - b <= 16]
        for I, cp in uses:
            if cp not in loadedA:
                loadedA.add(cp)
                sc.lds_read('ds_read_b128 v[%d:%d], v%d offset:%d' % (AR[cp], AR[cp] + 3, VA, 64 * cp), {VA}, R(AR[cp]), 60)
        if b in (0, 8, 16, 24):
            mm(ACC + 4 * (b // 8 + 4), FS, br)
        for I, cp in reversed(uses):
            mm(ACC + 4 * I, AR[cp], br)
            if cp == 0:
                r = ACC + 4 * I
                for k in range(4):
                    sc.valu('v_mul_f32 v%d, s11, v%d' % (r + k, r + k), {r + k}, {r + k}, -1)
                sc.valu('v_cvt_pk_bf16_f32 v%d, v%d, v%d' % (r, r, r + 1), {r, r + 1}, {r}, -1)
                sc.valu('v_cvt_pk_bf16_f32 v%d, v%d, v%d' % (r + 1, r + 2, r + 3), {r + 2, r + 3}, {r + 1}, -1)
                sc.valu('v_mov_b32 v%d, v%d' % (r + 2, r), {r}, {r + 2}, -1)
                sc.valu('v_mov_b32 v%d, v%d' % (r + 3, r + 1), {r + 1}, {r + 3}, -1)
                sc.valu('v_permlane16_swap_b32 v%d, v%d' % (r, r + 2), {r, r + 2}, {r, r + 2}, -1)
                sc.valu('v_permlane16_swap_b32 v%d, v%d' % (r + 1, r + 3), {r + 1, r + 3}, {r + 1, r + 3}, -1)
                t = ['s_mov_b64 exec, s[20:21]',
                     'buffer_store_dwordx4 v[%d:%d], v%d, s[%d:%d], s15 offen offset:%d %s' % (r, r + 3, VY, S_WS, S_WS + 3, 512 * I, SCF), 's_mov_b64 exec, -1']
                t += ['s_mov_b64 exec, 1', 'ds_add_u32 v%d, v%d offset:28' % (QT, QT + 1), 's_mov_b64 exec, -1']
                sc.lds_write(t, {r, r + 1, r + 2, r + 3}, -1)
    a.i('v_mov_b32 v%d, 1' % (QT + 1))
    a.i('s_mov_b32 s20, 0xffff')
    a.i('s_mov_b32 s21, 0xffff')
    sc.run()
    stamp(a, 5)
    stamp_flush(a, S_WS, 1)
    a.i('s_endpgm')

    a.label('k2_G')
    a.flush()
    if 'noG' in EXP:
        a.i('s_endpgm')
    a.i('s_sub_u32 s3, s3, 4')
    a.i('s_cmp_ge_u32 s5, 28')
    a.i('s_cbranch_scc1 k2_R')
    WD = 64
    a.i('v_lshrrev_b32 v2, 3, v1')
    a.i('v_and_b32 v4, 7, v1')
    a.i('v_and_b32 v5, 2, v2')
    a.i('v_xor_b32 v4, v4, v5')
    a.i('v_xor_b32 v5, 4, v4')
    a.i('s_lshl_b32 s9, s8, 8')
    a.i('s_lshl_b32 s10, s3, 6')
    a.i('s_add_u32 s9, s9, s10')
    a.i('v_add_u32 v3, s9, v2')
    a.i('v_mul_u32_u24 v3, 7168, v3')
    a.i('v_lshl_add_u32 v4, v4, 4, v3')
    a.i('v_lshl_add_u32 v5, v5, 4, v3')
    a.i('s_lshl_b32 s11, s7, 7')
    a.i('s_lshl_b32 s12, s3, 13')
    a.i('s_add_u32 s12, s12, %d' % AUX_W)
    a.i('s_lshl_b32 s16, s7, 6')
    a.i('s_lshl_b32 s13, s8, 4')
    a.i('s_add_u32 s16, s16, s13')
    a.i('s_lshl_b32 s16, s16, 11')
    a.i('s_lshl_b32 s13, s3, 9')
    a.i('s_add_u32 s16, s16, s13')
    a.i('v_lshrrev_b32 v8, 5, v1')
    a.i('v_and_b32 v9, 31, v1')
    a.i('v_lshlrev_b32 v10, 11, v8')
    a.i('v_lshl_add_u32 v10, v9, 4, v10')
    a.i('v_mul_u32_u24 v11, %d, v8' % WD_RS)
    a.i('v_lshl_add_u32 v11, v9, 4, v11')
    a.i('s_mul_i32 s13, s3, %d' % (16 * WD_RS))
    a.i('s_add_u32 s13, s13, %d' % AUX_W)
    a.i('v_add_u32 v11, s13, v11')
    a.i('v_mov_b32 v6, %d' % AUX_CNT)
    a.i('v_mov_b32 v7, 1')
    for r in range(4):
        a.i('v_mov_b32 v%d, 0' % (12 + r))
    a.i('v_lshlrev_b32 v16, 4, v1')
    a.i('v_add_u32 v16, %d, v16' % AUX_Z)
    a.i('s_mov_b32 exec_hi, 15')
    a.i('ds_write_b128 v16, v[12:15]')
    a.i('s_mov_b64 exec, -1')
    a.i('s_waitcnt lgkmcnt(0)')
    a.i('s_barrier')
    GD = os.environ.get('GD', '')
    if GD == 'staged':
        lds_poll(a, 6, 8, 0, 4, 'k2_gst', 14)
    if GD == 'row':
        lds_poll(a, 6, 8, 20, 1, 'k2_gst', 14)
    for i in range(8):
        for mtx, S_ in ((0, S_WG), (1, S_WU)):
            a.i('s_add_u32 m0, s12, %d' % (mtx * 32768 + 1024 * i))
            a.i('s_nop 0')
            a.i('buffer_load_dwordx4 v%d, s[%d:%d], s11 offen nt lds' % (4 + (i % 2), S_, S_ + 3))
        if i < 7:
            a.i('s_add_u32 s11, s11, %d' % (8 * 7168))
    stamp(a, 2)
    if 'noprio' not in EXP:
        a.i('s_setprio 2')
    a.i('v_lshrrev_b32 v16, 4, v1')
    a.i('v_bfe_u32 v17, v1, 2, 2')
    a.i('v_and_b32 v18, 3, v1')
    a.i('v_lshrrev_b32 v19, 1, v17')
    a.i('v_and_b32 v20, 1, v16')
    a.i('v_lshl_or_b32 v19, v20, 1, v19')
    a.i('v_xor_b32 v19, s3, v19')
    a.i('v_lshl_add_u32 v20, v16, 3, v17')
    a.i('v_lshlrev_b32 v20, 7, v20')
    a.i('v_lshl_add_u32 v20, v19, 5, v20')
    a.i('v_lshl_add_u32 v20, v18, 3, v20')
    a.i('v_add_u32 v20, %d, v20' % AUX_W)
    a.i('v_lshlrev_b32 v21, 4, v16')
    a.i('v_add_u32 v22, %d, v21' % AUX_XS)
    a.i('v_add_u32 v23, %d, v21' % AUX_Z)
    a.i('v_cmp_eq_u32 vcc, 0, v17')
    a.i('v_cndmask_b32 v24, v23, v22, vcc')
    a.i('v_cmp_eq_u32 vcc, 1, v17')
    a.i('v_cndmask_b32 v25, v23, v22, vcc')
    a.i('v_lshl_add_u32 v26, v16, 2, v17')
    a.i('v_mul_u32_u24 v26, %d, v26' % WD_RS)
    a.i('v_lshl_add_u32 v26, v18, 3, v26')
    a.i('v_add_u32 v26, s13, v26')
    a.i('v_lshlrev_b32 v21, 3, v16')
    a.i('v_add_u32 v22, %d, v21' % AUX_HS)
    a.i('v_add_u32 v23, %d, v21' % (AUX_HS + 32))
    for gm in range(4):
        a.i('v_cmp_eq_u32 vcc, %d, v17' % gm)
        a.i('v_cndmask_b32 v%d, v23, v22, vcc' % (28 + gm))
    a.i('s_lshl_b32 s12, s7, 11')
    a.i('s_add_u32 s12, s12, 0x%x' % WS_GUP)
    a.i('s_lshl_b32 s15, s8, 9')
    a.i('s_add_u32 s15, s15, s12')
    a.i('s_lshl_b32 s14, s3, 7')
    a.i('s_add_u32 s15, s15, s14')
    a.i('v_lshlrev_b32 v27, 2, v1')
    lds_poll(a, 6, 8, 20, 1, 'k2_gst2', 14)
    for i in range(8):
        a.i('buffer_load_dwordx4 v[%d:%d], v10, s[%d:%d], s16 offen nt' % (WD + 4 * i, WD + 4 * i + 3, S_WD, S_WD + 3))
        if i < 7:
            a.i('s_add_u32 s16, s16, 4096')
    a.i('s_waitcnt vmcnt(8)')
    lds_signal(a, 6, 7, 8)
    lds_poll(a, 6, 8, 4, 1, 'k2_gx', 14)
    XA = 96
    for st in range(8):
        a.i('ds_read_b128 v[%d:%d], v24 offset:%d' % (XA + 8 * st, XA + 8 * st + 3, 64 * st))
        a.i('ds_read_b128 v[%d:%d], v25 offset:%d' % (XA + 8 * st + 4, XA + 8 * st + 7, 64 * st))
    lds_poll(a, 6, 8, 8, 4, 'k2_gw', 14)
    stamp(a, 3)
    BR = 32
    q = LdsQ(a)
    seqs = {}

    def rd(n):
        st, mtx = n // 2, n % 2
        r = BR + 4 * (n % 8)
        q.issue('ds_read_b64_tr_b16 v[%d:%d], v20 offset:%d' % (r, r + 1, mtx * 32768 + st * 4096))
        seqs[n] = q.issue('ds_read_b64_tr_b16 v[%d:%d], v20 offset:%d' % (r + 2, r + 3, mtx * 32768 + st * 4096 + 512))
    for n in range(7):
        rd(n)
    for n in range(16):
        st, mtx = n // 2, n % 2
        r = BR + 4 * (n % 8)
        q.wait(seqs[n])
        a.i('v_mfma_f32_16x16x32_bf16 v[12:15], v[%d:%d], v[%d:%d], %s' % (XA + 8 * st + 4 * mtx, XA + 8 * st + 4 * mtx + 3, r, r + 3, '0' if n == 0 else 'v[12:15]'))
        if n + 7 < 16:
            rd(n + 7)
    lds_signal(a, 6, 7, 12)
    for k in range(1, 4):
        a.i('v_mov_b32 v%d, v12 quad_perm:[%d,%d,%d,%d]' % (12 + k, k, k, k, k))
    a.i('s_mov_b32 exec_lo, 0x11111111')
    a.i('s_mov_b32 exec_hi, 0')
    a.i('buffer_store_dwordx4 v[12:15], v27, s[%d:%d], s15 offen %s' % (S_WS, S_WS + 3, SCF))
    a.i('s_mov_b64 exec, -1')
    stamp(a, 4)
    lds_poll(a, 6, 8, 12, 4, 'k2_gc', 14)
    a.i('s_waitcnt vmcnt(1)')
    for i in range(8):
        a.i('ds_write_b128 v11, v[%d:%d] offset:%d' % (WD + 4 * i, WD + 4 * i + 3, 2 * i * WD_RS))
    for t in range(16):
        a.i('ds_read_b64_tr_b16 v[%d:%d], v26 offset:%d' % (XA + 2 * t, XA + 2 * t + 1, 32 * t))
    a.i('s_cmp_lg_u32 s3, 0')
    a.flush()
    a.i('s_cbranch_scc1 k2_g_nopub')
    a.i('v_and_b32 v33, 12, v1')
    a.i('v_lshlrev_b32 v33, 7, v33')
    a.i('v_and_b32 v35, 16, v1')
    a.i('v_lshl_add_u32 v33, v35, 2, v33')
    a.i('v_lshl_add_u32 v33, v18, 4, v33')
    a.i('s_lshl_b32 s13, s8, 7')
    a.i('s_add_u32 s13, s13, s12')
    stamp(a, 5)
    a.flush()
    a.label('k2_gpoll')
    a.i('buffer_load_dwordx4 v[40:43], v33, s[%d:%d], s13 offen sc1' % (S_WS, S_WS + 3))
    a.i('s_waitcnt vmcnt(0)')
    a.i('v_max3_u32 v44, v40, v41, v42')
    a.i('v_max_u32 v44, v44, v43')
    a.i('v_cmp_ne_u32 vcc, -1, v44')
    a.i('s_cmp_eq_u64 vcc, -1')
    a.i('s_cbranch_scc1 k2_gpoll_done')
    a.i('s_sleep 2')
    a.i('s_branch k2_gpoll')
    a.label('k2_gpoll_done')
    a.flush()
    stamp(a, 6)
    for r in (4, 8):
        for k in range(4):
            a.i('v_add_f32 v%d, v%d, v%d row_ror:%d' % (40 + k, 40 + k, 40 + k, r))
    for k in range(4):
        a.i('v_cvt_pk_bf16_f32 v%d, 0, v%d' % (40 + k, 40 + k))
    for k in range(4):
        a.i('v_mov_b32 v%d, v%d' % (44 + k, 40 + k))
    for k in range(4):
        a.i('v_permlane16_swap_b32 v%d, v%d' % (40 + k, 44 + k))
    for k in range(4):
        a.i('v_mul_f32 v%d, %s, v%d' % (36 + k, fbits(-L2E_HI), 40 + k))
    for k in range(4):
        a.i('v_exp_f32 v%d, v%d' % (36 + k, 36 + k))
    for k in range(4):
        a.i('v_add_f32 v%d, 1.0, v%d' % (36 + k, 36 + k))
    for k in range(4):
        a.i('v_rcp_f32 v%d, v%d' % (36 + k, 36 + k))
    for k in range(4):
        a.i('v_mul_f32 v%d, v%d, v%d' % (40 + k, 40 + k, 36 + k))
    for k in range(4):
        a.i('v_cvt_pk_bf16_f32 v%d, 0, v%d' % (40 + k, 40 + k))
    for k in range(4):
        a.i('v_mul_f32 v%d, v%d, v%d' % (40 + k, 40 + k, 44 + k))
    a.i('v_cvt_pk_bf16_f32 v40, v40, v41')
    a.i('v_cvt_pk_bf16_f32 v41, v42, v43')
    a.i('v_lshlrev_b32 v32, 3, v1')
    a.i('v_add_u32 v32, %d, v32' % AUX_HS)
    a.i('s_mov_b64 exec, 15')
    a.i('ds_write_b64 v32, v[40:41]')
    a.i('s_mov_b64 exec, -1')
    lds_signal(a, 6, 7, 16)
    a.label('k2_g_nopub')
    a.flush()
    a.i('s_lshl_b32 s13, s7, 2')
    a.i('s_add_u32 s13, s13, s8')
    a.i('s_lshl_b32 s13, s13, 12')
    a.i('s_add_u32 s13, s13, 0x%x' % WS_PART)
    a.i('s_lshl_b32 s14, s3, 10')
    a.i('s_add_u32 s13, s13, s14')
    lds_poll(a, 6, 8, 16, 1, 'k2_ph', 14)
    stamp(a, 7)
    for gm in range(4):
        a.i('ds_read_b64 v[%d:%d], v%d' % (32 + 2 * gm, 33 + 2 * gm, 28 + gm))
    a.i('s_waitcnt lgkmcnt(0)')
    for u in range(4):
        for gm in range(4):
            t = 4 * u + gm
            a.i('v_mfma_f32_16x16x16_bf16 v[%d:%d], v[%d:%d], v[%d:%d], %s' % (48 + 4 * u, 51 + 4 * u, 32 + 2 * gm, 33 + 2 * gm, XA + 2 * t, XA + 2 * t + 1,
                                                                             '0' if gm == 0 else 'v[%d:%d]' % (48 + 4 * u, 51 + 4 * u)))
    for u in range(4):
        for k in range(1, 4):
            a.i('v_mov_b32 v%d, v%d quad_perm:[%d,%d,%d,%d]' % (48 + 4 * u + k, 48 + 4 * u, k, k, k, k))
    a.i('s_mov_b32 exec_lo, 0x11111111')
    a.i('s_mov_b32 exec_hi, 0x11111111')
    for u in range(4):
        a.i('buffer_store_dwordx4 v[%d:%d], v27, s[%d:%d], s13 offen offset:%d %s' % (48 + 4 * u, 51 + 4 * u, S_WS, S_WS + 3, 256 * u, SCF))
    stamp(a, 9)
    stamp_flush(a, S_WS, 1)
    a.i('s_endpgm')

    a.label('k2_R')
    a.flush()
    if 'onlyG' in EXP:
        a.i('s_endpgm')
    a.i('s_barrier')
    a.i('s_lshl_b32 s9, s4, 2')
    a.i('s_add_u32 s9, s9, s5')
    a.i('s_sub_u32 s9, s9, 28')
    a.i('v_lshrrev_b32 v2, 3, v1')
    a.i('v_and_b32 v3, 7, v1')
    a.i('v_lshlrev_b32 v4, 12, v2')
    a.i('v_lshl_add_u32 v4, v3, 4, v4')
    a.i('s_mul_i32 s10, s3, %d' % (56 * 4096))
    a.i('s_lshl_b32 s11, s9, 7')
    a.i('s_add_u32 s10, s10, s11')
    a.i('s_add_u32 s10, s10, 0x%x' % WS_PART)
    a.i('v_mov_b32 v6, %d' % AUX_CNT)
    a.i('v_mov_b32 v7, 1')
    a.i('v_and_b32 v5, 31, v1')
    a.i('v_lshlrev_b32 v8, 1, v5')
    a.i('v_lshlrev_b32 v9, 12, v5')
    a.i('v_lshlrev_b32 v10, 2, v5')
    a.i('v_mov_b32 v11, 0')
    a.i('s_cmp_lg_u32 s3, 0')
    a.flush()
    a.i('s_cbranch_scc1 k2_r_poll')
    lds_poll(a, 6, 12, 4, 1, 'k2_rk', 14)
    a.i('ds_read_b32 v16, v6 offset:24')
    a.i('s_waitcnt lgkmcnt(0)')
    a.i('v_readfirstlane_b32 s14, v16')
    a.i('s_and_b32 s15, s14, 0x7ff')
    a.i('s_sub_u32 s15, 2047, s15')
    a.i('s_lshl_b32 s12, s9, 6')
    a.i('s_lshl_b32 s13, s15, 11')
    a.i('s_add_u32 s13, s13, s12')
    a.i('s_lshl_b32 s16, s15, 3')
    a.i('s_add_u32 s16, s16, 0x%x' % WS_STATS)
    a.i('buffer_load_ushort v20, v8, s[%d:%d], s13 offen' % (S_X, S_X + 3))
    a.i('buffer_load_ushort v21, v8, s[%d:%d], s12 offen' % (S_DK, S_DK + 3))
    a.i('buffer_load_dwordx2 v[22:23], v11, s[%d:%d], s16 offen' % (S_WS, S_WS + 3))
    a.i('v_and_b32 v16, 0xffff0000, v16')
    a.i('v_ashrrev_i32 v17, 31, v16')
    a.i('v_not_b32 v17, v17')
    a.i('v_or_b32 v17, 0x80000000, v17')
    a.i('v_xor_b32 v16, v16, v17')
    a.i('v_and_b32 v16, 0xffff0000, v16')
    a.i('v_mul_f32 v16, %s, v16' % fbits(-L2E_HI))
    a.i('v_exp_f32 v16, v16')
    a.i('v_add_f32 v16, 1.0, v16')
    a.i('v_rcp_f32 v16, v16')
    rnd(a, [16])
    a.i('s_lshr_b32 s16, s9, 2')
    a.i('s_lshl_b32 s16, s16, 12')
    a.i('s_lshr_b32 s17, s15, 8')
    a.i('s_lshl_b32 s17, s17, 9')
    a.i('s_add_u32 s16, s16, s17')
    a.i('s_and_b32 s17, s9, 3')
    a.i('s_lshl_b32 s17, s17, 7')
    a.i('s_add_u32 s16, s16, s17')
    a.i('s_add_u32 s16, s16, 0x%x' % WS_YF)
    a.i('s_lshl_b32 s17, s9, 17')
    a.i('s_lshl_b32 s18, s15, 1')
    a.i('s_add_u32 s17, s17, s18')
    a.i('s_waitcnt vmcnt(0)')
    a.i('v_lshlrev_b32 v20, 16, v20')
    a.i('v_lshlrev_b32 v21, 16, v21')
    a.i('v_sub_f32 v24, v20, v22')
    rnd(a, [24])
    a.i('v_mul_f32 v24, v24, v23')
    rnd(a, [24])
    a.i('v_mul_f32 v21, v21, v24')
    rnd(a, [21])
    a.i('s_lshr_b32 s19, s15, 8')
    a.i('s_add_u32 s19, s19, 3')
    a.i('s_min_u32 s19, s19, 8')
    a.i('s_lshl_b32 s19, s19, 2')
    lds_poll_s(a, 6, 12, 28, 19, 'k2_rg', 20)
    a.i('v_mov_b32 v26, 0xffff')
    a.flush()
    a.label('k2_ryp')
    a.i('buffer_load_ushort v25, v9, s[%d:%d], s17 offen sc1' % (S_WS, S_WS + 3))
    a.i('s_waitcnt vmcnt(0)')
    a.i('v_cmp_ne_u32 vcc, v26, v25')
    a.i('s_cmp_eq_u64 vcc, -1')
    a.i('s_cbranch_scc1 k2_ryp_done')
    a.i('s_sleep 8')
    a.i('s_branch k2_ryp')
    a.label('k2_ryp_done')
    a.flush()
    a.i('v_lshlrev_b32 v25, 16, v25')
    a.i('v_add_f32 v21, v21, v25')
    rnd(a, [21])
    a.i('v_add_f32 v21, v21, v20')
    rnd(a, [21])
    a.label('k2_r_poll')
    a.flush()
    a.i('s_mov_b32 s19, %d' % (4 * int(os.environ.get('RGATE', '8'))))
    lds_poll_s(a, 6, 12, 28, 19, 'k2_rg2', 20)
    stamp(a, 2)
    P = 32
    a.label('k2_rp')
    a.i('s_mov_b32 s18, s10')
    for i in range(7):
        a.i('buffer_load_dwordx4 v[%d:%d], v4, s[%d:%d], s18 offen sc1' % (P + 4 * i, P + 4 * i + 3, S_WS, S_WS + 3))
        if i < 6:
            a.i('s_add_u32 s18, s18, 0x8000')
    a.i('s_waitcnt vmcnt(0)')
    a.i('v_max3_u32 v60, v32, v33, v34')
    for k in range(35, 59, 2):
        a.i('v_max3_u32 v60, v60, v%d, v%d' % (k, k + 1))
    a.i('v_max_u32 v60, v60, v59')
    a.i('v_cmp_ne_u32 vcc, -1, v60')
    a.i('s_cmp_eq_u64 vcc, -1')
    a.i('s_cbranch_scc1 k2_rp_done')
    a.i('s_sleep %d' % int(os.environ.get('RSL', '8')))
    a.i('s_branch k2_rp')
    a.label('k2_rp_done')
    a.flush()
    stamp(a, 3)
    for (x_, y_) in ((0, 1), (2, 3), (4, 5), (0, 2), (4, 6), (0, 4)):
        for k in range(4):
            a.i('v_add_f32 v%d, v%d, v%d' % (P + 4 * x_ + k, P + 4 * x_ + k, P + 4 * y_ + k))
    for k in range(4):
        a.i('v_mov_b32 v%d, v%d' % (P + 4 + k, P + k))
    for k in range(4):
        a.i('v_permlane32_swap_b32 v%d, v%d' % (P + k, P + 4 + k))
    for k in range(4):
        a.i('v_add_f32 v%d, v%d, v%d' % (P + k, P + k, P + 4 + k))
    for k in range(4):
        a.i('v_mov_b32 v%d, v%d' % (P + 4 + k, P + k))
    for k in range(4):
        a.i('v_permlane16_swap_b32 v%d, v%d' % (P + k, P + 4 + k))
    for k in range(4):
        a.i('v_add_f32 v%d, v%d, v%d' % (P + k, P + k, P + 4 + k))
    for k in range(4):
        a.i('v_add_f32 v%d, v%d, v%d row_ror:8' % (P + k, P + k, P + k))
    a.i('s_lshl_b32 s18, s3, 7')
    a.i('s_add_u32 s18, s18, %d' % AUX_RD)
    a.i('v_lshlrev_b32 v12, 4, v3')
    a.i('v_add_u32 v12, s18, v12')
    a.i('s_mov_b64 exec, 0xff')
    a.i('ds_write_b128 v12, v[%d:%d]' % (P, P + 3))
    a.i('s_mov_b64 exec, -1')
    lds_signal(a, 6, 7, 8)
    a.i('s_cmp_lg_u32 s3, 0')
    a.flush()
    a.i('s_cbranch_scc1 k2_r_fin')
    lds_poll(a, 6, 12, 8, 4, 'k2_rs', 14)
    a.i('v_add_u32 v12, %d, v10' % AUX_RD)
    for w in range(4):
        a.i('ds_read_b32 v%d, v12 offset:%d' % (P + w, 128 * w))
    a.i('s_waitcnt lgkmcnt(0)')
    a.i('v_add_f32 v32, v32, v33')
    a.i('v_add_f32 v34, v34, v35')
    a.i('v_add_f32 v32, v32, v34')
    rnd(a, [32])
    a.i('v_mul_f32 v32, v16, v32')
    rnd(a, [32])
    a.i('v_add_f32 v32, v32, v24')
    rnd(a, [32])
    a.i('v_add_f32 v32, v32, v21')
    a.i('v_cvt_pk_bf16_f32 v32, v32, v32')
    a.i('s_mov_b32 exec_hi, 0')
    a.i('buffer_store_short v32, v8, s[%d:%d], s13 offen' % (S_OUT, S_OUT + 3))
    a.label('k2_r_fin')
    a.flush()
    stamp(a, 9)
    stamp_flush(a, S_WS, 1)
    a.i('s_endpgm')

    a.label('k2_E')
    a.flush()
    a.i('s_sub_u32 s3, s3, 8')
    a.i('v_lshlrev_b32 v5, 4, v1')
    a.i('v_mov_b32 v6, 0')
    a.i('s_lshl_b32 s9, s6, 14')
    a.i('s_lshl_b32 s10, s3, 12')
    a.i('s_add_u32 s9, s9, s10')
    a.i('s_add_u32 s10, s9, 0x%x' % WS_XN)
    a.i('s_mov_b32 s11, 0x%x' % WS_KEYS)
    XN, KEY = 24, 40
    a.i('s_cmp_lg_u32 s3, 0')
    a.i('s_cbranch_scc1 k2_e_nokey')
    for qq in range(4):
        a.i('buffer_load_dwordx4 v[%d:%d], v5, s[%d:%d], s11 offen offset:%d' % (KEY + 4 * qq, KEY + 4 * qq + 3, S_WS, S_WS + 3, 1024 * qq))
    a.label('k2_e_nokey')
    for c in range(4):
        a.i('buffer_load_dwordx4 v[%d:%d], v5, s[%d:%d], s10 offen offset:%d %s' % (XN + 4 * c, XN + 4 * c + 3, S_WS, S_WS + 3, 1024 * c, XNLF))
    a.i('s_barrier')
    a.i('v_mov_b32 v60, %d' % AUX_CNT)
    a.i('v_mov_b32 v61, 1')
    a.i('v_lshlrev_b32 v7, 3, v1')
    a.i('s_lshl_b32 s10, s8, 9')
    a.i('v_and_b32 v62, 3, v1')
    a.i('v_mul_u32_u24 v62, %d, v62' % CH_STRIDE)
    a.i('v_and_b32 v63, 60, v1')
    a.i('v_lshl_add_u32 v62, v63, 2, v62')
    a.i('s_lshl_b32 s13, s3, 10')
    a.i('v_add_u32 v62, s13, v62')
    a.i('s_cmp_lg_u32 s3, 0')
    a.flush()
    a.i('s_cbranch_scc1 k2_e_rest')
    a.i('s_waitcnt vmcnt(4)')
    stamp(a, 2)
    argmax_keys(a, KEY, KEY + 16)
    a.i('v_readfirstlane_b32 s14, v%d' % KEY)
    a.i('s_and_b32 s15, s14, 0x7ff')
    a.i('s_sub_u32 s15, 2047, s15')
    a.i('s_lshl_b32 s13, s15, 11')
    a.i('s_add_u32 s13, s13, s10')
    a.i('s_lshl_b32 s9, s15, 3')
    a.i('s_add_u32 s9, s9, 0x%x' % WS_STATS)
    a.i('buffer_load_dwordx2 v[40:41], v7, s[%d:%d], s13 offen' % (S_X, S_X + 3))
    a.i('buffer_load_dwordx2 v[42:43], v6, s[%d:%d], s9 offen' % (S_WS, S_WS + 3))
    lds_signal(a, 60, 61, 20)
    a.i('s_waitcnt vmcnt(2)')
    for qq in range(4):
        a.i('ds_write_b128 v62, v[%d:%d] offset:%d' % (XN + 4 * qq, XN + 4 * qq + 3, CH_XN + 512 + 256 * qq))
    lds_signal(a, 60, 61, 0)
    stamp(a, 3)
    a.i('s_waitcnt vmcnt(0)')
    unpack2(a, 44, 45, 40)
    unpack2(a, 46, 47, 41)
    for k in range(4):
        a.i('v_sub_f32 v%d, v%d, v42' % (44 + k, 44 + k))
    for k in range(4):
        a.i('v_cvt_pk_bf16_f32 v%d, 0, v%d' % (44 + k, 44 + k))
    for k in range(4):
        a.i('v_mul_f32 v%d, v43, v%d' % (44 + k, 44 + k))
    a.i('v_cvt_pk_bf16_f32 v48, v44, v45')
    a.i('v_cvt_pk_bf16_f32 v49, v46, v47')
    a.i('v_add_u32 v50, %d, v7' % AUX_XS)
    a.i('ds_write_b64 v50, v[48:49]')
    a.i('v_mov_b32 v51, s14')
    a.i('ds_write_b32 v60, v51 offset:24')
    lds_signal(a, 60, 61, 4)
    a.i('s_branch k2_e_fin')
    a.label('k2_e_rest')
    a.flush()
    a.i('s_waitcnt vmcnt(0)')
    for qq in range(4):
        a.i('ds_write_b128 v62, v[%d:%d] offset:%d' % (XN + 4 * qq, XN + 4 * qq + 3, CH_XN + 512 + 256 * qq))
    lds_signal(a, 60, 61, 0)
    lds_poll(a, 60, 52, 20, 1, 'k2_erow', 14)
    a.label('k2_e_fin')
    a.flush()
    stamp(a, 4)
    if 'onlyG' in EXP:
        stamp_flush(a, S_WS, 1)
        a.i('s_endpgm')
    a.i('v_and_b32 v6, 15, v1')
    a.i('v_lshrrev_b32 v7, 4, v1')
    a.i('v_lshlrev_b32 v8, 11, v6')
    a.i('v_lshl_add_u32 v8, v7, 4, v8')
    a.i('s_lshl_b32 s11, s5, 6')
    a.i('s_lshl_b32 s12, s11, 11')
    a.i('s_lshl_b32 s13, s4, 8')
    a.i('s_lshl_b32 s15, s3, 6')
    a.i('s_add_u32 s13, s13, s15')
    a.i('s_add_u32 s12, s12, s13')
    XR, ST_, DKP = 16, 32, 40
    if os.environ.get('EGATE'):
        a.i('s_cmp_ge_u32 s5, 28')
        a.i('s_cselect_b32 s19, 0, 4')
        lds_poll_s(a, 60, 52, 8, 19, 'k2_ewl', 20)
    a.i('s_mov_b32 s16, s12')
    for u in range(4):
        a.i('buffer_load_dwordx4 v[%d:%d], v8, s[%d:%d], s16 offen nt' % (XR + 4 * u, XR + 4 * u + 3, S_X, S_X + 3))
        if u < 3:
            a.i('s_add_u32 s16, s16, 0x8000')
    a.i('v_lshlrev_b32 v9, 3, v6')
    a.i('s_lshl_b32 s15, s11, 3')
    a.i('s_add_u32 s15, s15, 0x%x' % WS_STATS)
    for u in range(4):
        a.i('buffer_load_dwordx2 v[%d:%d], v9, s[%d:%d], s15 offen offset:%d' % (ST_ + 2 * u, ST_ + 2 * u + 1, S_WS, S_WS + 3, 128 * u))
    a.i('v_lshlrev_b32 v9, 4, v7')
    a.i('buffer_load_dwordx4 v[%d:%d], v9, s[%d:%d], s13 offen' % (DKP, DKP + 3, S_DK, S_DK + 3))
    a.i('v_lshrrev_b32 v2, 3, v1')
    a.i('v_and_b32 v3, 7, v1')
    a.i('v_lshlrev_b32 v4, 12, v2')
    a.i('v_lshl_add_u32 v4, v3, 4, v4')
    a.i('v_and_b32 v5, 2, v2')
    a.i('v_xor_b32 v3, v3, v5')
    a.i('v_lshlrev_b32 v5, 7, v2')
    a.i('v_lshl_add_u32 v5, v3, 4, v5')
    a.i('s_lshl_b32 s15, s3, 12')
    a.i('s_add_u32 s15, s15, %d' % AUX_YT)
    a.i('v_add_u32 v5, s15, v5')
    a.i('v_xor_b32 v3, 64, v5')
    a.i('s_lshl_b32 s17, s4, 7')
    a.i('s_lshl_b32 s18, s3, 5')
    a.i('s_add_u32 s17, s17, s18')
    a.i('s_lshl_b32 s17, s17, 12')
    a.i('s_lshl_b32 s18, s5, 7')
    a.i('s_add_u32 s17, s17, s18')
    a.i('s_lshl_b32 s18, s4, 12')
    a.i('s_lshr_b32 s19, s5, 2')
    a.i('s_lshl_b32 s19, s19, 9')
    a.i('s_add_u32 s18, s18, s19')
    a.i('s_lshl_b32 s19, s3, 7')
    a.i('s_add_u32 s18, s18, s19')
    a.i('s_add_u32 s18, s18, 0x%x' % WS_YF)
    a.i('v_and_b32 v2, 31, v1')
    a.i('v_lshlrev_b32 v2, 2, v2')
    a.i('v_bfe_u32 v10, v1, 2, 2')
    a.i('v_and_b32 v11, 3, v1')
    a.i('v_lshrrev_b32 v12, 1, v10')
    a.i('v_and_b32 v13, 1, v7')
    a.i('v_lshl_or_b32 v12, v13, 1, v12')
    a.i('v_lshl_add_u32 v14, v7, 3, v10')
    a.i('v_lshlrev_b32 v14, 7, v14')
    a.i('v_lshl_add_u32 v14, v11, 3, v14')
    a.i('v_add_u32 v14, s15, v14')
    a.i('v_lshl_add_u32 v12, v12, 5, v14')
    a.i('v_xor_b32 v13, 32, v12')
    a.i('v_xor_b32 v14, 64, v12')
    a.i('v_xor_b32 v15, 96, v12')
    a.i('v_add_u32 v6, s11, v6')
    XX, XF, TA, DK = 64, 96, 128, 44
    a.i('s_waitcnt vmcnt(0)')
    stamp(a, 5)
    for k in range(16):
        unpack2(a, XX + 2 * k, XX + 2 * k + 1, XR + k)
    for k in range(4):
        unpack2(a, DK + 2 * k, DK + 2 * k + 1, DKP + k)
    for k in range(32):
        a.i('v_sub_f32 v%d, v%d, v%d' % (XF + k, XX + k, ST_ + 2 * (k // 8)))
    rnd(a, range(XF, XF + 32))
    for k in range(32):
        a.i('v_mul_f32 v%d, v%d, v%d' % (XF + k, XF + k, ST_ + 2 * (k // 8) + 1))
    rnd(a, range(XF, XF + 32))
    for k in range(32):
        a.i('v_mul_f32 v%d, v%d, v%d' % (TA + k, XF + k, DK + (k % 8)))
    rnd(a, range(TA, TA + 32))
    lds_poll(a, 60, 52, 4, 1, 'k2_ek', 14)
    a.i('ds_read_b32 v52, v60 offset:24')
    a.i('s_waitcnt lgkmcnt(0)')
    a.i('v_readfirstlane_b32 s14, v52')
    a.i('s_and_b32 s14, s14, 0x7ff')
    a.i('s_sub_u32 s14, 2047, s14')
    a.i('s_lshr_b32 s19, s5, 2')
    a.i('s_add_u32 s19, s19, %d' % int(os.environ.get('GATE', '2')))
    a.i('s_min_u32 s19, s19, 8')
    a.i('s_lshl_b32 s19, s19, 2')
    lds_poll_s(a, 60, 52, 28, 19, 'k2_eg', 20)
    stamp(a, 6)
    a.flush()
    a.label('k2_eyp')
    a.i('s_mov_b32 s18, s17')
    for i in range(4):
        a.i('buffer_load_dwordx4 v[%d:%d], v4, s[%d:%d], s18 offen sc1' % (XR + 4 * i, XR + 4 * i + 3, S_WS, S_WS + 3))
        if i < 3:
            a.i('s_add_u32 s18, s18, 0x8000')
    a.i('s_waitcnt vmcnt(0)')
    a.i('v_max3_u32 v52, v16, v17, v18')
    for k in range(19, 31, 2):
        a.i('v_max3_u32 v52, v52, v%d, v%d' % (k, k + 1))
    a.i('v_max_u32 v52, v52, v31')
    a.i('v_cmp_ne_u32 vcc, -1, v52')
    a.i('s_cmp_eq_u64 vcc, -1')
    a.i('s_cbranch_scc1 k2_eyp_done')
    a.i('s_sleep %d' % int(os.environ.get('ESL', '4')))
    a.i('s_branch k2_eyp')
    a.label('k2_eyp_done')
    a.flush()
    stamp(a, 7)
    for i in range(4):
        a.i('ds_write_b128 v%d, v[%d:%d] offset:%d' % (5 if i % 2 == 0 else 3, XR + 4 * i, XR + 4 * i + 3, 1024 * i))
    for u in range(4):
        a.i('ds_read_b64_tr_b16 v[%d:%d], v%d' % (32 + 4 * u, 33 + 4 * u, 12 + u))
        a.i('ds_read_b64_tr_b16 v[%d:%d], v%d offset:512' % (34 + 4 * u, 35 + 4 * u, 12 + u))
    stamp(a, 8)
    for u in range(4):
        a.i('s_waitcnt lgkmcnt(%d)' % (6 - 2 * u))
        for k in range(4):
            unpack2(a, 48 + 2 * k, 49 + 2 * k, 32 + 4 * u + k)
        for k in range(8):
            a.i('v_add_f32 v%d, v%d, v%d' % (48 + k, 48 + k, TA + 8 * u + k))
        rnd(a, range(48, 56))
        for k in range(8):
            a.i('v_add_f32 v%d, v%d, v%d' % (48 + k, 48 + k, XX + 8 * u + k))
        rnd(a, range(48, 56))
        for k in range(8):
            a.i('v_add_f32 v%d, v%d, v%d' % (48 + k, 48 + k, XF + 8 * u + k))
        for k in range(4):
            a.i('v_cvt_pk_bf16_f32 v%d, v%d, v%d' % (16 + 4 * u + k, 48 + 2 * k, 49 + 2 * k))
        a.i('v_cmp_ne_u32 vcc, s14, v6')
        a.i('s_mov_b64 exec, vcc')
        a.i('buffer_store_dwordx4 v[%d:%d], v8, s[%d:%d], s12 offen' % (16 + 4 * u, 19 + 4 * u, S_OUT, S_OUT + 3))
        a.i('s_mov_b64 exec, -1')
        if u < 3:
            a.i('s_add_u32 s12, s12, 0x8000')
            a.i('s_sub_u32 s14, s14, 16')
    stamp(a, 9)
    stamp_flush(a, S_WS, 1)
    a.label('k2_end')
    a.i('s_endpgm')


K3_LDS = 16384 + 2048 + 64


def rnd(a, regs):
    for r in regs:
        a.i('v_cvt_pk_bf16_f32 v%d, 0, v%d' % (r, r))


def gen_k3(a):
    S_X, S_WS, S_DK, S_OUT = 48, 52, 56, 60
    a.label('k3_kernel')
    a.i('s_cmp_ge_u32 s2, 272')
    a.i('s_cbranch_scc1 k3_end')
    load_ptrs(a)
    a.i('v_lshrrev_b32 v2, 6, v0')
    a.i('v_and_b32 v1, 63, v0')
    a.i('v_readfirstlane_b32 s3, v2')
    a.i('s_waitcnt lgkmcnt(0)')
    a.i('s_mov_b32 s15, 0x%x' % WS_SEL)
    a.i('s_load_dword s14, s[%d:%d], s15' % (P_WS, P_WS + 1))
    srd(a, S_X, P_X, 0x400000)
    srd(a, S_WS, P_WS, WS_SIZE)
    srd(a, S_DK, P_DK, 2048)
    srd(a, S_OUT, P_OUT, 0x400000)
    stamp_init(a)
    a.i('s_cmp_ge_u32 s2, 256')
    a.flush()
    a.i('s_cbranch_scc1 k3_row')
    a.i('s_and_b32 s4, s2, 7')
    a.i('s_lshr_b32 s5, s2, 3')
    a.i('v_lshrrev_b32 v2, 3, v1')
    a.i('v_and_b32 v4, 7, v1')
    a.i('v_and_b32 v5, 2, v2')
    a.i('v_xor_b32 v4, v4, v5')
    a.i('v_xor_b32 v5, 4, v4')
    a.i('v_lshlrev_b32 v3, 12, v2')
    a.i('v_lshl_add_u32 v4, v4, 4, v3')
    a.i('v_lshl_add_u32 v5, v5, 4, v3')
    a.i('s_lshl_b32 s6, s4, 7')
    a.i('s_lshl_b32 s7, s3, 4')
    a.i('s_add_u32 s6, s6, s7')
    a.i('s_lshl_b32 s6, s6, 12')
    a.i('s_lshl_b32 s7, s5, 7')
    a.i('s_add_u32 s6, s6, s7')
    a.i('s_lshl_b32 s7, s3, 11')
    a.i('s_mov_b32 m0, s7')
    a.i('s_add_u32 s8, s6, 0x8000')
    a.i('buffer_load_dwordx4 v4, s[%d:%d], s6 offen lds' % (S_WS, S_WS + 3))
    a.i('s_add_u32 m0, s7, 1024')
    a.i('s_nop 0')
    a.i('buffer_load_dwordx4 v5, s[%d:%d], s8 offen lds' % (S_WS, S_WS + 3))
    a.i('s_and_b32 s9, s3, 3')
    a.i('s_lshr_b32 s10, s3, 2')
    a.i('v_and_b32 v6, 15, v1')
    a.i('v_lshrrev_b32 v7, 4, v1')
    a.i('v_lshlrev_b32 v8, 11, v6')
    a.i('v_lshl_add_u32 v8, v7, 4, v8')
    a.i('s_lshl_b32 s11, s5, 6')
    a.i('s_lshl_b32 s12, s10, 4')
    a.i('s_add_u32 s11, s11, s12')
    a.i('s_lshl_b32 s12, s11, 11')
    a.i('s_lshl_b32 s13, s4, 8')
    a.i('s_lshl_b32 s15, s9, 6')
    a.i('s_add_u32 s13, s13, s15')
    a.i('s_add_u32 s12, s12, s13')
    a.i('s_add_u32 s16, s12, 0x10000')
    a.i('buffer_load_dwordx4 v[16:19], v8, s[%d:%d], s12 offen nt' % (S_X, S_X + 3))
    a.i('buffer_load_dwordx4 v[20:23], v8, s[%d:%d], s16 offen nt' % (S_X, S_X + 3))
    a.i('v_lshlrev_b32 v9, 3, v6')
    a.i('s_lshl_b32 s15, s11, 3')
    a.i('s_add_u32 s15, s15, 0x%x' % WS_STATS)
    a.i('buffer_load_dwordx2 v[24:25], v9, s[%d:%d], s15 offen' % (S_WS, S_WS + 3))
    a.i('buffer_load_dwordx2 v[26:27], v9, s[%d:%d], s15 offen offset:256' % (S_WS, S_WS + 3))
    a.i('v_lshlrev_b32 v9, 4, v7')
    a.i('buffer_load_dwordx4 v[28:31], v9, s[%d:%d], s13 offen' % (S_DK, S_DK + 3))
    a.i('v_bfe_u32 v10, v1, 2, 2')
    a.i('v_and_b32 v11, 3, v1')
    a.i('v_lshrrev_b32 v12, 1, v10')
    a.i('v_and_b32 v13, 1, v7')
    a.i('v_lshl_or_b32 v12, v13, 1, v12')
    a.i('v_xor_b32 v12, s10, v12')
    a.i('v_xor_b32 v13, 2, v12')
    a.i('v_lshl_add_u32 v14, v7, 3, v10')
    a.i('v_lshlrev_b32 v14, 7, v14')
    a.i('v_lshl_add_u32 v14, v11, 3, v14')
    a.i('s_lshl_b32 s15, s9, 12')
    a.i('v_add_u32 v14, s15, v14')
    a.i('v_lshl_add_u32 v12, v12, 5, v14')
    a.i('v_lshl_add_u32 v13, v13, 5, v14')
    a.i('v_add_u32 v6, s11, v6')
    XX, XF, TA, DK = 32, 48, 64, 80
    a.i('s_waitcnt vmcnt(0) lgkmcnt(0)')
    stamp(a, 2)
    a.i('s_barrier')
    a.i('ds_read_b64_tr_b16 v[88:89], v12')
    a.i('ds_read_b64_tr_b16 v[90:91], v12 offset:512')
    a.i('ds_read_b64_tr_b16 v[92:93], v13')
    a.i('ds_read_b64_tr_b16 v[94:95], v13 offset:512')
    a.i('s_and_b32 s14, s14, 0x7ff')
    a.i('s_sub_u32 s14, 2047, s14')
    a.i('s_sub_u32 s15, s14, 32')
    for k in range(8):
        unpack2(a, XX + 2 * k, XX + 2 * k + 1, 16 + k)
    for k in range(4):
        unpack2(a, DK + 2 * k, DK + 2 * k + 1, 28 + k)
    for k in range(16):
        a.i('v_sub_f32 v%d, v%d, v%d' % (XF + k, XX + k, 24 if k < 8 else 26))
    rnd(a, range(XF, XF + 16))
    for k in range(16):
        a.i('v_mul_f32 v%d, v%d, v%d' % (XF + k, XF + k, 25 if k < 8 else 27))
    rnd(a, range(XF, XF + 16))
    for k in range(16):
        a.i('v_mul_f32 v%d, v%d, v%d' % (TA + k, XF + k, DK + (k % 8)))
    rnd(a, range(TA, TA + 16))
    a.i('s_waitcnt lgkmcnt(0)')
    for k in range(8):
        unpack2(a, 16 + 2 * k, 17 + 2 * k, 88 + k)
    for k in range(16):
        a.i('v_add_f32 v%d, v%d, v%d' % (TA + k, TA + k, 16 + k))
    rnd(a, range(TA, TA + 16))
    for k in range(16):
        a.i('v_add_f32 v%d, v%d, v%d' % (TA + k, TA + k, XX + k))
    rnd(a, range(TA, TA + 16))
    for k in range(16):
        a.i('v_add_f32 v%d, v%d, v%d' % (TA + k, TA + k, XF + k))
    for k in range(8):
        a.i('v_cvt_pk_bf16_f32 v%d, v%d, v%d' % (16 + k, TA + 2 * k, TA + 2 * k + 1))
    a.i('v_cmp_ne_u32 vcc, s14, v6')
    a.i('s_mov_b64 exec, vcc')
    a.i('buffer_store_dwordx4 v[16:19], v8, s[%d:%d], s12 offen' % (S_OUT, S_OUT + 3))
    a.i('s_mov_b64 exec, -1')
    a.i('v_cmp_ne_u32 vcc, s15, v6')
    a.i('s_mov_b64 exec, vcc')
    a.i('buffer_store_dwordx4 v[20:23], v8, s[%d:%d], s16 offen' % (S_OUT, S_OUT + 3))
    stamp(a, 3)
    stamp_flush(a, S_WS, 2)
    a.i('s_endpgm')

    a.label('k3_row')
    a.flush()
    a.i('s_sub_u32 s4, s2, 256')
    a.i('v_lshrrev_b32 v2, 4, v1')
    a.i('v_and_b32 v3, 15, v1')
    a.i('v_lshlrev_b32 v4, 12, v2')
    a.i('v_lshl_add_u32 v4, v3, 4, v4')
    a.i('s_mul_i32 s5, s3, %d' % (28 * 4096))
    a.i('s_lshl_b32 s6, s4, 8')
    a.i('s_add_u32 s5, s5, s6')
    a.i('s_add_u32 s5, s5, 0x%x' % WS_PART)
    P = 32
    for i in range(7):
        a.i('buffer_load_dwordx4 v[%d:%d], v4, s[%d:%d], s5 offen' % (P + 4 * i, P + 4 * i + 3, S_WS, S_WS + 3))
        if i < 6:
            a.i('s_add_u32 s5, s5, 0x4000')
    a.i('s_waitcnt lgkmcnt(0)')
    a.i('s_and_b32 s9, s14, 0x7ff')
    a.i('s_sub_u32 s9, 2047, s9')
    a.i('v_lshlrev_b32 v5, 1, v1')
    a.i('v_lshlrev_b32 v6, 12, v1')
    a.i('v_mov_b32 v7, 0')
    a.i('s_lshl_b32 s7, s4, 7')
    a.i('s_lshl_b32 s10, s9, 11')
    a.i('s_add_u32 s10, s10, s7')
    a.i('s_lshl_b32 s11, s4, 18')
    a.i('s_lshl_b32 s12, s9, 1')
    a.i('s_add_u32 s11, s11, s12')
    a.i('s_lshl_b32 s12, s9, 3')
    a.i('s_add_u32 s12, s12, 0x%x' % WS_STATS)
    a.i('buffer_load_ushort v8, v5, s[%d:%d], s10 offen' % (S_X, S_X + 3))
    a.i('buffer_load_ushort v9, v6, s[%d:%d], s11 offen' % (S_WS, S_WS + 3))
    a.i('buffer_load_ushort v10, v5, s[%d:%d], s7 offen' % (S_DK, S_DK + 3))
    a.i('buffer_load_dwordx2 v[12:13], v7, s[%d:%d], s12 offen' % (S_WS, S_WS + 3))
    a.i('s_waitcnt vmcnt(4)')
    for (x_, y_) in ((0, 1), (2, 3), (4, 5), (0, 2), (4, 6), (0, 4)):
        for k in range(4):
            a.i('v_add_f32 v%d, v%d, v%d' % (P + 4 * x_ + k, P + 4 * x_ + k, P + 4 * y_ + k))
    for k in range(4):
        a.i('v_mov_b32 v%d, v%d' % (P + 4 + k, P + k))
    for k in range(4):
        a.i('v_permlane32_swap_b32 v%d, v%d' % (P + k, P + 4 + k))
    for k in range(4):
        a.i('v_add_f32 v%d, v%d, v%d' % (P + k, P + k, P + 4 + k))
    for k in range(4):
        a.i('v_mov_b32 v%d, v%d' % (P + 4 + k, P + k))
    for k in range(4):
        a.i('v_permlane16_swap_b32 v%d, v%d' % (P + k, P + 4 + k))
    for k in range(4):
        a.i('v_add_f32 v%d, v%d, v%d' % (P + k, P + k, P + 4 + k))
    a.i('s_lshl_b32 s13, s3, 8')
    a.i('v_lshlrev_b32 v14, 4, v3')
    a.i('v_add_u32 v14, s13, v14')
    a.i('s_mov_b64 exec, 0xffff')
    a.i('ds_write_b128 v14, v[%d:%d]' % (P, P + 3))
    a.i('s_mov_b64 exec, -1')
    a.i('s_waitcnt lgkmcnt(0)')
    a.i('s_barrier')
    a.i('s_cmp_lg_u32 s3, 0')
    a.i('s_cbranch_scc1 k3_end')
    a.i('v_lshlrev_b32 v14, 2, v1')
    for w in range(8):
        a.i('ds_read_b32 v%d, v14 offset:%d' % (P + w, 256 * w))
    a.i('v_mov_b32 v16, s14')
    a.i('v_and_b32 v16, 0xffff0000, v16')
    a.i('v_ashrrev_i32 v17, 31, v16')
    a.i('v_not_b32 v17, v17')
    a.i('v_or_b32 v17, 0x80000000, v17')
    a.i('v_xor_b32 v16, v16, v17')
    a.i('v_and_b32 v16, 0xffff0000, v16')
    a.i('v_mul_f32 v16, %s, v16' % fbits(-L2E_HI))
    a.i('v_exp_f32 v16, v16')
    a.i('v_add_f32 v16, 1.0, v16')
    a.i('v_rcp_f32 v16, v16')
    rnd(a, [16])
    a.i('s_waitcnt vmcnt(0)')
    for r in (8, 9, 10):
        a.i('v_lshlrev_b32 v%d, 16, v%d' % (r, r))
    a.i('v_sub_f32 v11, v8, v12')
    rnd(a, [11])
    a.i('v_mul_f32 v11, v11, v13')
    rnd(a, [11])
    a.i('v_mul_f32 v10, v10, v11')
    rnd(a, [10])
    a.i('v_add_f32 v10, v10, v9')
    rnd(a, [10])
    a.i('v_add_f32 v10, v10, v8')
    rnd(a, [10])
    a.i('s_waitcnt lgkmcnt(0)')
    for (x_, y_) in ((0, 1), (2, 3), (4, 5), (6, 7), (0, 2), (4, 6), (0, 4)):
        a.i('v_add_f32 v%d, v%d, v%d' % (P + x_, P + x_, P + y_))
    rnd(a, [P])
    a.i('v_mul_f32 v%d, v16, v%d' % (P, P))
    rnd(a, [P])
    a.i('v_add_f32 v%d, v%d, v11' % (P, P))
    rnd(a, [P])
    a.i('v_add_f32 v%d, v%d, v10' % (P, P))
    a.i('v_cvt_pk_bf16_f32 v%d, v%d, v%d' % (P, P, P))
    a.i('buffer_store_short v%d, v5, s[%d:%d], s10 offen' % (P, S_OUT, S_OUT + 3))
    a.label('k3_end')
    a.i('s_endpgm')


def kd(name, vgpr, sgpr=102):
    acc = (vgpr + 3) // 4 * 4
    return '''.amdhsa_kernel %s
  .amdhsa_next_free_vgpr %d
  .amdhsa_next_free_sgpr %d
  .amdhsa_accum_offset %d
  .amdhsa_group_segment_fixed_size 0
  .amdhsa_kernarg_size 120
  .amdhsa_user_sgpr_count 2
  .amdhsa_user_sgpr_kernarg_segment_ptr 1
  .amdhsa_system_sgpr_workgroup_id_x 1
  .amdhsa_float_denorm_mode_32 3
.end_amdhsa_kernel
''' % (name, vgpr, sgpr, acc)


def main():
    hdr = open('cdna_kernels/%s.s.ref' % NAME).read().split('\n')
    head = [l for l in hdr if l.startswith(';') and '@launch' not in l and 'Override launch' not in l and 'grid=ceil' not in l]
    out = '\n'.join(head) + '\n'
    out += '; @launch kernel=k1_kernel grid=(256,1,1) block=(1024,1,1) lds=%d\n' % K1_LDS
    out += '; @launch kernel=k2_kernel grid=(256,1,1) block=(768,1,1) lds=%d\n' % K2_LDS
    out += '.amdgcn_target "amdgcn-amd-amdhsa--gfx950"\n.text\n'
    for nm, fn in (('k1_kernel', gen_k1), ('k2_kernel', gen_k2)):
        a = Asm()
        out += '.globl %s\n.p2align 8\n.type %s,@function\n' % (nm, nm)
        fn(a)
        out += a.text()
        sys.stderr.write('%s: %d lines, %d nop states inserted\n' % (nm, len(a.lines), a.nops_inserted))
    out += '.section .rodata,"a"\n'
    for nm, v in (('k1_kernel', 128), ('k2_kernel', 168)):
        out += '.p2align 6\n' + kd(nm, v)
    dst = sys.argv[1] if len(sys.argv) > 1 else 'cdna_kernels/%s.s' % NAME
    open(dst, 'w').write(out)


if __name__ == '__main__':
    main()
```
